```python
import torch

def _softmax(x, axis=-1):
    return torch.softmax(x, dim=axis)
def _gelu(x):
    return torch.nn.functional.gelu(x, approximate="tanh")
def _silu(x):
    return torch.nn.functional.silu(x)
def _sigmoid(x):
    return torch.sigmoid(x)
def _layernorm(x, axis=-1, eps=1e-5):
    m = x.mean(dim=axis, keepdim=True)
    v = x.var(dim=axis, keepdim=True, unbiased=False)
    return (x - m) / torch.sqrt(v + eps)
def _scatter_add(tgt, idx, src, axis=0):
    return tgt.clone().index_add_(axis, idx, src)
def _segment_sum(src, seg, n):
    out = torch.zeros((n,) + src.shape[1:], dtype=src.dtype)
    return out.index_add_(0, seg, src)
def _pad(x, pw):
    flat = tuple(v for pair in reversed(pw) for v in pair)
    return torch.nn.functional.pad(x, flat)

kernel_name = 'gated_mix__softmax_full_mha__dense_activation_silu__prompt'

def setup_inputs():

    _w = (lambda a: (lambda t: t.to(torch.bfloat16) if t.is_floating_point() else t)(torch.as_tensor(a)))
    def _A_setup():
        B, S, D = 1, 2048, 448
        return {
            "x": _w((lambda *s: torch.randn(*s, dtype=torch.bfloat16) * 0.05)(B, S, D)),
            "wqkv": _w((lambda *s: torch.randn(*s, dtype=torch.bfloat16) * 0.8)(D, 3 * D)),
            "wo": _w((lambda *s: torch.randn(*s, dtype=torch.bfloat16) * 0.05)(D, D)),
        }
    _A_in = _A_setup()

    def _B_setup():
        B, S, D, F = 1, 2048, 448, 1792
        return {
            "x": _w((lambda *s: torch.randn(*s, dtype=torch.bfloat16) * 0.05)(B, S, D)),
            "w1": _w((lambda *s: torch.randn(*s, dtype=torch.bfloat16) * 3.2)(D, F) * (D ** -0.5)),
            "w2": _w((lambda *s: torch.randn(*s, dtype=torch.bfloat16) * 0.8)(F, D) * (F ** -0.5)),
        }
    _B_in = _B_setup()

    return {
        "A_x": _A_in["x"],
        "A_wqkv": _A_in["wqkv"],
        "A_wo": _A_in["wo"],
        "B_x": _B_in["x"],
        "B_w1": _B_in["w1"],
        "B_w2": _B_in["w2"],
        "gate_w": _w((lambda *s: torch.randn(*s, dtype=torch.bfloat16) * 0.05)(448) * 16.0),
    }

def reference(A_x, A_wqkv, A_wo, B_x, B_w1, B_w2, gate_w):
    def _A_ref(x, wqkv, wo):
        B, S, D = x.shape
        H = 16; Dh = D // H
        qkv = (lambda x, *d: x.permute(*d))((x @ wqkv).reshape(B, S, 3, H, Dh), 2, 0, 3, 1, 4)
        q, k, v = qkv[0], qkv[1], qkv[2]
        scale = Dh ** -0.5
        scores = torch.einsum("bhqd,bhkd->bhqk", q, k) * scale
        p = _softmax(scores, axis=-1)
        o = torch.einsum("bhqk,bhkd->bhqd", p, v)
        return (lambda x, *d: x.permute(*d))(o, 0, 2, 1, 3).reshape(B, S, D) @ wo

    def _B_ref(x, w1, w2):
        h = torch.einsum("bsd,df->bsf", x, w1)
        h = _silu(h)
        out = torch.einsum("bsf,fd->bsd", h, w2)
        return out

    x = A_x
    g = _sigmoid((x * gate_w).sum(-1, keepdims=True))
    a = _A_ref(x, A_wqkv, A_wo)
    b = _B_ref(x, B_w1, B_w2)
    return g * a + (1 - g) * b
```

```python
def gen(a, G):
    vr, sr, MFMA, srd, f2u = G.vr, G.sr, G.MFMA, G.srd, G.f2u
    S, D, F = G.S, G.D, G.F
    name = "k2_kernel"
    G.header(a, name)
    NB = 2
    RING = 24576
    OC = 98304
    LFLAG = OC + 49152
    LDS_BYTES = LFLAG + 64
    SWS, SKV, SW2, SWO, SOUT = 36, 40, 44, 48, 52
    sHead, sQb, sW, sX, sIdx, sC = 56, 57, 58, 59, 60, 61
    sT0, sT1, sT2, sT3 = 62, 63, 64, 65
    sKo, sVo = 66, 67
    sRb, sCb = 68, 69
    sPass = 70
    a(f"""
    s_cmp_ge_u32 s2, 256
    s_cbranch_scc1 k2_end
    s_load_dwordx16 s[16:31], s[0:1], 0
    s_load_dwordx4 s[32:35], s[0:1], 64
    v_lshrrev_b32 v1, 6, v0
    v_and_b32 v0, 63, v0
    s_and_b32 s{sX}, s2, 7
    s_lshr_b32 s{sIdx}, s2, 3
    v_readfirstlane_b32 s{sW}, v1
    s_lshl_b32 s{sHead}, s{sX}, 1
    s_lshr_b32 s3, s{sIdx}, 4
    s_add_u32 s{sHead}, s{sHead}, s3
    s_and_b32 s{sQb}, s{sIdx}, 15
    v_lshlrev_b32 v7, 4, v0
    v_and_b32 v2, 31, v0
    s_waitcnt lgkmcnt(0)
    """)
    srd(a, SWS, 34, G.WS_SIZE)
    a(f"""
    s_cmp_ge_u32 s{sW}, 4
    s_cbranch_scc1 k2_ffn
    """)
    Q = 8
    O = 40
    SB = [104, 120]
    PB = [136, 144]
    KVB = [152 + 16*i for i in range(NB)]
    VG = 3
    NV = 152 + 16*NB
    a("s_setprio 2")
    a(f"""
    s_lshl_b32 s3, s{sHead}, 6
    s_lshl_b32 s4, s{sW}, 4
    s_add_u32 s3, s3, s4
    s_lshl_b32 s3, s3, 12
    s_add_u32 s3, s3, {G.WS_KV}
    s_add_u32 s{SKV}, s34, s3
    s_addc_u32 s{SKV+1}, s35, 0
    s_mov_b32 s{SKV+2}, 65536
    s_mov_b32 s{SKV+3}, 0x00020000
    s_lshl_b32 s3, s{sHead}, 6
    s_lshl_b32 s4, s{sQb}, 2
    s_add_u32 s3, s3, s4
    s_lshl_b32 s3, s3, 11
    s_add_u32 s{sT0}, s3, {G.WS_QF}
    """)
    for i in range(4):
        a(f"""
        s_add_u32 s3, s{sW}, {1+i}
        s_and_b32 s3, s3, 3
        s_lshl_b32 s3, s3, 11
        s_add_u32 s3, s3, s{sT0}
        buffer_load_dwordx4 {vr(Q+8*i,4)}, v7, {sr(SWS,4)}, s3 offen
        buffer_load_dwordx4 {vr(Q+8*i+4,4)}, v7, {sr(SWS,4)}, s3 offen offset:1024
        """)
    a(f"""
    s_lshl_b32 s3, s{sQb}, 9
    s_lshl_b32 s4, s{sW}, 7
    s_add_u32 s3, s3, s4
    s_add_u32 s3, s3, {G.WS_G}
    v_lshlrev_b32 v4, 2, v2
    buffer_load_dword v{VG}, v4, {sr(SWS,4)}, s3 offen
    v_mov_b32 v4, {LFLAG}
    v_mov_b32 v5, 0
    ds_write_b32 v4, v5
    s_mov_b32 s{sPass}, 0
    """)
    a.lab("k2_att_start")
    def ldK(b):
        a(f"buffer_load_dwordx4 {vr(KVB[b],4)}, v7, {sr(SKV,4)}, s{sKo} offen")
        a(f"buffer_load_dwordx4 {vr(KVB[b]+4,4)}, v7, {sr(SKV,4)}, s{sKo} offen offset:1024")
        a(f"s_add_u32 s{sKo}, s{sKo}, 4096")
    def ldV(b):
        a(f"buffer_load_dwordx4 {vr(KVB[b]+8,4)}, v7, {sr(SKV,4)}, s{sVo} offen offset:2048")
        a(f"buffer_load_dwordx4 {vr(KVB[b]+12,4)}, v7, {sr(SKV,4)}, s{sVo} offen offset:3072")
        a(f"s_add_u32 s{sVo}, s{sVo}, 4096")
    a(f"s_mov_b32 s{sKo}, 0")
    a(f"s_mov_b32 s{sVo}, 0")
    for b in range(NB):
        ldK(b)
        if b < NB-1:
            ldV(b)
    for i in range(8):
        a(f"v_mov_b32 v{KVB[NB-1]+8+i}, 0")
    for i in range(8):
        a(f"v_mov_b32 v{PB[1]+i}, 0")
    for i in range(64):
        a(f"v_mov_b32 v{O+i}, 0")
    a(f"s_mov_b32 s{sC}, 0")
    a(f"s_waitcnt vmcnt({4*(NB-1)})")
    a(f"{MFMA} {vr(SB[0],16)}, {vr(KVB[0],4)}, {vr(Q,4)}, 0")
    a(f"{MFMA} {vr(SB[0],16)}, {vr(KVB[0]+4,4)}, {vr(Q+4,4)}, {vr(SB[0],16)}")
    a("s_nop 15")
    a.lab("k2_aloop")
    NU = 4*NB
    for u in range(NU):
        t, qi = u // 4, u % 4
        un = (u+1) % NU; tn, qn = un // 4, un % 4
        up = (u-1) % NU; tp, qp = up // 4, up % 4
        sc, sn = SB[u % 2], SB[(u+1) % 2]
        pc, pp = PB[u % 2], PB[(u-1) % 2]
        def ex(r): a(f"v_exp_f32 v{sc+r}, v{sc+r}")
        def cv(p): a(f"v_cvt_pk_bf16_f32 v{pc+p}, v{sc+2*p}, v{sc+2*p+1}")
        if qi == 3:
            a(f"s_waitcnt vmcnt({4*(NB-1)})")
        a(f"{MFMA} {vr(sn,16)}, {vr(KVB[tn],4)}, {vr(Q+8*qn,4)}, 0")
        for r in range(0, 4): ex(r)
        a(f"{MFMA} {vr(sn,16)}, {vr(KVB[tn]+4,4)}, {vr(Q+8*qn+4,4)}, {vr(sn,16)}")
        if qi == 2:
            ldK(t)
        for r in range(4, 8): ex(r)
        cv(0); cv(1)
        if qi == 1:
            a(f"s_waitcnt vmcnt({4*(NB-1)})")
        a(f"{MFMA} {vr(O+16*qp,16)}, {vr(KVB[tp]+8,4)}, {vr(pp,4)}, {vr(O+16*qp,16)}")
        for r in range(8, 12): ex(r)
        cv(2); cv(3)
        a(f"{MFMA} {vr(O+16*qp,16)}, {vr(KVB[tp]+12,4)}, {vr(pp+4,4)}, {vr(O+16*qp,16)}")
        if qi == 0:
            ldV(tp)
        for r in range(12, 16): ex(r)
        cv(4); cv(5); cv(6); cv(7)
    a(f"""
    s_add_u32 s{sC}, s{sC}, 1
    s_cmp_lt_u32 s{sC}, {16//NB}
    s_cbranch_scc1 k2_aloop
    """)
    up = NU-1
    a(f"{MFMA} {vr(O+48,16)}, {vr(KVB[NB-1]+8,4)}, {vr(PB[up%2],4)}, {vr(O+48,16)}")
    a(f"{MFMA} {vr(O+48,16)}, {vr(KVB[NB-1]+12,4)}, {vr(PB[up%2]+4,4)}, {vr(O+48,16)}")
    for i in range(3):
        a(f"""
        s_add_u32 s3, s{sW}, {1+i}
        s_and_b32 s3, s3, 3
        s_mul_i32 s3, s3, 12288
        s_add_u32 s3, s3, {OC + 4096*i}
        v_add_u32 v4, s3, v7
        """)
        for r4 in range(4):
            a(f"ds_write_b128 v4, {vr(O+16*i+4*r4,4)} offset:{1024*r4}")
    a(f"""
    s_mul_i32 s3, s{sW}, 12288
    s_add_u32 s3, s3, {OC}
    v_add_u32 v4, s3, v7
    s_waitcnt vmcnt(0) lgkmcnt(0)
    s_barrier
    """)
    R = 104
    for i in range(12):
        a(f"ds_read_b128 {vr(R+4*i,4)}, v4 offset:{1024*i}")
    OK_ = O + 48
    for i in range(3):
        a(f"s_waitcnt lgkmcnt({8-4*i})")
        for p in range(8):
            a(f"v_pk_add_f32 {vr(OK_+2*p,2)}, {vr(OK_+2*p,2)}, {vr(R+16*i+2*p,2)}")
    OP = 8
    OP = R
    a(f"""
    v_mov_b32 v4, v{OK_+12}
    v_mov_b32 v5, v{OK_+12}
    s_lshl_b32 s3, s{sQb}, 2
    s_add_u32 s3, s3, s{sW}
    v_permlane32_swap_b32 v4, v5
    s_lshl_b32 s3, s3, 4
    s_add_u32 s3, s3, s{sHead}
    v_rcp_f32 v4, v5
    s_lshl_b32 s3, s3, 11
    s_add_u32 s{sT0}, s3, {G.WS_OF}
    v_mul_f32 v4, v4, v{VG}
    """)
    for p in range(8):
        a(f"v_pk_mul_f32 {vr(OK_+2*p,2)}, {vr(OK_+2*p,2)}, v[4:5] op_sel_hi:[1,0]")
    for p in range(8):
        a(f"v_cvt_pk_bf16_f32 v{OP+p}, v{OK_+2*p}, v{OK_+2*p+1}")
    a(f"""
    s_mov_b32 exec_lo, 0
    v_mov_b32 v{OP+6}, 0
    v_mov_b32 v{OP+7}, 0
    v_mov_b32 v{OK_+12}, 0
    v_mov_b32 v{OK_+13}, 0
    v_mov_b32 v{OK_+14}, 0
    v_mov_b32 v{OK_+15}, 0
    s_mov_b64 exec, -1
    buffer_store_dwordx4 {vr(OP,4)}, v7, {sr(SWS,4)}, s{sT0} offen sc1
    buffer_store_dwordx4 {vr(OP+4,4)}, v7, {sr(SWS,4)}, s{sT0} offen offset:1024 sc1
    """)
    for p in range(1, 8):
        a(f"v_pk_add_f32 {vr(OK_,2)}, {vr(OK_,2)}, {vr(OK_+2*p,2)}")
    a(f"""
    v_add_f32 v{OK_}, v{OK_}, v{OK_+1}
    v_mul_f32 v{OK_}, 0, v{OK_}
    v_add_f32 v5, v5, v{OK_}
    v_cmp_nlt_f32 vcc, v5, v6
    """.replace("v_cmp_nlt_f32 vcc, v5, v6", f"v_mov_b32 v6, {f2u(2.0**40):#x}\n v_cmp_nlt_f32 vcc, v5, v6"))
    a(f"""
    v_mov_b32 v4, {LFLAG}
    v_mov_b32 v6, 1
    s_cmp_lg_u32 s{sPass}, 0
    s_cbranch_scc1 k2_nobad
    s_cbranch_vccz k2_nobad
    ds_write_b32 v4, v6
    """)
    a.lab("k2_nobad")
    a(f"""
    s_waitcnt vmcnt(0) lgkmcnt(0)
    s_barrier
    """)
    a(f"""
    s_cmp_lg_u32 s{sPass}, 0
    s_cbranch_scc1 k2_publish
    ds_read_b32 v6, v4
    s_waitcnt lgkmcnt(0)
    v_readfirstlane_b32 s3, v6
    s_cmp_lg_u32 s3, 0
    s_cbranch_scc1 k2_fallback
    """)
    a.lab("k2_publish")
    a(f"""
    s_cmp_lg_u32 s{sW}, 0
    s_cbranch_scc1 k2_end
    s_lshl_b32 s3, s{sQb}, 8
    s_lshl_b32 s4, s{sHead}, 2
    s_add_u32 s3, s3, s4
    s_add_u32 s3, s3, {G.WS_FL}
    v_mov_b32 v4, 0
    v_mov_b32 v5, 1
    s_mov_b64 exec, 1
    buffer_store_dword v5, v4, {sr(SWS,4)}, s3 offen sc1
    s_endpgm
    """)
    a.lab("k2_fallback")
    MX = O
    a(f"""
    s_mov_b32 s{sPass}, 1
    s_mov_b32 exec_lo, 0
    """)
    for i in range(4):
        a(f"v_mov_b32 v{Q+8*i+6}, 0")
        a(f"v_mov_b32 v{Q+8*i+7}, 0")
    a("s_mov_b64 exec, -1")
    for i in range(4):
        a(f"v_mov_b32 v{MX+i}, 0xff800000")
    a(f"s_mov_b32 s{sKo}, 0")
    a.lab("k2_fbloop")
    ldK(0)
    a("s_waitcnt vmcnt(0)")
    for i in range(4):
        sb = SB[0]
        a(f"{MFMA} {vr(sb,16)}, {vr(KVB[0],4)}, {vr(Q+8*i,4)}, 0")
        a(f"{MFMA} {vr(sb,16)}, {vr(KVB[0]+4,4)}, {vr(Q+8*i+4,4)}, {vr(sb,16)}")
        a("s_nop 15")
        for r in range(0, 16, 2):
            a(f"v_max3_f32 v{MX+i}, v{MX+i}, v{sb+r}, v{sb+r+1}")
    a(f"""
    s_cmp_lt_u32 s{sKo}, 65536
    s_cbranch_scc1 k2_fbloop
    """)
    for i in range(4):
        a(f"""
        s_add_u32 s3, s{sW}, {1+i}
        s_and_b32 s3, s3, 3
        s_lshl_b32 s3, s3, 10
        s_lshl_b32 s4, s{sW}, 8
        s_add_u32 s3, s3, s4
        s_add_u32 s3, s3, {OC}
        v_lshl_add_u32 v4, v0, 2, s3
        ds_write_b32 v4, v{MX+i}
        """)
    a("s_waitcnt lgkmcnt(0)")
    a("s_barrier")
    for i in range(4):
        a(f"""
        s_add_u32 s3, s{sW}, {1+i}
        s_and_b32 s3, s3, 3
        s_lshl_b32 s3, s3, 10
        s_add_u32 s3, s3, {OC}
        v_lshl_add_u32 v4, v2, 2, s3
        """)
        for k in range(8):
            a(f"ds_read_b32 v{MX+8+k}, v4 offset:{128*k}")
        a("s_waitcnt lgkmcnt(0)")
        a(f"""
        v_max3_f32 v5, v{MX+8}, v{MX+9}, v{MX+10}
        v_max3_f32 v5, v5, v{MX+11}, v{MX+12}
        v_max3_f32 v5, v5, v{MX+13}, v{MX+14}
        v_max_f32 v5, v5, v{MX+15}
        v_sub_f32 v5, 0, v5
        v_and_b32 v6, 0xffff0000, v5
        v_sub_f32 v6, v5, v6
        v_and_b32 v4, 0xffff0000, v6
        v_sub_f32 v4, v6, v4
        s_mov_b32 s3, 0x07060302
        s_mov_b32 exec_lo, 0
        v_perm_b32 v{Q+8*i+6}, v6, v5, s3
        v_lshrrev_b32 v{Q+8*i+7}, 16, v4
        s_mov_b64 exec, -1
        """)
    a("s_barrier")
    a("s_branch k2_att_start")

    a.lab("k2_ffn")
    ACC = 16
    HB = 80
    WF = 96
    WOF = 112
    OFR = 176
    VD = 8
    TA = 14
    sM0, sWo, sHo, sSlot, sDelta, sRS, sRD = 71, 72, 73, 74, 75, 76, 77
    a(f"""
    s_cmp_ge_u32 s{sIdx}, 28
    s_cbranch_scc1 k2_end
    s_sub_u32 s{sW}, s{sW}, 4
    s_mul_i32 s3, s{sIdx}, 37
    s_lshr_b32 s3, s3, 8
    s_mul_i32 s4, s3, 7
    s_sub_u32 s{sCb}, s{sIdx}, s4
    s_lshl_b32 s{sRb}, s{sX}, 2
    s_add_u32 s{sRb}, s{sRb}, s3
    """)
    srd(a, SW2, 26, F*D*2)
    srd(a, SWO, 20, D*D*2)
    srd(a, SOUT, 30, S*D*2)
    a(f"""
    v_lshrrev_b32 v4, 3, v0
    v_mul_u32_u24 v4, 896, v4
    v_bfe_u32 v5, v0, 2, 1
    v_bfe_u32 v6, v0, 4, 1
    v_xor_b32 v5, v5, v6
    v_lshl_add_u32 v4, v5, 6, v4
    v_and_b32 v5, 3, v0
    v_lshl_add_u32 v{VD}, v5, 4, v4
    v_add_u32 v{VD+1}, 6144, v{VD}
    v_add_u32 v{VD+2}, {2*6144}, v{VD}
    v_add_u32 v{VD+3}, {3*6144}, v{VD}
    v_add_u32 v12, {56*2048-2048}, v7
    """)
    a(f"""
    s_mul_i32 s{sM0}, s{sW}, {RING}
    v_lshrrev_b32 v4, 5, v0
    v_bfe_u32 v5, v0, 2, 2
    v_lshl_add_u32 v4, v4, 2, v5
    v_lshlrev_b32 v4, 7, v4
    v_lshl_add_u32 v4, v6, 5, v4
    v_and_b32 v5, 3, v0
    v_lshl_add_u32 v4, v5, 3, v4
    v_add_u32 v4, s{sM0}, v4
    v_bfe_u32 v5, v0, 3, 1
    v_lshl_add_u32 v{TA}, v5, 6, v4
    v_xor_b32 v5, 1, v5
    v_lshl_add_u32 v{TA+1}, v5, 6, v4
    v_add_u32 v3, s{sM0}, v7
    """)
    a(f"""
    s_mul_i32 s{sWo}, s{sW}, {448*896}
    s_lshl_b32 s3, s{sCb}, 7
    s_add_u32 s{sWo}, s{sWo}, s3
    s_mul_i32 s3, s{sRb}, 112
    s_mul_i32 s4, s{sW}, 14
    s_add_u32 s3, s3, s4
    s_lshl_b32 s3, s3, 11
    s_add_u32 s{sHo}, s3, {G.WS_HF}
    s_mov_b32 s{sSlot}, 0
    s_mov_b32 s{sRS}, 0
    s_movk_i32 s78, 0x2000
    s_mov_b32 s{sT3}, s{sM0}
    """)
    def dma_tile():
        a(f"s_mov_b32 m0, s{sM0}")
        a(f"s_add_u32 s3, s{sM0}, 4096")
        for i in range(4):
            a(f"buffer_load_dwordx4 v{VD+i}, {sr(SW2,4)}, s{sWo} offen offset:{1024*i} lds")
        a(f"s_mov_b32 m0, s3")
        a(f"s_add_u32 s{sWo}, s{sWo}, {32*896}")
        a(f"buffer_load_dwordx4 v7, {sr(SWS,4)}, s{sHo} offen lds")
        a(f"buffer_load_dwordx4 v7, {sr(SWS,4)}, s{sHo} offen offset:1024 lds")
        a(f"buffer_load_dwordx4 v12, {sr(SWS,4)}, s{sHo} offen offset:2048 lds")
        a(f"buffer_load_dwordx4 v12, {sr(SWS,4)}, s{sHo} offen offset:3072 lds")
        a(f"""
        s_add_u32 s{sHo}, s{sHo}, 2048
        s_add_u32 s{sSlot}, s{sSlot}, 1
        s_cmp_eq_u32 s{sSlot}, 3
        s_cselect_b32 s{sDelta}, -16384, s78
        s_cselect_b32 s{sSlot}, 0, s{sSlot}
        s_add_u32 s{sM0}, s{sM0}, s{sDelta}
        """)
    a(f"""
    s_lshl_b32 s3, s{sRb}, 8
    s_add_u32 s3, s3, {G.WS_G}
    v_lshlrev_b32 v4, 2, v2
    buffer_load_dword v1, v4, {sr(SWS,4)}, s3 offen
    buffer_load_dword v13, v4, {sr(SWS,4)}, s3 offen offset:128
    """)
    dma_tile(); dma_tile(); dma_tile()
    for i in range(64):
        a(f"v_mov_b32 v{ACC+i}, 0")
    a(f"s_mov_b32 s{sC}, 0")
    a.lab("k2_floop")
    a("s_waitcnt vmcnt(16)")
    def treads(dst, off):
        for ni in range(2):
            for kk in range(2):
                for u in range(2):
                    a(f"ds_read_b64_tr_b16 {vr(dst(ni,kk)+2*u,2)}, v{TA+ni} offset:{off+(16*kk+8*u)*128}")
    for mi in range(2):
        for kk in range(2):
            a(f"ds_read_b128 {vr(HB+8*mi+4*kk,4)}, v3 offset:{4096+2048*mi+1024*kk}")
    treads(lambda ni,kk: WF+8*ni+4*kk, 0)
    a(f"""
    s_add_u32 s{sRS}, s{sRS}, 1
    s_cmp_eq_u32 s{sRS}, 3
    s_cselect_b32 s{sRD}, -16384, s78
    s_cselect_b32 s{sRS}, 0, s{sRS}
    v_add_u32 v3, s{sRD}, v3
    v_add_u32 v{TA}, s{sRD}, v{TA}
    v_add_u32 v{TA+1}, s{sRD}, v{TA+1}
    s_cmp_eq_u32 s{sC}, 11
    s_cbranch_scc0 k2_fnosw
    s_mov_b32 s{sWo}, 0x7f000000
    s_mov_b32 s{sHo}, 0x7f000000
    """)
    a.lab("k2_fnosw")
    a("s_waitcnt lgkmcnt(0)")
    dma_tile()
    for kk in range(2):
        for mi in range(2):
            for ni in range(2):
                acc = ACC + 16*(2*mi+ni)
                a(f"{MFMA} {vr(acc,16)}, {vr(WF+8*ni+4*kk,4)}, {vr(HB+8*mi+4*kk,4)}, {vr(acc,16)}")
    a(f"""
    s_add_u32 s{sC}, s{sC}, 1
    s_cmp_lt_u32 s{sC}, 14
    s_cbranch_scc1 k2_floop
    s_waitcnt vmcnt(0)
    """)
    a(f"""
    s_mul_i32 s{sWo}, s{sW}, {4*28*896}
    s_lshl_b32 s3, s{sCb}, 7
    s_add_u32 s{sWo}, s{sWo}, s3
    s_mov_b32 s{sM0}, s{sT3}
    """)
    for hl in range(4):
        a(f"s_mov_b32 m0, s{sM0}")
        a(f"s_add_u32 s{sM0}, s{sM0}, 4096")
        for i in range(4):
            a(f"buffer_load_dwordx4 v{VD+i}, {sr(SWO,4)}, s{sWo} offen offset:{1024*i} lds")
        a(f"s_add_u32 s{sWo}, s{sWo}, {28*896}")
    a(f"""
    v_sub_f32 v4, 1.0, v1
    v_sub_f32 v6, 1.0, v13
    """)
    a(f"""
    v_subrev_u32 v{TA}, 16384, v{TA}
    v_subrev_u32 v{TA+1}, 16384, v{TA+1}
    s_nop 7
    """)
    for mi in range(2):
        for r in range(0, 32, 2):
            a(f"v_pk_mul_f32 {vr(ACC+32*mi+r,2)}, {vr(ACC+32*mi+r,2)}, v[{4+2*mi}:{5+2*mi}] op_sel_hi:[1,0]")
    a("s_waitcnt vmcnt(0)")
    for hl in range(4):
        treads(lambda ni,kk: WOF+16*hl+8*kk+4*ni, 4096*hl)
        a("s_waitcnt lgkmcnt(4)")
    a(f"""
    s_waitcnt lgkmcnt(0)
    s_barrier
    s_barrier
    v_mov_b32 v4, {LFLAG}
    ds_read_b32 v6, v4
    s_waitcnt lgkmcnt(0)
    v_readfirstlane_b32 s3, v6
    s_cmp_eq_u32 s3, 0
    s_cbranch_scc1 k2_fpoll0
    s_barrier
    s_barrier
    s_barrier
    s_barrier
    """)
    a.lab("k2_fpoll0")
    a(f"""
    s_lshr_b32 s3, s{sRb}, 1
    s_lshl_b32 s3, s3, 8
    s_lshl_b32 s4, s{sW}, 4
    s_add_u32 s3, s3, s4
    s_add_u32 s{sT0}, s3, {G.WS_FL}
    v_mov_b32 v4, 0
    s_mov_b32 s{sC}, 0
    s_lshl_b32 s3, s{sRb}, 5
    s_lshl_b32 s4, s{sW}, 2
    s_add_u32 s3, s3, s4
    s_lshl_b32 s3, s3, 11
    s_add_u32 s{sT1}, s3, {G.WS_OF}
    s_add_u32 s{sT2}, s{sT1}, 32768
    """)
    a.lab("k2_fpoll")
    a(f"""
    buffer_load_dwordx4 v[8:11], v4, {sr(SWS,4)}, s{sT0} offen sc1
    s_add_u32 s{sC}, s{sC}, 1
    s_waitcnt vmcnt(0)
    v_and_b32 v8, v8, v9
    v_and_b32 v10, v10, v11
    v_and_b32 v8, v8, v10
    s_cmp_gt_u32 s{sC}, 0x40000
    s_cbranch_scc1 k2_fgo
    v_readfirstlane_b32 s3, v8
    s_cmp_eq_u32 s3, 1
    s_cbranch_scc1 k2_fgo
    s_sleep 1
    s_branch k2_fpoll
    """)
    a.lab("k2_fgo")
    for hl in range(4):
        if hl == 2:
            a(f"s_add_u32 s{sT1}, s{sT1}, 4096")
            a(f"s_add_u32 s{sT2}, s{sT2}, 4096")
        for kk in range(2):
            for mi in range(2):
                so = sT1 if mi == 0 else sT2
                a(f"buffer_load_dwordx4 {vr(OFR+16*hl+8*kk+4*mi,4)}, v7, {sr(SWS,4)}, s{so} offen offset:{2048*(hl&1)+1024*kk} sc1")
    n = 16
    for hl in range(4):
        for kk in range(2):
            n -= 2
            a(f"s_waitcnt vmcnt({n})")
            for mi in range(2):
                for ni in range(2):
                    acc = ACC + 16*(2*mi+ni)
                    a(f"{MFMA} {vr(acc,16)}, {vr(WOF+16*hl+8*kk+4*ni,4)}, {vr(OFR+16*hl+8*kk+4*mi,4)}, {vr(acc,16)}")
    a(f"""
    v_add_u32 v4, s{sT3}, v7
    s_lshl_b32 s3, s{sW}, 12
    v_add_u32 v5, s3, v7
    s_nop 7
    """)
    RR = 80
    for wv in range(4):
        a(f"s_cmp_lg_u32 s{sW}, {wv}")
        a(f"s_cbranch_scc1 k2_red{wv}_skip")
        for t in range(4):
            if t == wv: continue
            for r4 in range(4):
                a(f"ds_write_b128 v4, {vr(ACC+16*t+4*r4,4)} offset:{4096*t+1024*r4}")
        for r in range(16):
            a(f"v_mov_b32 v{128+r}, v{ACC+16*wv+r}")
        a.lab(f"k2_red{wv}_skip")
    a(f"""
    s_waitcnt lgkmcnt(0)
    s_barrier
    """)
    for i in range(3):
        a(f"""
        s_add_u32 s3, s{sW}, {1+i}
        s_and_b32 s3, s3, 3
        s_mul_i32 s3, s3, {RING}
        v_add_u32 v6, s3, v5
        """)
        for r4 in range(4):
            a(f"ds_read_b128 {vr(RR+16*i+4*r4,4)}, v6 offset:{1024*r4}")
    a(f"""
    s_lshr_b32 s3, s{sW}, 1
    s_lshl_b32 s3, s3, 5
    s_lshl_b32 s4, s{sRb}, 6
    s_add_u32 s3, s3, s4
    s_mul_i32 s3, s3, 896
    s_lshl_b32 s4, s{sCb}, 7
    s_add_u32 s3, s3, s4
    s_and_b32 s4, s{sW}, 1
    s_lshl_b32 s4, s4, 6
    s_add_u32 s{sT0}, s3, s4
    v_mul_u32_u24 v4, 896, v2
    v_lshrrev_b32 v6, 5, v0
    v_lshl_add_u32 v4, v6, 4, v4
    """)
    for i in range(3):
        a(f"s_waitcnt lgkmcnt({8-4*i})")
        for p in range(8):
            a(f"v_pk_add_f32 {vr(128+2*p,2)}, {vr(128+2*p,2)}, {vr(RR+16*i+2*p,2)}")
    for p in range(8):
        a(f"v_cvt_pk_bf16_f32 v{16+p}, v{128+2*p}, v{128+2*p+1}")
    a(f"""
    s_nop 1
    v_permlane32_swap_b32 v16, v18
    v_permlane32_swap_b32 v17, v19
    v_permlane32_swap_b32 v20, v22
    v_permlane32_swap_b32 v21, v23
    buffer_store_dwordx4 v[16:19], v4, {sr(SOUT,4)}, s{sT0} offen
    buffer_store_dwordx4 v[20:23], v4, {sr(SOUT,4)}, s{sT0} offen offset:32
    """)
    a.lab("k2_end")
    a("s_endpgm")
    return [(name, 240, 96, LDS_BYTES)]
```

```python
import math, struct, sys

def f2u(x):
    return struct.unpack("<I", struct.pack("<f", x))[0]

S, D, H, DH, F = 2048, 448, 16, 28, 1792
WS_QF = 0
WS_KV = 2 << 20
WS_HF = 6 << 20
WS_OF = 14 << 20
WS_G  = 16 << 20
WS_FL = (16 << 20) + 65536
WS_SIZE = (16 << 20) + 131072

LOG2E = 1.4426950408889634
QSCALE = (DH ** -0.5) * LOG2E

class A:
    def __init__(self):
        self.l = []
    def __call__(self, s):
        for x in s.strip("\n").split("\n"):
            self.l.append("  " + x.strip() if x.strip() and not x.strip().endswith(":") else x.strip())
    def lab(self, s):
        self.l.append(s + ":")
    def text(self):
        return "\n".join(self.l) + "\n"

def vr(b, n):
    return f"v[{b}:{b+n-1}]" if n > 1 else f"v{b}"
def sr(b, n):
    return f"s[{b}:{b+n-1}]" if n > 1 else f"s{b}"

MFMA = "v_mfma_f32_32x32x16_bf16"

def srd(a, d, base, nbytes):
    a(f"s_mov_b32 s{d}, s{base}")
    a(f"s_mov_b32 s{d+1}, s{base+1}")
    a(f"s_mov_b32 s{d+2}, {nbytes}")
    a(f"s_mov_b32 s{d+3}, 0x00020000")

def header(a, name):
    a.l.append(f".globl {name}")
    a.l.append(".p2align 8")
    a.l.append(f".type {name},@function")
    a.lab(name)

def gen_k1(a):
    name = "k1_kernel"
    header(a, name)
    XBASE = 49152
    P = 16
    SX, SW1, SWQ, SWS, SG = 36, 40, 44, 48, 52
    sMB, sJ, sW, sT0, sT1, sC, sSlot, sDelta = 56, 57, 58, 59, 60, 61, 62, 63
    sXo, sWo, sM0x, sM0w = 64, 65, 66, 67
    sK0, sK1, sK2 = 68, 70, 72
    sEx = 74
    a(f"""
    s_cmp_ge_u32 s2, 256
    s_cbranch_scc1 k1_end
    s_load_dwordx16 s[16:31], s[0:1], 0
    s_load_dwordx4 s[32:35], s[0:1], 64
    v_lshrrev_b32 v1, 6, v0
    v_and_b32 v0, 63, v0
    s_and_b32 s{sT0}, s2, 7
    s_lshr_b32 s{sT1}, s2, 3
    v_readfirstlane_b32 s{sW}, v1
    s_and_b32 s{sMB}, s{sT0}, 1
    s_lshl_b32 s{sMB}, s{sMB}, 3
    s_and_b32 s3, s{sT1}, 7
    s_add_u32 s{sMB}, s{sMB}, s3
    s_lshr_b32 s{sJ}, s{sT0}, 1
    s_lshl_b32 s{sJ}, s{sJ}, 2
    s_lshr_b32 s3, s{sT1}, 3
    s_add_u32 s{sJ}, s{sJ}, s3
    s_waitcnt lgkmcnt(0)
    """)
    srd(a, SX, 16, S*D*2)
    srd(a, SWQ, 18, D*3*D*2)
    srd(a, SW1, 24, D*F*2)
    srd(a, SG, 28, D*2)
    srd(a, SWS, 34, WS_SIZE)
    a(f"""
    s_cmp_lt_u32 s{sJ}, 14
    s_cselect_b32 s{SW1+2}, {D*F*2}, 0
    s_movk_i32 s78, 0x4000
    """)
    a(f"""
    v_and_b32 v2, 31, v0
    v_lshrrev_b32 v3, 5, v0
    v_bfe_u32 v4, v0, 2, 2
    v_bfe_u32 v5, v0, 4, 1
    v_and_b32 v6, 3, v0
    v_lshlrev_b32 v7, 4, v0
    """)
    XA = 8
    a(f"v_bfe_u32 v12, v0, 1, 3")
    a(f"v_lshlrev_b32 v13, 7, v2")
    for kk in range(4):
        a(f"v_add_u32 v14, {2*kk}, v3")
        a(f"v_xor_b32 v14, v14, v12")
        a(f"v_lshl_add_u32 v{XA+kk}, v14, 4, v13")
    a(f"""
    s_cmp_ge_u32 s{sW}, 4
    s_cbranch_scc1 k1_qwave
    """)
    WA = 12
    FB = [16, 32]
    AF = 48
    a(f"""
    s_lshr_b32 s{sT0}, s{sW}, 1
    s_and_b32 s{sT1}, s{sW}, 1
    s_cmp_ge_u32 s{sJ}, 14
    s_cbranch_scc1 k1_gate
    s_lshl_b32 s3, s{sT0}, 13
    s_add_u32 s3, s3, {XBASE}
    """)
    for kk in range(4):
        a(f"v_add_u32 v{XA+kk}, s3, v{XA+kk}")
    a(f"""
    v_lshl_add_u32 v14, v3, 3, v4
    v_lshlrev_b32 v14, 8, v14
    v_lshl_add_u32 v14, v5, 5, v14
    v_lshl_add_u32 v14, v6, 3, v14
    s_lshl_b32 s3, s{sT1}, 1
    v_xor_b32 v15, s3, v4
    v_lshl_add_u32 v{WA}, v15, 6, v14
    v_xor_b32 v15, 1, v15
    v_lshl_add_u32 v{WA+1}, v15, 6, v14
    """)
    for i in range(64):
        a(f"v_mov_b32 v{AF+i}, 0")
    def freads(buf, kk):
        b = FB[buf]
        a(f"ds_read_b128 {vr(b,4)}, v{XA+kk}")
        a(f"ds_read_b128 {vr(b+4,4)}, v{XA+kk} offset:4096")
        for ni in range(2):
            for u in range(2):
                a(f"ds_read_b64_tr_b16 {vr(b+8+4*ni+2*u,2)}, v{WA+ni} offset:{(16*kk+4*u)*256}")
        a(f"v_add_u32 v{XA+kk}, 0x4000, v{XA+kk}")
    def fmfma(buf):
        b = FB[buf]
        for mi in range(2):
            for ni in range(2):
                acc = AF + 16*(2*mi+ni)
                a(f"{MFMA} {vr(acc,16)}, {vr(b+8+4*ni,4)}, {vr(b+4*mi,4)}, {vr(acc,16)}")
    a(f"""
    s_mov_b32 s{sC}, 0
    s_mov_b32 s{sSlot}, 0
    s_barrier
    """)
    freads(0, 0)
    a.lab("k1_floop")
    freads(1, 1); a("s_waitcnt lgkmcnt(6)"); fmfma(0)
    freads(0, 2); a("s_waitcnt lgkmcnt(6)"); fmfma(1)
    freads(1, 3)
    a(f"""
    s_add_u32 s{sSlot}, s{sSlot}, 1
    s_cmp_eq_u32 s{sSlot}, 3
    s_cselect_b32 s{sDelta}, -32768, s78
    s_cselect_b32 s{sSlot}, 0, s{sSlot}
    v_add_u32 v{WA}, s{sDelta}, v{WA}
    v_add_u32 v{WA+1}, s{sDelta}, v{WA+1}
    s_waitcnt lgkmcnt(6)
    """)
    fmfma(0)
    a(f"""
    s_add_u32 s{sC}, s{sC}, 1
    s_cmp_eq_u32 s{sC}, 7
    s_waitcnt lgkmcnt(0)
    s_barrier
    s_cbranch_scc1 k1_ftail
    """)
    freads(0, 0)
    fmfma(1)
    a("s_branch k1_floop")
    a.lab("k1_ftail")
    fmfma(1)
    a(f"""
    s_mov_b32 s{sK0}, {f2u(-LOG2E):#x}
    s_mov_b32 s{sK0+1}, {f2u(-LOG2E):#x}
    s_mov_b32 s{sK1}, 1.0
    s_mov_b32 s{sK1+1}, 1.0
    s_lshl_b32 s3, s{sMB}, 2
    s_lshl_b32 s4, s{sT0}, 1
    s_add_u32 s3, s3, s4
    s_mul_i32 s3, s3, 56
    s_lshl_b32 s4, s{sJ}, 2
    s_add_u32 s3, s3, s4
    s_lshl_b32 s4, s{sT1}, 1
    s_add_u32 s3, s3, s4
    s_lshl_b32 s3, s3, 11
    s_add_u32 s{sXo}, s3, {WS_HF}
    s_add_u32 s{sWo}, s{sXo}, {56*2048}
    s_nop 7
    """)
    T = 16
    nbar = 0
    pair_idx = 0
    for mi in range(2):
        for ni in range(2):
            acc = AF + 16*(2*mi+ni)
            HP = 32 + 8*((2*mi+ni) & 1)
            for g in range(2):
                prs = [4*g+i for i in range(4)]
                for i, p in enumerate(prs):
                    a(f"v_pk_mul_f32 {vr(T+2*i,2)}, {vr(acc+2*p,2)}, {sr(sK0,2)}")
                for i in range(8):
                    a(f"v_exp_f32 v{T+i}, v{T+i}")
                for i in range(4):
                    a(f"v_pk_add_f32 {vr(T+2*i,2)}, {vr(T+2*i,2)}, {sr(sK1,2)}")
                for i in range(8):
                    a(f"v_rcp_f32 v{T+i}, v{T+i}")
                for i, p in enumerate(prs):
                    a(f"v_pk_mul_f32 {vr(T+2*i,2)}, {vr(acc+2*p,2)}, {vr(T+2*i,2)}")
                for i, p in enumerate(prs):
                    a(f"v_cvt_pk_bf16_f32 v{HP+p}, v{T+2*i}, v{T+2*i+1}")
                so = sXo if mi == 0 else sWo
                a(f"buffer_store_dwordx4 {vr(HP+4*g,4)}, v7, {sr(SWS,4)}, s{so} offen offset:{ni*2048+g*1024}")
                if nbar < 6:
                    a("s_barrier"); nbar += 1
    assert nbar == 6
    a("s_endpgm")
    a.lab("k1_gate")
    GF = 16
    AG = 128
    XG = 144
    a(f"""
    s_cmp_eq_u32 s{sJ}, 15
    s_cbranch_scc1 k1_flagclr
    s_lshl_b32 s3, s{sW}, 12
    s_add_u32 s3, s3, {XBASE}
    v_lshlrev_b32 v12, 4, v3
    """)
    for kk in range(4):
        a(f"v_add_u32 v{XA+kk}, s3, v{XA+kk}")
    for ks in range(28):
        a(f"buffer_load_dwordx4 {vr(GF+4*ks,4)}, v12, {sr(SG,4)}, 0 offen offset:{ks*32}")
    for i in range(16):
        a(f"v_mov_b32 v{AG+i}, 0")
    a("s_waitcnt vmcnt(0)")
    for c in range(7):
        a("s_barrier")
        for kk in range(4):
            a(f"ds_read_b128 {vr(XG+4*kk,4)}, v{XA+kk}")
            a(f"v_add_u32 v{XA+kk}, 0x4000, v{XA+kk}")
        for kk in range(4):
            a(f"s_waitcnt lgkmcnt({3-kk})")
            a(f"{MFMA} {vr(AG,16)}, {vr(GF+4*(4*c+kk),4)}, {vr(XG+4*kk,4)}, {vr(AG,16)}")
    a(f"""
    s_barrier
    s_lshl_b32 s3, s{sMB}, 9
    s_lshl_b32 s4, s{sW}, 7
    s_add_u32 s3, s3, s4
    s_add_u32 s3, s3, {WS_G}
    v_lshlrev_b32 v13, 2, v2
    s_nop 15
    v_mul_f32 v14, {f2u(-LOG2E):#x}, v{AG}
    v_exp_f32 v14, v14
    s_nop 0
    v_add_f32 v14, 1.0, v14
    v_rcp_f32 v14, v14
    s_nop 0
    buffer_store_dword v14, v13, {sr(SWS,4)}, s3 offen
    """)
    for i in range(6):
        a("s_barrier")
    a("s_endpgm")
    a.lab("k1_flagclr")
    a(f"""
    s_lshl_b32 s3, s{sMB}, 8
    s_add_u32 s3, s3, {WS_FL}
    v_lshlrev_b32 v13, 2, v0
    v_mov_b32 v14, 0
    buffer_store_dword v14, v13, {sr(SWS,4)}, s3 offen
    s_endpgm
    """)
    a.lab("k1_qwave")
    VXO, VWO, VQO = 16, 20, 24
    WB = 12
    QB = [32, 48]
    AQ, AK, AV = 64, 80, 96
    a(f"s_sub_u32 s{sW}, s{sW}, 4")
    a(f"""
    v_lshrrev_b32 v13, 3, v0
    v_mul_u32_u24 v13, 896, v13
    v_lshrrev_b32 v14, 4, v0
    v_and_b32 v15, 7, v0
    v_xor_b32 v14, v14, v15
    v_lshl_add_u32 v{VXO}, v14, 4, v13
    v_xor_b32 v14, 4, v14
    v_lshl_add_u32 v{VXO+1}, v14, 4, v13
    v_add_u32 v{VXO+2}, {2*6144}, v{VXO}
    v_add_u32 v{VXO+3}, {3*6144}, v{VXO+1}
    v_add_u32 v{VXO+1}, {6144}, v{VXO+1}
    """)
    a(f"""
    v_lshrrev_b32 v13, 4, v0
    v_xor_b32 v14, v13, v4
    v_mul_u32_u24 v13, 3584, v13
    v_lshl_add_u32 v13, v14, 6, v13
    v_lshl_add_u32 v{VWO}, v6, 4, v13
    """)
    for i in range(1, 4):
        a(f"v_add_u32 v{VWO+i}, {i*(4*3584-1024)}, v{VWO}")
    a(f"s_mul_i32 s3, s{sJ}, 56")
    for i in range(3):
        a(f"""
        v_add_u32 v13, {64*i}, v0
        v_mul_u32_u24 v14, 43691, v13
        v_lshrrev_b32 v14, 19, v14
        v_mul_u32_u24 v15, 12, v14
        v_sub_u32 v13, v13, v15
        v_mul_u32_u24 v14, 2688, v14
        v_lshrrev_b32 v15, 2, v13
        v_mul_u32_u24 v15, 896, v15
        v_add_u32 v14, v14, v15
        v_and_b32 v13, 3, v13
        v_lshl_add_u32 v14, v13, 4, v14
        v_add_u32 v14, s3, v14
        v_subrev_u32 v{VQO+i}, {1024*i}, v14
        """)
    a(f"""
    s_lshl_b32 s3, s{sMB}, 7
    s_lshl_b32 s4, s{sW}, 5
    s_add_u32 s3, s3, s4
    s_mul_i32 s{sXo}, s3, 896
    s_lshl_b32 s3, s{sW}, 4
    s_mul_i32 s{sWo}, s3, 3584
    s_lshl_b32 s4, s{sJ}, 8
    s_add_u32 s{sWo}, s{sWo}, s4
    s_lshl_b32 s{sM0w}, s{sW}, 12
    s_add_u32 s{sM0x}, s{sM0w}, {XBASE}
    s_mov_b32 s{sSlot}, 0
    """)
    def rot_slot():
        a(f"""
        s_add_u32 s{sSlot}, s{sSlot}, 1
        s_cmp_eq_u32 s{sSlot}, 3
        s_cselect_b32 s{sDelta}, -32768, s78
        s_cselect_b32 s{sSlot}, 0, s{sSlot}
        s_add_u32 s{sM0w}, s{sM0w}, s{sDelta}
        """)
    def batchA():
        a(f"s_mov_b32 m0, s{sM0x}")
        a(f"s_add_u32 s{sM0x}, s{sM0x}, 16384")
        for i in range(4):
            a(f"buffer_load_dwordx4 v{VXO+i}, {sr(SX,4)}, s{sXo} offen offset:{1024*i} lds")
        a(f"s_mov_b32 m0, s{sM0w}")
        a(f"s_add_u32 s{sXo}, s{sXo}, 128")
        for i in range(4):
            a(f"buffer_load_dwordx4 v{VWO+i}, {sr(SW1,4)}, s{sWo} offen offset:{1024*i} lds")
        a(f"s_add_u32 s{sWo}, s{sWo}, {64*3584}")
        rot_slot()
    def batchB():
        a(f"s_mov_b32 m0, s{sM0w}")
        a("s_nop 0")
        for i in range(3):
            a(f"buffer_load_dwordx4 v{VQO+i}, {sr(SWQ,4)}, s{sWo} offen offset:{1024*i} lds")
        a(f"s_add_u32 s{sWo}, s{sWo}, {64*2688}")
        rot_slot()
    batchA(); batchA(); batchA()
    a(f"""
    s_lshl_b32 s3, s{sW}, 12
    s_add_u32 s3, s3, {XBASE}
    """)
    for kk in range(4):
        a(f"v_add_u32 v{XA+kk}, s3, v{XA+kk}")
    a(f"""
    v_lshl_add_u32 v14, v3, 3, v4
    v_mul_u32_u24 v14, 192, v14
    v_lshl_add_u32 v14, v5, 5, v14
    v_lshl_add_u32 v14, v6, 3, v14
    v_add_u32 v{WB}, 16384, v14
    """)
    for i in range(48):
        a(f"v_mov_b32 v{AQ+i}, 0")
    a("s_waitcnt vmcnt(16)")
    a("s_barrier")
    a(f"s_mov_b32 s{sC}, 0")
    a.lab("k1_hloop")
    a("s_waitcnt vmcnt(8)")
    a("s_barrier")
    batchA()
    a(f"""
    s_add_u32 s{sC}, s{sC}, 1
    s_cmp_lt_u32 s{sC}, 4
    s_cbranch_scc1 k1_hloop
    """)
    a(f"""
    s_mul_i32 s3, s{sW}, 1024
    s_sub_u32 s{sM0w}, s{sM0w}, s3
    s_mul_i32 s{sWo}, s{sW}, {16*2688}
    """)
    a("s_waitcnt vmcnt(8)"); a("s_barrier"); batchB()
    a("s_waitcnt vmcnt(3)"); a("s_barrier"); batchB()
    a("s_waitcnt vmcnt(3)"); a("s_barrier"); batchB()
    def qreads(buf, kk):
        b = QB[buf]
        a(f"ds_read_b128 {vr(b,4)}, v{XA+kk}")
        for t in range(3):
            for u in range(2):
                a(f"ds_read_b64_tr_b16 {vr(b+4+4*t+2*u,2)}, v{WB} offset:{(16*kk+4*u)*192+t*64}")
        a(f"v_add_u32 v{XA+kk}, 0x4000, v{XA+kk}")
    def qmfma(buf):
        b = QB[buf]
        a(f"{MFMA} {vr(AQ,16)}, {vr(b+4,4)}, {vr(b,4)}, {vr(AQ,16)}")
        a(f"{MFMA} {vr(AK,16)}, {vr(b+8,4)}, {vr(b,4)}, {vr(AK,16)}")
        a(f"{MFMA} {vr(AV,16)}, {vr(b,4)}, {vr(b+12,4)}, {vr(AV,16)}")
    sRS, sRD = 76, 77
    a(f"s_mov_b32 s{sRS}, 1")
    a(f"s_mov_b32 s{sC}, 7")
    qreads(0, 0)
    a.lab("k1_qloop")
    qreads(1, 1); a("s_waitcnt lgkmcnt(7)"); qmfma(0)
    qreads(0, 2); a("s_waitcnt lgkmcnt(7)"); qmfma(1)
    qreads(1, 3)
    a(f"""
    s_add_u32 s{sRS}, s{sRS}, 1
    s_cmp_eq_u32 s{sRS}, 3
    s_cselect_b32 s{sRD}, -32768, s78
    s_cselect_b32 s{sRS}, 0, s{sRS}
    v_add_u32 v{WB}, s{sRD}, v{WB}
    s_waitcnt lgkmcnt(7)
    """)
    qmfma(0)
    a(f"""
    s_cmp_eq_u32 s{sC}, 13
    s_cbranch_scc1 k1_qtail
    s_add_u32 s{sC}, s{sC}, 1
    s_waitcnt vmcnt(3) lgkmcnt(0)
    s_barrier
    """)
    qreads(0, 0)
    qmfma(1)
    batchB()
    a("s_branch k1_qloop")
    a.lab("k1_qtail")
    a("s_waitcnt lgkmcnt(0)")
    qmfma(1)
    QP, KP, VP = 32, 40, 48
    SD = 112
    a(f"""
    s_mov_b32 s{sK0}, {f2u(QSCALE):#x}
    s_mov_b32 s{sK0+1}, {f2u(QSCALE):#x}
    s_lshl_b32 s3, s{sJ}, 6
    s_lshl_b32 s4, s{sMB}, 2
    s_add_u32 s3, s3, s4
    s_add_u32 s3, s3, s{sW}
    s_lshl_b32 s{sXo}, s3, 11
    s_add_u32 s{sXo}, s{sXo}, {WS_QF}
    s_lshl_b32 s{sWo}, s3, 12
    s_add_u32 s{sWo}, s{sWo}, {WS_KV}
    v_mov_b32 v13, 0x3f803f80
    v_cmp_eq_u32 vcc, 28, v2
    s_nop 1
    v_cndmask_b32 v13, 0, v13, vcc
    s_mov_b32 s{sK2}, 0x07060302
    s_nop 3
    """)
    for p in range(8):
        a(f"v_pk_mul_f32 {vr(AQ+2*p,2)}, {vr(AQ+2*p,2)}, {sr(sK0,2)}")
    for p in range(8):
        a(f"v_cvt_pk_bf16_f32 v{KP+p}, v{AK+2*p}, v{AK+2*p+1}")
    for p in range(8):
        a(f"v_cvt_pk_bf16_f32 v{QP+p}, v{AQ+2*p}, v{AQ+2*p+1}")
    a(f"""
    s_mov_b32 exec_lo, 0
    v_mov_b32 v{KP+6}, 0x3f803f80
    v_mov_b32 v{KP+7}, 0x3f80
    v_mov_b32 v{QP+6}, 0
    v_mov_b32 v{QP+7}, 0
    s_mov_b64 exec, -1
    s_nop 1
    {MFMA} {vr(SD,16)}, {vr(KP,4)}, {vr(QP,4)}, 0
    {MFMA} {vr(SD,16)}, {vr(KP+4,4)}, {vr(QP+4,4)}, {vr(SD,16)}
    buffer_store_dwordx4 {vr(KP,4)}, v7, {sr(SWS,4)}, s{sWo} offen
    buffer_store_dwordx4 {vr(KP+4,4)}, v7, {sr(SWS,4)}, s{sWo} offen offset:1024
    buffer_store_dwordx4 {vr(QP,4)}, v7, {sr(SWS,4)}, s{sXo} offen
    """)
    for p in range(8):
        a(f"v_cvt_pk_bf16_f32 v{VP+p}, v{AV+2*p}, v{AV+2*p+1}")
    a(f"""
    s_mov_b32 exec_lo, 0xf0000000
    s_mov_b32 exec_hi, 0xf0000000
    """)
    for p in range(8):
        a(f"v_mov_b32 v{VP+p}, v13")
    a(f"""
    s_mov_b64 exec, -1
    buffer_store_dwordx4 {vr(VP,4)}, v7, {sr(SWS,4)}, s{sWo} offen offset:2048
    buffer_store_dwordx4 {vr(VP+4,4)}, v7, {sr(SWS,4)}, s{sWo} offen offset:3072
    v_max3_f32 v14, v{SD}, v{SD+1}, v{SD+2}
    v_max3_f32 v15, v{SD+3}, v{SD+4}, v{SD+5}
    v_max3_f32 v14, v14, v{SD+6}, v{SD+7}
    v_max3_f32 v15, v15, v{SD+8}, v{SD+9}
    v_max3_f32 v14, v14, v{SD+10}, v{SD+11}
    v_max3_f32 v15, v15, v{SD+12}, v{SD+13}
    v_max3_f32 v14, v14, v{SD+14}, v{SD+15}
    v_max_f32 v14, v14, v15
    v_mov_b32 v15, v14
    s_nop 1
    v_permlane32_swap_b32 v14, v15
    v_max_f32 v14, v14, v15
    v_sub_f32 v14, 0, v14
    v_and_b32 v15, 0xffff0000, v14
    v_sub_f32 v15, v14, v15
    v_and_b32 v12, 0xffff0000, v15
    v_sub_f32 v12, v15, v12
    s_mov_b32 exec_lo, 0
    v_perm_b32 v{QP+6}, v15, v14, s{sK2}
    v_lshrrev_b32 v{QP+7}, 16, v12
    s_mov_b64 exec, -1
    buffer_store_dwordx4 {vr(QP+4,4)}, v7, {sr(SWS,4)}, s{sXo} offen offset:1024
    """)
    a.lab("k1_end")
    a("s_endpgm")
    return name, 160, 96

def descriptor(name, vgpr, sgpr):
    return f""".p2align 6
.amdhsa_kernel {name}
  .amdhsa_next_free_vgpr {vgpr}
  .amdhsa_next_free_sgpr {sgpr}
  .amdhsa_accum_offset {(vgpr+3)//4*4}
  .amdhsa_group_segment_fixed_size 0
  .amdhsa_kernarg_size 80
  .amdhsa_user_sgpr_count 2
  .amdhsa_user_sgpr_kernarg_segment_ptr 1
  .amdhsa_system_sgpr_workgroup_id_x 1
.end_amdhsa_kernel
"""

def main(out):
    launches = []
    a = A()
    descs = []
    n, v, s = gen_k1(a); descs.append(descriptor(n, v, s))
    launches.append(f"; @launch kernel={n} grid=(256,1,1) block=(512,1,1) lds=163840")
    try:
        import gen2
        for (n, v, s, lds) in gen2.gen(a, sys.modules[__name__]):
            descs.append(descriptor(n, v, s))
            launches.append(f"; @launch kernel={n} grid=(256,1,1) block=(512,1,1) lds={lds}")
    except ImportError:
        pass
    txt = "; gated_mix: MHA(softmax) + SiLU FFN gated mix. Generated by work/gen.py\n"
    txt += "\n".join(launches) + "\n"
    txt += '.amdgcn_target "amdgcn-amd-amdhsa--gfx950"\n.text\n'
    txt += a.text()
    txt += '.section .rodata,"a"\n' + "".join(descs)
    open(out, "w").write(txt)

if __name__ == "__main__":
    main(sys.argv[1] if len(sys.argv) > 1 else "k.s")
```

```python
import math, struct, sys, os

def f2u(x):
    return struct.unpack("<I", struct.pack("<f", x))[0]

S, D, H, DH, F = 2048, 448, 16, 28, 1792
WS_QF = 0
WS_KV = 2 << 20
WS_HF = 6 << 20
WS_OF = 14 << 20
WS_G  = 16 << 20
WS_FL = (16 << 20) + 65536
FL_KV = WS_FL
FL_H  = WS_FL + 8192
FL_O  = WS_FL + 16384
WS_SIZE = (16 << 20) + 131072
PROF = int(os.environ.get("PROF", "0"))
WS_PROF = WS_SIZE
if PROF:
    WS_SIZE = WS_PROF + 2*256*8*64
OPT = dict(NB=4, TOUCH=1, PRIO_A=0, PRIO_F=2)
for kv in os.environ.get("OPT", "").split(","):
    if "=" in kv:
        k, v = kv.split("="); OPT[k] = int(v)

LOG2E = 1.4426950408889634
QSCALE = (DH ** -0.5) * LOG2E
NAME = "gated_mix__softmax_full_mha__dense_activation_silu__prompt_kernel"

class A:
    def __init__(self):
        self.l = []
        self.n = 0
    def __call__(self, s):
        for x in s.strip("\n").split("\n"):
            x = x.strip()
            if not x: continue
            self.l.append(x if x.endswith(":") else "  " + x)
    def lab(self, s):
        self.l.append(s + ":")
    def uniq(self, p):
        self.n += 1
        return f"{p}_{self.n}"
    def text(self):
        return "\n".join(self.l) + "\n"

def vr(b, n): return f"v[{b}:{b+n-1}]" if n > 1 else f"v{b}"
def sr(b, n): return f"s[{b}:{b+n-1}]" if n > 1 else f"s{b}"
MFMA = "v_mfma_f32_32x32x16_bf16"

SX, SWQ, SWS, SW1, SW2, SWO, SOUT, SG, SDBG = 36, 40, 44, 48, 52, 56, 60, 64, 68
SKV = 48
sMB, sJ, sW, sX, sIdx, sC, sK, sT = 72, 73, 74, 75, 76, 77, 78, 79
sE = 12
XBASE = 49152
QSLOT = 12288
LCNT = 36864
C_F1, C_OC, C_BAD, C_A2, C_RED, C_FB1, C_FB2, C_Q = [LCNT + 4*i for i in range(8)]
RING0 = 40960
RING = 24576
OC3 = RING0 + 4*RING
LDS_BYTES = 163840

def srd(a, d, base, nbytes):
    a(f"s_mov_b32 s{d}, s{base}")
    a(f"s_mov_b32 s{d+1}, s{base+1}")
    a(f"s_mov_b32 s{d+2}, {nbytes}")
    a(f"s_mov_b32 s{d+3}, 0x00020000")

PV = OPT.get("PV", 0)
def stamp(a, i, cyc=False, pv=0):
    if PROF and (pv == PV or i == 0):
        assert 0 <= i < 11
        a(f"{'s_memtime' if cyc else 's_memrealtime'} s[{80+2*i}:{81+2*i}]")
def flush(a, wadd):
    if not PROF: return
    a("s_waitcnt lgkmcnt(0)")
    a(f"s_lshl_b32 s3, s2, 3")
    a(f"s_add_u32 s3, s3, s{sW}")
    a(f"s_add_u32 s3, s3, {wadd}")
    a(f"s_lshl_b32 s3, s3, 6")
    a(f"s_add_u32 s3, s3, {WS_PROF}")
    a("s_mov_b64 exec, 1")
    a("s_nop 4")
    for i in range(11):
        a(f"v_mov_b32 v{16+i}, s{80+2*i}")
    a("v_mov_b32 v27, 0")
    a("v_mov_b32 v28, 0")
    for i in range(3):
        a(f"buffer_store_dwordx4 v[{16+4*i}:{19+4*i}], v28, {sr(SWS,4)}, s3 offen offset:{16*i}")

def lds_add(a, cnt, vt0, vt1):
    a(f"""
    v_mov_b32 v{vt0}, {cnt}
    v_mov_b32 v{vt1}, 1
    s_mov_b64 exec, 1
    ds_add_u32 v{vt0}, v{vt1}
    s_mov_b64 exec, -1
    """)
def lds_wait(a, cnt, target, vt0, vt1, sleep=0):
    L = a.uniq("lw"); E = a.uniq("lwe")
    a(f"v_mov_b32 v{vt0}, {cnt}")
    a(f"s_mov_b32 s14, 0")
    a.lab(L)
    a(f"""
    ds_read_b32 v{vt1}, v{vt0}
    s_add_u32 s14, s14, 1
    s_waitcnt lgkmcnt(0)
    v_readfirstlane_b32 s15, v{vt1}
    s_cmp_gt_u32 s14, 0x200000
    s_cbranch_scc1 {E}
    s_cmp_ge_u32 s15, {target}
    s_cbranch_scc1 {E}
    {f"s_sleep {sleep}" if sleep else ""}
    s_branch {L}
    """)
    a.lab(E)

def nonce_issue(a, vt):
    a(f"v_mov_b32 v{vt}, 0")
    a(f"buffer_load_dwordx2 {vr(vt+2,2)}, v{vt}, {sr(SDBG,4)}, 0 offen sc1")
def nonce_get(a, vt):
    L = a.uniq("ng"); E = a.uniq("nge")
    a("s_mov_b32 s14, 0")
    a.lab(L)
    a(f"""
    s_waitcnt vmcnt(0)
    v_readfirstlane_b32 s{sE}, v{vt+2}
    v_readfirstlane_b32 s{sE+1}, v{vt+3}
    s_add_u32 s14, s14, 1
    s_cmp_gt_u32 s14, 0x40000
    s_cbranch_scc1 {E}
    s_cmp_lg_u32 s{sE}, 0
    s_cbranch_scc1 {E}
    buffer_load_dwordx2 {vr(vt+2,2)}, v{vt}, {sr(SDBG,4)}, 0 offen sc1
    s_branch {L}
    """)
    a.lab(E)
def publish(a, soff, vt):
    a(f"""
    v_mov_b32 v{vt}, s{sE}
    v_mov_b32 v{vt+1}, s{sE+1}
    v_mov_b32 v{vt+2}, 0
    s_mov_b64 exec, 1
    buffer_store_dwordx2 {vr(vt,2)}, v{vt+2}, {sr(SWS,4)}, s{soff} offen sc1
    s_mov_b64 exec, -1
    """)
def poll(a, nl, voff, soff, vt):
    L = a.uniq("pl"); E = a.uniq("ple")
    a(f"s_mov_b64 exec, {(1<<nl)-1:#x}")
    a("s_mov_b32 s14, 0")
    a.lab(L)
    a(f"""
    buffer_load_dwordx2 {vr(vt,2)}, v{voff}, {sr(SWS,4)}, s{soff} offen sc1
    s_add_u32 s14, s14, 1
    s_waitcnt vmcnt(0)
    v_cmp_eq_u64 vcc, {sr(sE,2)}, {vr(vt,2)}
    s_cmp_gt_u32 s14, 0x40000
    s_cbranch_scc1 {E}
    s_cmp_eq_u64 vcc, exec
    s_cbranch_scc1 {E}
    s_sleep {OPT.get("PSLEEP", 3)}
    s_branch {L}
    """)
    a.lab(E)
    a("s_mov_b64 exec, -1")

def gen(a):
    NB = OPT["NB"]
    a.l.append(f".globl {NAME}")
    a.l.append(".p2align 8")
    a.l.append(f".type {NAME},@function")
    a.lab(NAME)
    a(f"""
    s_cmp_ge_u32 s2, 256
    s_cbranch_scc1 k_end
    s_load_dwordx16 s[16:31], s[0:1], 0
    s_load_dwordx4 s[32:35], s[0:1], 64
    """)
    if PROF:
        for i in range(1, 11):
            a(f"s_mov_b64 s[{80+2*i}:{81+2*i}], 0")
        stamp(a, 0)
    VXO = 20
    XA = 8
    a(f"""
    v_lshrrev_b32 v1, 6, v0
    v_and_b32 v0, 63, v0
    s_and_b32 s{sX}, s2, 7
    s_lshr_b32 s{sIdx}, s2, 3
    v_readfirstlane_b32 s{sW}, v1
    s_and_b32 s{sMB}, s{sX}, 1
    s_lshl_b32 s{sMB}, s{sMB}, 3
    s_and_b32 s3, s{sIdx}, 7
    s_add_u32 s{sMB}, s{sMB}, s3
    s_lshr_b32 s{sJ}, s{sX}, 1
    s_lshl_b32 s{sJ}, s{sJ}, 2
    s_lshr_b32 s3, s{sIdx}, 3
    s_add_u32 s{sJ}, s{sJ}, s3
    v_lshrrev_b32 v14, 3, v0
    v_mul_u32_u24 v14, 896, v14
    v_lshrrev_b32 v15, 4, v0
    v_and_b32 v1, 7, v0
    v_xor_b32 v15, v15, v1
    v_lshl_add_u32 v{VXO}, v15, 4, v14
    v_xor_b32 v15, 4, v15
    v_lshl_add_u32 v{VXO+1}, v15, 4, v14
    v_add_u32 v{VXO+2}, {2*6144}, v{VXO}
    v_add_u32 v{VXO+3}, {3*6144}, v{VXO+1}
    v_add_u32 v{VXO+1}, 6144, v{VXO+1}
    s_and_b32 s4, s{sW}, 3
    s_lshl_b32 s3, s{sMB}, 7
    s_lshl_b32 s6, s4, 5
    s_add_u32 s3, s3, s6
    s_mul_i32 s5, s3, 896
    s_lshl_b32 s6, s4, 12
    s_add_u32 s6, s6, {XBASE}
    v_and_b32 v2, 31, v0
    v_lshrrev_b32 v3, 5, v0
    v_bfe_u32 v4, v0, 2, 2
    v_bfe_u32 v5, v0, 4, 1
    v_and_b32 v6, 3, v0
    v_lshlrev_b32 v7, 4, v0
    """)
    VQO = 16
    a(f"s_mul_i32 s3, s{sJ}, 56")
    a(f"s_and_b32 s3, s3, -16")
    for i in range(3):
        a(f"""
        v_add_u32 v1, {64*i}, v0
        v_mul_u32_u24 v14, 43691, v1
        v_lshrrev_b32 v14, 19, v14
        v_mul_u32_u24 v15, 12, v14
        v_sub_u32 v1, v1, v15
        v_mul_u32_u24 v14, 2688, v14
        v_lshrrev_b32 v15, 2, v1
        v_mul_u32_u24 v15, 896, v15
        v_add_u32 v14, v14, v15
        v_and_b32 v1, 3, v1
        v_lshl_add_u32 v14, v1, 4, v14
        v_add_u32 v14, s3, v14
        v_subrev_u32 v{VQO+i}, {1024*i}, v14
        """)
    a(f"""
    s_cmp_lt_u32 s{sW}, 4
    s_mov_b32 s{sW}, s4
    s_waitcnt lgkmcnt(0)
    s_cbranch_scc1 k_A
    """)
    srd(a, SX, 16, S*D*2)
    def xdma(c):
        a(f"s_mov_b32 m0, s6")
        a(f"s_add_u32 s6, s6, 16384")
        for i in range(4):
            a(f"buffer_load_dwordx4 v{VXO+i}, {sr(SX,4)}, s5 offen offset:{1024*i} lds")
        a(f"s_add_u32 s5, s5, 128")
    def xa_setup():
        a(f"v_bfe_u32 v14, v0, 1, 3")
        a(f"v_lshlrev_b32 v15, 7, v2")
        for kk in range(4):
            a(f"v_add_u32 v1, {2*kk}, v3")
            a(f"v_xor_b32 v1, v1, v14")
            a(f"v_lshl_add_u32 v{XA+kk}, v1, 4, v15")
    VQO = 16
    GF = 112; AG = 48; XG = 64
    xdma(0)
    a(f"""
    s_cmp_lg_u32 s{sJ}, 14
    s_cbranch_scc1 k_F_nog
    v_lshlrev_b32 v14, 4, v3
    """)
    srd(a, SG, 28, D*2)
    for ks in range(28):
        a(f"buffer_load_dwordx4 {vr(GF+4*ks,4)}, v14, {sr(SG,4)}, 0 offen offset:{ks*32}")
    a.lab("k_F_nog")
    srd(a, SWQ, 18, D*3*D*2)
    a(f"""
    s_mul_i32 s7, s{sW}, {16*2688}
    s_mul_i32 s8, s{sW}, 3072
    """)
    def qdma():
        a(f"s_mov_b32 m0, s8")
        a(f"s_add_u32 s8, s8, {QSLOT}")
        for i in range(3):
            a(f"buffer_load_dwordx4 v{VQO+i}, {sr(SWQ,4)}, s7 offen offset:{1024*i} lds")
        a(f"s_add_u32 s7, s7, {64*2688}")
    qdma()
    for c in range(1, 3):
        xdma(c); qdma()
    stamp(a, 1, pv=1)
    srd(a, SWS, 34, WS_SIZE)
    srd(a, SDBG, 32, 256)
    srd(a, SW1, 24, D*F*2)
    xa_setup()
    a(f"""
    s_cmp_eq_u32 s{sJ}, 14
    s_cbranch_scc1 k_gate
    """)
    NW1 = 12
    W1R = 176
    AF = 48
    XF = [112, 128, 144]
    WFr = [160, 164, 168]
    TW = 12; TR = 13
    for kk in range(4):
        a(f"v_add_u32 v{XA+kk}, {XBASE}, v{XA+kk}")
    a(f"""
    v_lshrrev_b32 v14, 2, v0
    v_mul_u32_u24 v14, 3584, v14
    v_lshl_add_u32 v14, v6, 4, v14
    s_lshl_b32 s9, s{sJ}, 2
    s_add_u32 s9, s9, s{sW}
    s_lshl_b32 s10, s9, 6
    s_cmp_lt_u32 s{sJ}, 14
    s_cselect_b32 s{SW1+2}, {D*F*2}, 0
    s_lshl_b32 s3, s{sW}, 12
    v_add_u32 v{TW}, s3, v7
    v_lshl_add_u32 v15, v3, 3, v4
    v_lshlrev_b32 v15, 6, v15
    v_lshl_add_u32 v15, v5, 5, v15
    v_lshl_add_u32 v15, v6, 3, v15
    v_add_u32 v{TR}, s3, v15
    """)
    for i in range(64):
        a(f"v_mov_b32 v{AF+i}, 0")
    def fstage_waits(extra):
        allow = [21, 16, 14, 12, 34, 31, 28]
        return allow
    def w1load(i):
        a(f"buffer_load_dwordx4 {vr(W1R+4*(i%NW1),4)}, v14, {sr(SW1,4)}, s10 offen")
        a(f"s_add_u32 s10, s10, {16*3584}")
    allow = [14, 14, 14, 14, 14, 7, 4]
    for c in range(7):
        a(f"s_waitcnt vmcnt({allow[c]})")
        a("s_barrier")
        if c == 0: stamp(a, 1)
        stamp(a, 2+c, pv=1)
        if c <= 3:
            xdma(c+3); qdma()
            if c == 0: a(f"s_sub_u32 s8, s8, {4*QSLOT}")
            if c == 1: stamp(a, 9, pv=1)
        if c >= 5:
            for i in {5: range(0, 4), 6: range(4, 8)}[c]:
                w1load(i)
        if c == 4:
            a(f"""
            v_lshlrev_b32 v1, 2, v0
            v_add_u32 v1, {LCNT}, v1
            v_mov_b32 v15, 0
            ds_write_b32 v1, v15
            s_waitcnt lgkmcnt(0)
            """)
    lds_wait(a, C_Q, 4, 1, 15, sleep=1)
    stamp(a, 2)
    stamp(a, 10, pv=1)
    a(f"s_setprio {OPT['PRIO_F']}")
    a(f"""
    s_cmp_eq_u32 s{sJ}, 15
    s_cbranch_scc1 k_f1_done
    """)
    def f_stage(i, issued):
        a(f"s_waitcnt vmcnt({issued-1-i})")
        a(f"ds_write_b128 v{TW}, {vr(W1R+4*(i%NW1),4)} offset:{1024*(i%4)}")
    def f_reads(i):
        b = XF[i % 3]; w = WFr[i % 3]
        c, kk = i // 4, i % 4
        for u in range(2):
            a(f"ds_read_b64_tr_b16 {vr(w+2*u,2)}, v{TR} offset:{1024*(i%4)+256*u}")
        if i == 16:
            for k2 in range(4):
                a(f"v_add_u32 v{XA+k2}, 0x10000, v{XA+k2}")
        for mt in range(4):
            a(f"ds_read_b128 {vr(b+4*mt,4)}, v{XA+kk} offset:{(c%4)*16384+4096*mt}")
    def f_mfma(i):
        b = XF[i % 3]; w = WFr[i % 3]
        for mt in range(4):
            a(f"{MFMA} {vr(AF+16*mt,16)}, {vr(w,4)}, {vr(b+4*mt,4)}, {vr(AF+16*mt,16)}")
    f_stage(0, 8); f_stage(1, 8); f_reads(0); f_stage(2, 8); f_reads(1)
    for t in range(28):
        n = 0
        if t + 8 < 28: w1load(t+8)
        if t + 3 < 28: f_stage(t+3, min(28, t+9))
        if t + 2 < 28: f_reads(t+2)
        for tt in (t-1, t):
            if tt >= 0 or True:
                if tt + 3 < 28 and tt >= 0: n += 1
                if tt + 2 < 28 and tt >= 0: n += 6
        if t == 0: n += 7
        a(f"s_waitcnt lgkmcnt({n})")
        f_mfma(t)
    stamp(a, 3)
    lds_add(a, C_F1, 12, 13)
    nonce_issue(a, 224)
    a(f"""
    s_mov_b32 s4, {f2u(-LOG2E):#x}
    s_mov_b32 s5, {f2u(-LOG2E):#x}
    s_mov_b32 s6, 1.0
    s_mov_b32 s7, 1.0
    s_lshl_b32 s3, s{sMB}, 2
    s_mul_i32 s3, s3, 56
    s_add_u32 s3, s3, s9
    s_lshl_b32 s3, s3, 11
    s_add_u32 s8, s3, {WS_HF}
    s_lshl_b32 s3, s{sMB}, 9
    s_lshl_b32 s10, s9, 3
    s_add_u32 s10, s10, s3
    s_add_u32 s10, s10, {FL_H}
    """)
    T = 16
    for mt in range(4):
        acc = AF + 16*mt
        HP = 32 + 8*(mt & 1)
        for g in range(2):
            prs = [4*g+i for i in range(4)]
            for i, p in enumerate(prs):
                a(f"v_pk_mul_f32 {vr(T+2*i,2)}, {vr(acc+2*p,2)}, s[4:5]")
            for i in range(8):
                a(f"v_exp_f32 v{T+i}, v{T+i}")
            for i in range(4):
                a(f"v_pk_add_f32 {vr(T+2*i,2)}, {vr(T+2*i,2)}, s[6:7]")
            for i in range(8):
                a(f"v_rcp_f32 v{T+i}, v{T+i}")
            for i, p in enumerate(prs):
                a(f"v_pk_mul_f32 {vr(T+2*i,2)}, {vr(acc+2*p,2)}, {vr(T+2*i,2)}")
            for i, p in enumerate(prs):
                a(f"v_cvt_pk_bf16_f32 v{HP+p}, v{T+2*i}, v{T+2*i+1}")
            a(f"buffer_store_dwordx4 {vr(HP+4*g,4)}, v7, {sr(SWS,4)}, s8 offen offset:{g*1024} sc1")
        a(f"s_add_u32 s8, s8, {56*2048}")
    stamp(a, 4)
    nonce_get(a, 224)
    publish(a, 10, 16)
    a("s_branch k_ffn2")
    a.lab("k_gate")
    a(f"""
    s_lshl_b32 s3, s{sW}, 12
    s_add_u32 s3, s3, {XBASE}
    """)
    for kk in range(4):
        a(f"v_add_u32 v{XA+kk}, s3, v{XA+kk}")
    for i in range(16):
        a(f"v_mov_b32 v{AG+i}, 0")
    gallow = [14, 14, 14, 14, 14, 7, 0]
    for c in range(7):
        a(f"s_waitcnt vmcnt({gallow[c]})")
        a("s_barrier")
        if c <= 3:
            xdma(c+3); qdma()
            if c == 0: a(f"s_sub_u32 s8, s8, {4*QSLOT}")
        if c == 6:
            nonce_issue(a, 224)
        for kk in range(4):
            a(f"ds_read_b128 {vr(XG+4*kk,4)}, v{XA+kk}")
            a(f"v_add_u32 v{XA+kk}, 0x4000, v{XA+kk}")
        if c == 4:
            a(f"""
            v_lshlrev_b32 v1, 2, v0
            v_add_u32 v1, {LCNT}, v1
            v_mov_b32 v15, 0
            ds_write_b32 v1, v15
            s_waitcnt lgkmcnt(0)
            """)
        for kk in range(4):
            a(f"s_waitcnt lgkmcnt({3-kk})")
            a(f"{MFMA} {vr(AG,16)}, {vr(GF+4*(4*c+kk),4)}, {vr(XG+4*kk,4)}, {vr(AG,16)}")
    a(f"""
    s_lshl_b32 s3, s{sMB}, 9
    s_lshl_b32 s4, s{sW}, 7
    s_add_u32 s4, s3, s4
    s_add_u32 s4, s4, {WS_G}
    s_lshl_b32 s10, s{sW}, 3
    s_add_u32 s10, s10, s3
    s_add_u32 s10, s10, {FL_H + 56*8}
    v_lshlrev_b32 v13, 2, v2
    s_nop 7
    v_mul_f32 v14, {f2u(-LOG2E):#x}, v{AG}
    v_exp_f32 v14, v14
    s_nop 0
    v_add_f32 v14, 1.0, v14
    v_rcp_f32 v14, v14
    s_nop 0
    buffer_store_dword v14, v13, {sr(SWS,4)}, s4 offen sc1
    """)
    nonce_get(a, 224)
    publish(a, 10, 16)
    lds_wait(a, C_Q, 4, 1, 15, sleep=1)
    lds_add(a, C_F1, 12, 13)
    a("s_branch k_ffn2")
    a.lab("k_f1_done")
    lds_add(a, C_F1, 12, 13)
    nonce_issue(a, 224)
    nonce_get(a, 224)
    a.lab("k_ffn2")
    stamp(a, 5)
    ACC = 16; HB = 80; WF = 96; WOF = 112; OFR = 176
    VD = 8; TA = 14
    sRb, sCb, sM0, sWo, sHo, sSlot, sRS, sT3 = 4, 5, 6, 7, 8, 9, 10, 11
    a(f"""
    s_cmp_ge_u32 s{sIdx}, {0 if OPT.get('NOF2') else 28}
    s_cbranch_scc1 k_f_done
    s_mul_i32 s3, s{sIdx}, 37
    s_lshr_b32 s3, s3, 8
    s_mul_i32 s{sT}, s3, 7
    s_sub_u32 s{sCb}, s{sIdx}, s{sT}
    s_lshl_b32 s{sRb}, s{sX}, 2
    s_add_u32 s{sRb}, s{sRb}, s3
    """)
    srd(a, SW2, 26, F*D*2)
    srd(a, SWO, 20, D*D*2)
    srd(a, SOUT, 30, S*D*2)
    a(f"""
    v_lshrrev_b32 v1, 3, v0
    v_mul_u32_u24 v1, 896, v1
    v_bfe_u32 v12, v0, 2, 1
    v_xor_b32 v12, v12, v5
    v_lshl_add_u32 v1, v12, 6, v1
    v_lshl_add_u32 v{VD}, v6, 4, v1
    v_add_u32 v{VD+1}, 6144, v{VD}
    v_add_u32 v{VD+2}, {2*6144}, v{VD}
    v_add_u32 v{VD+3}, {3*6144}, v{VD}
    v_add_u32 v12, {56*2048-2048}, v7
    s_mul_i32 s{sM0}, s{sW}, {RING}
    s_add_u32 s{sM0}, s{sM0}, {RING0}
    v_lshl_add_u32 v1, v3, 2, v4
    v_lshlrev_b32 v1, 7, v1
    v_lshl_add_u32 v1, v5, 5, v1
    v_lshl_add_u32 v1, v6, 3, v1
    v_add_u32 v1, s{sM0}, v1
    v_bfe_u32 v13, v0, 3, 1
    v_lshl_add_u32 v{TA}, v13, 6, v1
    v_xor_b32 v13, 1, v13
    v_lshl_add_u32 v{TA+1}, v13, 6, v1
    v_add_u32 v3, s{sM0}, v7
    s_mul_i32 s{sWo}, s{sW}, {448*896}
    s_lshl_b32 s3, s{sCb}, 7
    s_add_u32 s{sWo}, s{sWo}, s3
    s_mul_i32 s3, s{sRb}, 112
    s_mul_i32 s{sT}, s{sW}, 14
    s_add_u32 s3, s3, s{sT}
    s_lshl_b32 s3, s3, 11
    s_add_u32 s{sHo}, s3, {WS_HF}
    s_mov_b32 s{sSlot}, 0
    s_mov_b32 s{sRS}, 0
    s_movk_i32 s{sK}, 0x2000
    s_mov_b32 s{sT3}, s{sM0}
    """)
    a(f"""
    s_mul_i32 s3, s{sW}, 112
    v_lshl_add_u32 v1, v0, 3, s3
    s_and_b32 s3, s{sRb}, 1
    s_lshl_b32 s3, s3, 4
    s_add_u32 s3, s3, {56*8 - 14*8}
    v_lshl_add_u32 v13, v0, 3, s3
    v_cmp_gt_u32 vcc, 14, v0
    s_lshr_b32 s3, s{sRb}, 1
    s_lshl_b32 s3, s3, 9
    v_cndmask_b32 v1, v13, v1, vcc
    s_add_u32 s{sT}, s3, {FL_H}
    """)
    for i in range(64):
        a(f"v_mov_b32 v{ACC+i}, 0")
    lds_wait(a, C_F1, 4, 80, 81, sleep=1)
    HB2 = [80, 112]; WF2 = [96, 128]
    def dma_list():
        L = []
        L.append(f"s_mov_b32 m0, s{sM0}\n s_add_u32 s3, s{sM0}, 4096\n buffer_load_dwordx4 v{VD}, {sr(SW2,4)}, s{sWo} offen lds")
        for i in range(1, 4):
            L.append(f"buffer_load_dwordx4 v{VD+i}, {sr(SW2,4)}, s{sWo} offen offset:{1024*i} lds")
        L.append(f"s_mov_b32 m0, s3\n s_add_u32 s{sWo}, s{sWo}, {32*896}\n buffer_load_dwordx4 v7, {sr(SWS,4)}, s{sHo} offen sc1 lds")
        L.append(f"buffer_load_dwordx4 v7, {sr(SWS,4)}, s{sHo} offen offset:1024 sc1 lds")
        L.append(f"buffer_load_dwordx4 v12, {sr(SWS,4)}, s{sHo} offen offset:2048 sc1 lds")
        L.append(f"""buffer_load_dwordx4 v12, {sr(SWS,4)}, s{sHo} offen offset:3072 sc1 lds
        s_add_u32 s{sHo}, s{sHo}, 2048
        s_add_u32 s{sSlot}, s{sSlot}, 1
        s_cmp_eq_u32 s{sSlot}, 3
        s_cselect_b32 s3, -16384, s{sK}
        s_cselect_b32 s{sSlot}, 0, s{sSlot}
        s_add_u32 s{sM0}, s{sM0}, s3""")
        return L
    def dma_tile():
        for x in dma_list(): a(x)
    def tread_list(dst, off):
        L = []
        for kk in range(2):
            for ni in range(2):
                for u in range(2):
                    L.append(f"ds_read_b64_tr_b16 {vr(dst(ni,kk)+2*u,2)}, v{TA+ni} offset:{off+(16*kk+8*u)*128}")
        return L
    def treads(dst, off):
        for x in tread_list(dst, off): a(x)
    def read_list(b):
        L = []
        tr = tread_list(lambda ni,kk: WF2[b]+8*ni+4*kk, 0)
        for kk in range(2):
            for mi in range(2):
                L.append(f"ds_read_b128 {vr(HB2[b]+8*mi+4*kk,4)}, v3 offset:{4096+2048*mi+1024*kk}")
            L += tr[4*kk:4*kk+4]
        return L
    def read_rot():
        a(f"""
        s_add_u32 s{sRS}, s{sRS}, 1
        s_cmp_eq_u32 s{sRS}, 3
        s_cselect_b32 s15, -16384, s{sK}
        s_cselect_b32 s{sRS}, 0, s{sRS}
        v_add_u32 v3, s15, v3
        v_add_u32 v{TA}, s15, v{TA}
        v_add_u32 v{TA+1}, s15, v{TA+1}
        """)
    poll(a, 16, 1, sT, 80)
    stamp(a, 6)
    a(f"""
    s_lshl_b32 s3, s{sRb}, 8
    s_add_u32 s3, s3, {WS_G}
    v_lshlrev_b32 v4, 2, v2
    buffer_load_dword v1, v4, {sr(SWS,4)}, s3 offen sc1
    buffer_load_dword v13, v4, {sr(SWS,4)}, s3 offen offset:128 sc1
    """)
    dma_tile()
    if OPT["TOUCH"]:
        a(f"""
        v_mul_u32_u24 v4, 7, v0
        v_add_u32 v4, s{sCb}, v4
        v_cmp_le_u32 vcc, 224, v4
        v_lshlrev_b32 v4, 7, v4
        v_add_u32 v5, {56*2048 - 224*128}, v4
        s_sub_u32 s15, s{sHo}, 2048
        v_cndmask_b32 v4, v4, v5, vcc
        buffer_load_dword v5, v4, {sr(SWS,4)}, s15 offen sc1
        """)
    dma_tile(); dma_tile()
    a(f"s_mov_b32 s{sC}, 0")
    a(f"s_waitcnt vmcnt({17 if OPT['TOUCH'] else 16})")
    for x in read_list(0): a(x)
    read_rot()
    a.lab("k_floop")
    for b in range(2):
        if b == 1:
            a(f"""
            s_cmp_eq_u32 s{sC}, 5
            s_cbranch_scc0 k_fnosw
            s_mov_b32 s{sWo}, 0x7f000000
            s_mov_b32 s{sHo}, 0x7f000000
            """)
            a.lab("k_fnosw")
        a("s_waitcnt vmcnt(8) lgkmcnt(0)")
        rl = read_list(1-b); dl = dma_list()
        m = 0
        for kk in range(2):
            for mi in range(2):
                for ni in range(2):
                    acc = ACC + 16*(2*mi+ni)
                    a(f"{MFMA} {vr(acc,16)}, {vr(WF2[b]+8*ni+4*kk,4)}, {vr(HB2[b]+8*mi+4*kk,4)}, {vr(acc,16)}")
                    if m < 6:
                        a(rl[2*m]); a(rl[2*m+1])
                    a(dl[m])
                    if m == 6: read_rot()
                    m += 1
    a(f"""
    s_add_u32 s{sC}, s{sC}, 1
    s_cmp_lt_u32 s{sC}, 7
    s_cbranch_scc1 k_floop
    s_waitcnt vmcnt(0) lgkmcnt(0)
    """)
    stamp(a, 7)
    a(f"""
    s_mul_i32 s{sWo}, s{sW}, {4*28*896}
    s_lshl_b32 s3, s{sCb}, 7
    s_add_u32 s{sWo}, s{sWo}, s3
    s_mov_b32 s{sM0}, s{sT3}
    """)
    for hl in range(4):
        a(f"s_mov_b32 m0, s{sM0}")
        a(f"s_add_u32 s{sM0}, s{sM0}, 4096")
        for i in range(4):
            a(f"buffer_load_dwordx4 v{VD+i}, {sr(SWO,4)}, s{sWo} offen offset:{1024*i} lds")
        a(f"s_add_u32 s{sWo}, s{sWo}, {28*896}")
    a(f"""
    v_sub_f32 v4, 1.0, v1
    v_sub_f32 v6, 1.0, v13
    """)
    for mi in range(2):
        for r in range(0, 32, 2):
            a(f"v_pk_mul_f32 {vr(ACC+32*mi+r,2)}, {vr(ACC+32*mi+r,2)}, v[{4+2*mi}:{5+2*mi}] op_sel_hi:[1,0]")
    a(f"""
    v_lshrrev_b32 v1, 2, v0
    v_lshlrev_b32 v1, 7, v1
    v_and_b32 v13, 3, v0
    v_lshl_add_u32 v1, v13, 3, v1
    s_lshl_b32 s3, s{sRb}, 8
    s_lshl_b32 s{sT}, s{sW}, 5
    s_add_u32 s3, s3, s{sT}
    s_add_u32 s{sT}, s3, {FL_O}
    s_lshl_b32 s3, s{sRb}, 5
    s_lshl_b32 s{sHo}, s{sW}, 2
    s_add_u32 s3, s3, s{sHo}
    s_lshl_b32 s3, s3, 11
    s_add_u32 s{sHo}, s3, {WS_OF}
    s_add_u32 s{sWo}, s{sHo}, 32768
    s_waitcnt vmcnt(0)
    """)
    for hl in range(4):
        treads(lambda ni,kk: WOF+16*hl+8*kk+4*ni, 4096*hl)
        a("s_waitcnt lgkmcnt(4)")
    a("s_waitcnt lgkmcnt(0)")
    stamp(a, 8)
    a("s_setprio 3")
    poll(a, 8, 1, sT, 8)
    stamp(a, 9)
    for hl in range(4):
        if hl == 2:
            a(f"s_add_u32 s{sHo}, s{sHo}, 4096")
            a(f"s_add_u32 s{sWo}, s{sWo}, 4096")
        for kk in range(2):
            for mi in range(2):
                so = sHo if mi == 0 else sWo
                a(f"buffer_load_dwordx4 {vr(OFR+16*hl+8*kk+4*mi,4)}, v7, {sr(SWS,4)}, s{so} offen offset:{2048*(hl&1)+1024*kk} sc1")
    n = 16
    for hl in range(4):
        for kk in range(2):
            n -= 2
            a(f"s_waitcnt vmcnt({n})")
            for mi in range(2):
                for ni in range(2):
                    acc = ACC + 16*(2*mi+ni)
                    a(f"{MFMA} {vr(acc,16)}, {vr(WOF+16*hl+8*kk+4*ni,4)}, {vr(OFR+16*hl+8*kk+4*mi,4)}, {vr(acc,16)}")
    a(f"""
    v_add_u32 v4, s{sT3}, v7
    s_lshl_b32 s3, s{sW}, 12
    s_add_u32 s3, s3, {RING0}
    v_add_u32 v5, s3, v7
    s_nop 7
    """)
    RR = 80
    for wv in range(4):
        a(f"s_cmp_lg_u32 s{sW}, {wv}")
        a(f"s_cbranch_scc1 k_red{wv}_skip")
        for t in range(4):
            if t == wv: continue
            for r4 in range(4):
                a(f"ds_write_b128 v4, {vr(ACC+16*t+4*r4,4)} offset:{4096*t+1024*r4}")
        for r in range(16):
            a(f"v_mov_b32 v{128+r}, v{ACC+16*wv+r}")
        a.lab(f"k_red{wv}_skip")
    lds_add(a, C_RED, 8, 9)
    a(f"""
    s_lshr_b32 s3, s{sW}, 1
    s_lshl_b32 s3, s3, 5
    s_lshl_b32 s{sT}, s{sRb}, 6
    s_add_u32 s3, s3, s{sT}
    s_mul_i32 s3, s3, 896
    s_lshl_b32 s{sT}, s{sCb}, 7
    s_add_u32 s3, s3, s{sT}
    s_and_b32 s{sT}, s{sW}, 1
    s_lshl_b32 s{sT}, s{sT}, 6
    s_add_u32 s{sT}, s3, s{sT}
    v_mul_u32_u24 v4, 896, v2
    v_lshrrev_b32 v6, 5, v0
    v_lshl_add_u32 v4, v6, 4, v4
    """)
    lds_wait(a, C_RED, 4, 8, 9)
    for i in range(3):
        a(f"""
        s_add_u32 s3, s{sW}, {1+i}
        s_and_b32 s3, s3, 3
        s_mul_i32 s3, s3, {RING}
        v_add_u32 v6, s3, v5
        """)
        for r4 in range(4):
            a(f"ds_read_b128 {vr(RR+16*i+4*r4,4)}, v6 offset:{1024*r4}")
    for i in range(3):
        a(f"s_waitcnt lgkmcnt({8-4*i})")
        for p in range(8):
            a(f"v_pk_add_f32 {vr(128+2*p,2)}, {vr(128+2*p,2)}, {vr(RR+16*i+2*p,2)}")
    for p in range(8):
        a(f"v_cvt_pk_bf16_f32 v{16+p}, v{128+2*p}, v{128+2*p+1}")
    a(f"""
    s_nop 1
    v_permlane32_swap_b32 v16, v18
    v_permlane32_swap_b32 v17, v19
    v_permlane32_swap_b32 v20, v22
    v_permlane32_swap_b32 v21, v23
    buffer_store_dwordx4 v[16:19], v4, {sr(SOUT,4)}, s{sT} offen
    buffer_store_dwordx4 v[20:23], v4, {sr(SOUT,4)}, s{sT} offen offset:32
    """)
    if PROF:
        a("s_waitcnt vmcnt(0)"); stamp(a, 10)
    a.lab("k_f_done")
    flush(a, 4)
    a("s_endpgm")
    a.lab("k_A")
    a(f"s_setprio 1")
    srd(a, SWS, 34, WS_SIZE)
    srd(a, SDBG, 32, 256)
    ntouch = 0
    if OPT["TOUCH"]:
        srd(a, SWQ, 18, D*3*D*2)
        srd(a, SW1, 24, D*F*2)
        srd(a, SX, 16, S*D*2)
        a(f"""
        s_and_b32 s7, s{sMB}, 7
        s_and_b32 s8, s{sJ}, 3
        s_lshl_b32 s8, s8, 5
        s_lshl_b32 s9, s{sW}, 3
        s_add_u32 s8, s8, s9
        s_lshl_b32 s9, s{sMB}, 7
        s_add_u32 s8, s8, s9
        s_mul_i32 s8, s8, 896
        v_lshrrev_b32 v12, 3, v0
        v_mul_u32_u24 v14, 896, v12
        v_and_b32 v15, 7, v0
        v_min_u32 v15, 6, v15
        v_lshl_add_u32 v14, v15, 7, v14
        buffer_load_dword v24, v14, {sr(SX,4)}, s8 offen
        s_mul_i32 s7, s7, 56
        s_mul_i32 s9, s{sW}, 14
        s_add_u32 s7, s7, s9
        s_mul_i32 s8, s7, 2688
        s_mul_i32 s9, s{sJ}, 56
        s_add_u32 s8, s8, s9
        v_mul_u32_u24 v14, 2688, v12
        v_bfe_u32 v15, v0, 1, 2
        v_min_u32 v15, 2, v15
        v_mul_u32_u24 v15, 896, v15
        v_add_u32 v14, v14, v15
        v_and_b32 v15, 1, v0
        v_mul_u32_u24 v15, 52, v15
        v_add_u32 v14, v14, v15
        buffer_load_dword v25, v14, {sr(SWQ,4)}, s8 offen
        s_add_u32 s8, s8, {8*2688}
        buffer_load_dword v26, v14, {sr(SWQ,4)}, s8 offen
        s_mul_i32 s8, s7, 3584
        s_lshl_b32 s9, s{sJ}, 8
        s_add_u32 s8, s8, s9
        v_lshrrev_b32 v14, 1, v2
        v_mul_u32_u24 v14, 3584, v14
        v_and_b32 v15, 1, v0
        v_lshl_add_u32 v14, v15, 7, v14
        buffer_load_dword v27, v14, {sr(SW1,4)}, s8 offen
        """)
        ntouch = 2
    a(f"""
    s_or_b32 s3, s2, s{sW}
    s_cmp_lg_u32 s3, 0
    s_cbranch_scc1 k_A_nonce_done
    s_memrealtime s[8:9]
    v_mov_b32 v14, 0
    s_waitcnt lgkmcnt(0)
    s_or_b32 s8, s8, 1
    v_mov_b32 v18, s8
    v_mov_b32 v19, s9
    s_mov_b64 exec, 1
    buffer_store_dwordx2 v[18:19], v14, {sr(SDBG,4)}, 0 offen sc1
    s_mov_b64 exec, -1
    s_waitcnt vmcnt(0)
    """)
    a.lab("k_A_nonce_done")
    WB = 12
    QB = [32, 48]
    AQ, AK, AV = 64, 80, 96
    xa_setup()
    a(f"""
    s_lshl_b32 s3, s{sW}, 12
    s_add_u32 s3, s3, {XBASE}
    """)
    for kk in range(4):
        a(f"v_add_u32 v{XA+kk}, s3, v{XA+kk}")
    a(f"""
    v_lshl_add_u32 v14, v3, 3, v4
    v_mul_u32_u24 v14, 192, v14
    v_lshl_add_u32 v14, v5, 5, v14
    v_lshl_add_u32 v{WB}, v6, 3, v14
    s_and_b32 s3, s{sJ}, 1
    s_lshl_b32 s3, s3, 3
    v_add_u32 v{WB}, s3, v{WB}
    """)
    for i in range(48):
        a(f"v_mov_b32 v{AQ+i}, 0")
    def qreads(buf, kk, slot):
        b = QB[buf]
        a(f"ds_read_b128 {vr(b,4)}, v{XA+kk}")
        for t in range(3):
            for u in range(2):
                a(f"ds_read_b64_tr_b16 {vr(b+4+4*t+2*u,2)}, v{WB} offset:{(16*kk+4*u)*192+t*64}")
        a(f"v_add_u32 v{XA+kk}, 0x4000, v{XA+kk}")
    def qmfma(buf):
        b = QB[buf]
        a(f"{MFMA} {vr(AQ,16)}, {vr(b+4,4)}, {vr(b,4)}, {vr(AQ,16)}")
        a(f"{MFMA} {vr(AK,16)}, {vr(b+8,4)}, {vr(b,4)}, {vr(AK,16)}")
        a(f"{MFMA} {vr(AV,16)}, {vr(b,4)}, {vr(b+12,4)}, {vr(AV,16)}")
    stamp(a, 1)
    a("s_barrier")
    stamp(a, 2)
    a(f"s_mov_b32 s{sC}, 0")
    a(f"s_movk_i32 s{sK}, {QSLOT}")
    qreads(0, 0, 0)
    a.lab("k_qloop")
    qreads(1, 1, 0); a("s_waitcnt lgkmcnt(7)"); qmfma(0)
    qreads(0, 2, 0); a("s_waitcnt lgkmcnt(7)"); qmfma(1)
    qreads(1, 3, 0)
    a(f"""
    s_cmp_eq_u32 s{sC}, 3
    s_cselect_b32 s3, {-3*QSLOT}, s{sK}
    v_add_u32 v{WB}, s3, v{WB}
    s_waitcnt lgkmcnt(7)
    """)
    qmfma(0)
    a(f"""
    s_add_u32 s{sC}, s{sC}, 1
    s_cmp_eq_u32 s{sC}, 7
    s_waitcnt lgkmcnt(0)
    s_cbranch_scc1 k_qtail
    s_barrier
    """)
    qreads(0, 0, 0)
    qmfma(1)
    a("s_branch k_qloop")
    a.lab("k_qtail")
    qmfma(1)
    a("s_setprio 3")
    lds_add(a, C_Q, 14, 15)
    stamp(a, 3)
    QP, KP, VP = 32, 40, 48
    SD = 112
    nonce_issue(a, 16)
    a(f"""
    s_mov_b32 s8, {f2u(QSCALE):#x}
    s_mov_b32 s9, {f2u(QSCALE):#x}
    s_lshl_b32 s3, s{sJ}, 6
    s_lshl_b32 s4, s{sMB}, 2
    s_add_u32 s3, s3, s4
    s_add_u32 s3, s3, s{sW}
    s_lshl_b32 s5, s3, 11
    s_add_u32 s5, s5, {WS_QF}
    s_lshl_b32 s6, s3, 12
    s_add_u32 s6, s6, {WS_KV}
    s_lshl_b32 s7, s3, 3
    s_add_u32 s7, s7, {FL_KV}
    v_mov_b32 v13, 0x3f803f80
    v_cmp_eq_u32 vcc, 28, v2
    s_mov_b32 s10, 0x07060302
    s_nop 0
    v_cndmask_b32 v13, 0, v13, vcc
    """)
    for p in range(8):
        a(f"v_cvt_pk_bf16_f32 v{KP+p}, v{AK+2*p}, v{AK+2*p+1}")
    for p in range(8):
        a(f"v_pk_mul_f32 {vr(AQ+2*p,2)}, {vr(AQ+2*p,2)}, s[8:9]")
    a(f"""
    s_mov_b32 exec_lo, 0
    v_mov_b32 v{KP+6}, 0x3f803f80
    v_mov_b32 v{KP+7}, 0x3f80
    s_mov_b64 exec, -1
    buffer_store_dwordx4 {vr(KP,4)}, v7, {sr(SWS,4)}, s6 offen sc1
    buffer_store_dwordx4 {vr(KP+4,4)}, v7, {sr(SWS,4)}, s6 offen offset:1024 sc1
    """)
    for p in range(8):
        a(f"v_cvt_pk_bf16_f32 v{QP+p}, v{AQ+2*p}, v{AQ+2*p+1}")
    a(f"""
    s_mov_b32 exec_lo, 0
    v_mov_b32 v{QP+6}, 0
    v_mov_b32 v{QP+7}, 0
    s_mov_b64 exec, -1
    buffer_store_dwordx4 {vr(QP,4)}, v7, {sr(SWS,4)}, s5 offen sc1
    s_nop 0
    {MFMA} {vr(SD,16)}, {vr(KP,4)}, {vr(QP,4)}, 0
    {MFMA} {vr(SD,16)}, {vr(KP+4,4)}, {vr(QP+4,4)}, {vr(SD,16)}
    """)
    for p in range(8):
        a(f"v_cvt_pk_bf16_f32 v{VP+p}, v{AV+2*p}, v{AV+2*p+1}")
    a(f"""
    s_mov_b32 exec_lo, 0xf0000000
    s_mov_b32 exec_hi, 0xf0000000
    """)
    for p in range(8):
        a(f"v_mov_b32 v{VP+p}, v13")
    a(f"""
    s_mov_b64 exec, -1
    buffer_store_dwordx4 {vr(VP,4)}, v7, {sr(SWS,4)}, s6 offen offset:2048 sc1
    buffer_store_dwordx4 {vr(VP+4,4)}, v7, {sr(SWS,4)}, s6 offen offset:3072 sc1
    v_max3_f32 v14, v{SD}, v{SD+1}, v{SD+2}
    v_max3_f32 v15, v{SD+3}, v{SD+4}, v{SD+5}
    v_max3_f32 v14, v14, v{SD+6}, v{SD+7}
    v_max3_f32 v15, v15, v{SD+8}, v{SD+9}
    v_max3_f32 v14, v14, v{SD+10}, v{SD+11}
    v_max3_f32 v15, v15, v{SD+12}, v{SD+13}
    v_max3_f32 v14, v14, v{SD+14}, v{SD+15}
    v_max_f32 v14, v14, v15
    v_mov_b32 v15, v14
    s_nop 1
    v_permlane32_swap_b32 v14, v15
    v_max_f32 v14, v14, v15
    v_sub_f32 v14, 0, v14
    v_and_b32 v15, 0xffff0000, v14
    v_sub_f32 v15, v14, v15
    v_and_b32 v12, 0xffff0000, v15
    v_sub_f32 v12, v15, v12
    s_mov_b32 exec_lo, 0
    v_perm_b32 v{QP+6}, v15, v14, s10
    v_lshrrev_b32 v{QP+7}, 16, v12
    s_mov_b64 exec, -1
    buffer_store_dwordx4 {vr(QP+4,4)}, v7, {sr(SWS,4)}, s5 offen offset:1024 sc1
    """)
    stamp(a, 4)
    sHead, sQb, sKo, sVo, sPass, sPub = 4, 5, 6, 8, 9, 10
    a(f"""
    s_lshl_b32 s{sHead}, s{sX}, 1
    s_lshr_b32 s3, s{sIdx}, 4
    s_add_u32 s{sHead}, s{sHead}, s3
    s_and_b32 s{sQb}, s{sIdx}, 15
    """)
    nonce_get(a, 16)
    publish(a, 7, 16)
    stamp(a, 5)
    Q = 8
    O = 40
    SB = [104, 120]
    PB = [136, 144]
    KVB = [152 + 16*i for i in range(NB)]
    VG = 3
    assert 152 + 16*NB <= 248
    a(f"""
    s_lshl_b32 s3, s{sHead}, 6
    s_lshl_b32 s11, s{sW}, 4
    s_add_u32 s3, s3, s11
    s_lshl_b32 s3, s3, 12
    s_add_u32 s3, s3, {WS_KV}
    s_add_u32 s{SKV}, s34, s3
    s_addc_u32 s{SKV+1}, s35, 0
    s_mov_b32 s{SKV+2}, 65536
    s_mov_b32 s{SKV+3}, 0x00020000
    s_mov_b32 s{sPass}, 0
    s_mov_b32 s{sPub}, 0
    """)
    a(f"""
    s_lshl_b32 s3, s{sW}, 7
    v_lshl_add_u32 v14, v0, 3, s3
    s_lshl_b32 s3, s{sQb}, 5
    s_sub_u32 s3, s3, 128
    v_lshl_add_u32 v15, v0, 3, s3
    v_cmp_gt_u32 vcc, 16, v0
    s_lshl_b32 s11, s{sHead}, 9
    s_lshl_b32 s3, s{sQb}, 9
    v_cndmask_b32 v14, v15, v14, vcc
    s_sub_u32 s3, s3, s11
    s_lshl_b32 s7, s{sW}, 3
    s_add_u32 s3, s3, s7
    s_add_u32 s3, s3, {8192 + 56*8}
    v_mov_b32 v15, s3
    v_cmp_eq_u32 vcc, 20, v0
    s_add_u32 s7, s11, {FL_KV}
    s_nop 0
    v_cndmask_b32 v14, v14, v15, vcc
    """)
    for i in range(8):
        a(f"v_mov_b32 v{KVB[NB-1]+8+i}, 0")
    for i in range(8):
        a(f"v_mov_b32 v{PB[1]+i}, 0")
    for i in range(64):
        a(f"v_mov_b32 v{O+i}, 0")
    if OPT.get("AWAIT", 1):
        a("s_setprio 0")
        lds_wait(a, C_F1, 4, 16, 17, sleep=2)
        a("s_setprio 3")
    poll(a, 21, 14, 7, 16)
    stamp(a, 6)
    def ldK(b):
        a(f"buffer_load_dwordx4 {vr(KVB[b],4)}, v7, {sr(SKV,4)}, s{sKo} offen sc1")
        a(f"buffer_load_dwordx4 {vr(KVB[b]+4,4)}, v7, {sr(SKV,4)}, s{sKo} offen offset:1024 sc1")
        a(f"s_add_u32 s{sKo}, s{sKo}, 4096")
    def ldV(b):
        a(f"buffer_load_dwordx4 {vr(KVB[b]+8,4)}, v7, {sr(SKV,4)}, s{sVo} offen offset:2048 sc1")
        a(f"buffer_load_dwordx4 {vr(KVB[b]+12,4)}, v7, {sr(SKV,4)}, s{sVo} offen offset:3072 sc1")
        a(f"s_add_u32 s{sVo}, s{sVo}, 4096")
    a(f"""
    s_lshl_b32 s3, s{sHead}, 6
    s_lshl_b32 s11, s{sQb}, 2
    s_add_u32 s3, s3, s11
    s_lshl_b32 s3, s3, 11
    s_add_u32 s7, s3, {WS_QF}
    """)
    for i in range(4):
        a(f"""
        s_add_u32 s3, s{sW}, {1+i}
        s_and_b32 s3, s3, 3
        s_lshl_b32 s3, s3, 11
        s_add_u32 s3, s3, s7
        buffer_load_dwordx4 {vr(Q+8*i,4)}, v7, {sr(SWS,4)}, s3 offen sc1
        buffer_load_dwordx4 {vr(Q+8*i+4,4)}, v7, {sr(SWS,4)}, s3 offen offset:1024 sc1
        """)
    a(f"""
    s_lshl_b32 s3, s{sQb}, 9
    s_lshl_b32 s11, s{sW}, 7
    s_add_u32 s3, s3, s11
    s_add_u32 s3, s3, {WS_G}
    v_lshlrev_b32 v4, 2, v2
    buffer_load_dword v{VG}, v4, {sr(SWS,4)}, s3 offen sc1
    s_branch k_att_first
    """)
    a.lab("k_att_start")
    for i in range(8):
        a(f"v_mov_b32 v{KVB[NB-1]+8+i}, 0")
    for i in range(8):
        a(f"v_mov_b32 v{PB[1]+i}, 0")
    for i in range(64):
        a(f"v_mov_b32 v{O+i}, 0")
    a.lab("k_att_first")
    a(f"s_mov_b32 s{sKo}, 0")
    a(f"s_mov_b32 s{sVo}, 0")
    for b in range(NB):
        ldK(b)
        if b < NB-1:
            ldV(b)
    nt2 = 0
    if OPT["TOUCH"]:
        a(f"""
        s_lshl_b32 s3, s{sQb}, 7
        v_lshlrev_b32 v4, 11, v2
        buffer_load_dword v6, v4, {sr(SKV,4)}, s3 offen sc1
        """)
        nt2 = 4
    if OPT["TOUCH"]:
        srd(a, SW2, 26, F*D*2)
        srd(a, SWO, 20, D*D*2)
        a(f"""
        s_mul_i32 s3, s{sIdx}, {392*128}
        s_lshl_b32 s11, s{sW}, 14
        s_add_u32 s3, s3, s11
        v_lshlrev_b32 v4, 7, v0
        v_add_u32 v5, 8192, v4
        buffer_load_dword v6, v4, {sr(SW2,4)}, s3 offen
        buffer_load_dword v6, v5, {sr(SW2,4)}, s3 offen
        s_mul_i32 s3, s{sIdx}, {98*128}
        s_lshl_b32 s11, s{sW}, 12
        s_add_u32 s3, s3, s11
        v_lshlrev_b32 v4, 6, v0
        buffer_load_dword v6, v4, {sr(SWO,4)}, s3 offen
        """)
    a(f"s_mov_b32 s{sC}, 0")
    a(f"s_waitcnt vmcnt({4*(NB-1)+nt2})")
    stamp(a, 7)
    a(f"{MFMA} {vr(SB[0],16)}, {vr(KVB[0],4)}, {vr(Q,4)}, 0")
    a(f"{MFMA} {vr(SB[0],16)}, {vr(KVB[0]+4,4)}, {vr(Q+4,4)}, {vr(SB[0],16)}")
    a(f"s_setprio {OPT['PRIO_A']}")
    a("s_nop 15")
    a.lab("k_aloop")
    NU = 4*NB
    for u in range(NU):
        t, qi = u // 4, u % 4
        un = (u+1) % NU; tn, qn = un // 4, un % 4
        up = (u-1) % NU; tp, qp = up // 4, up % 4
        sc, sn = SB[u % 2], SB[(u+1) % 2]
        pc, pp = PB[u % 2], PB[(u-1) % 2]
        def ex(r): a(f"v_exp_f32 v{sc+r}, v{sc+r}")
        def cv(p): a(f"v_cvt_pk_bf16_f32 v{pc+p}, v{sc+2*p}, v{sc+2*p+1}")
        if qi == 3:
            a(f"s_waitcnt vmcnt({4*(NB-1)})")
        a(f"{MFMA} {vr(sn,16)}, {vr(KVB[tn],4)}, {vr(Q+8*qn,4)}, 0")
        for r in range(0, 4): ex(r)
        a(f"{MFMA} {vr(sn,16)}, {vr(KVB[tn]+4,4)}, {vr(Q+8*qn+4,4)}, {vr(sn,16)}")
        if qi == 2:
            ldK(t)
        for r in range(4, 8): ex(r)
        cv(0); cv(1)
        if qi == 1:
            a(f"s_waitcnt vmcnt({4*(NB-1)})")
        a(f"{MFMA} {vr(O+16*qp,16)}, {vr(KVB[tp]+8,4)}, {vr(pp,4)}, {vr(O+16*qp,16)}")
        for r in range(8, 12): ex(r)
        cv(2); cv(3)
        a(f"{MFMA} {vr(O+16*qp,16)}, {vr(KVB[tp]+12,4)}, {vr(pp+4,4)}, {vr(O+16*qp,16)}")
        if qi == 0:
            ldV(tp)
        for r in range(12, 16): ex(r)
        cv(4); cv(5); cv(6); cv(7)
    a(f"""
    s_add_u32 s{sC}, s{sC}, 1
    s_cmp_lt_u32 s{sC}, {16//NB}
    s_cbranch_scc1 k_aloop
    """)
    up = NU-1
    stamp(a, 8)
    a("s_setprio 3")
    a(f"{MFMA} {vr(O+48,16)}, {vr(KVB[NB-1]+8,4)}, {vr(PB[up%2],4)}, {vr(O+48,16)}")
    a(f"{MFMA} {vr(O+48,16)}, {vr(KVB[NB-1]+12,4)}, {vr(PB[up%2]+4,4)}, {vr(O+48,16)}")
    lds_wait(a, C_F1, 4, 4, 5)
    def oc_base(dst, sreg):
        a(f"""
        s_mul_i32 s{dst}, s{sreg}, 12288
        s_cmp_eq_u32 s{sreg}, 3
        s_cselect_b32 s{dst}, {OC3}, s{dst}
        """)
    for i in range(3):
        a(f"""
        s_add_u32 s3, s{sW}, {1+i}
        s_and_b32 s3, s3, 3
        """)
        oc_base(11, 3)
        a(f"v_add_u32 v4, s11, v7")
        for r4 in range(4):
            a(f"ds_write_b128 v4, {vr(O+16*i+4*r4,4)} offset:{4096*i+1024*r4}")
    lds_add(a, C_OC, 5, 6)
    oc_base(11, sW)
    a(f"""
    v_add_u32 v1, s11, v7
    s_lshl_b32 s7, s{sPass}, 2
    s_add_u32 s7, s7, 4
    """)
    lds_wait(a, C_OC, "s7", 4, 5)
    R = 104
    for i in range(12):
        a(f"ds_read_b128 {vr(R+4*i,4)}, v1 offset:{1024*i}")
    OK_ = O + 48
    for i in range(3):
        a(f"s_waitcnt lgkmcnt({8-4*i})")
        for p in range(8):
            a(f"v_pk_add_f32 {vr(OK_+2*p,2)}, {vr(OK_+2*p,2)}, {vr(R+16*i+2*p,2)}")
    OP = R
    a(f"""
    v_mov_b32 v4, v{OK_+12}
    v_mov_b32 v5, v{OK_+12}
    s_lshl_b32 s3, s{sQb}, 2
    s_add_u32 s3, s3, s{sW}
    v_permlane32_swap_b32 v4, v5
    s_lshl_b32 s3, s3, 4
    s_add_u32 s3, s3, s{sHead}
    v_rcp_f32 v4, v5
    s_lshl_b32 s7, s3, 11
    s_add_u32 s7, s7, {WS_OF}
    v_mul_f32 v4, v4, v{VG}
    s_lshl_b32 s11, s3, 3
    s_add_u32 s11, s11, {FL_O}
    """)
    for p in range(8):
        a(f"v_pk_mul_f32 {vr(OK_+2*p,2)}, {vr(OK_+2*p,2)}, v[4:5] op_sel_hi:[1,0]")
    for p in range(8):
        a(f"v_cvt_pk_bf16_f32 v{OP+p}, v{OK_+2*p}, v{OK_+2*p+1}")
    a(f"""
    s_cmp_lg_u32 s{sPub}, 0
    s_cbranch_scc1 k_a_done
    s_mov_b32 exec_lo, 0
    v_mov_b32 v{OP+6}, 0
    v_mov_b32 v{OP+7}, 0
    s_mov_b64 exec, -1
    buffer_store_dwordx4 {vr(OP,4)}, v7, {sr(SWS,4)}, s7 offen sc1
    buffer_store_dwordx4 {vr(OP+4,4)}, v7, {sr(SWS,4)}, s7 offen offset:1024 sc1
    """)
    for p in range(1, 8):
        a(f"v_pk_add_f32 {vr(OK_,2)}, {vr(OK_,2)}, {vr(OK_+2*p,2)}")
    a(f"""
    v_add_f32 v{OK_}, v{OK_}, v{OK_+1}
    v_mul_f32 v{OK_}, 0, v{OK_}
    v_add_f32 v5, v5, v{OK_}
    v_mov_b32 v6, {f2u(2.0**40):#x}
    v_cmp_nlt_f32 vcc, v5, v6
    s_cmp_lg_u32 s{sPass}, 0
    s_cbranch_scc1 k_a_pub
    s_cbranch_vccz k_a_pub
    v_mov_b32 v4, {C_BAD}
    v_mov_b32 v6, 1
    ds_write_b32 v4, v6
    s_branch k_a_sync
    """)
    a.lab("k_a_pub")
    a("s_waitcnt vmcnt(0)")
    publish(a, 11, 4)
    a(f"s_mov_b32 s{sPub}, 1")
    stamp(a, 9)
    a.lab("k_a_sync")
    a(f"""
    s_cmp_lg_u32 s{sPass}, 0
    s_cbranch_scc1 k_a_done
    """)
    lds_add(a, C_A2, 4, 5)
    lds_wait(a, C_A2, 4, 4, 5)
    a(f"""
    v_mov_b32 v4, {C_BAD}
    ds_read_b32 v6, v4
    s_waitcnt lgkmcnt(0)
    v_readfirstlane_b32 s3, v6
    s_cmp_lg_u32 s3, 0
    s_cbranch_scc1 k_fallback
    """)
    a.lab("k_a_done")
    flush(a, 0)
    a("s_endpgm")
    a.lab("k_fallback")
    MX = O
    a(f"""
    s_mov_b32 s{sPass}, 1
    s_waitcnt vmcnt(0)
    s_mov_b32 exec_lo, 0
    """)
    for i in range(4):
        a(f"v_mov_b32 v{Q+8*i+6}, 0")
        a(f"v_mov_b32 v{Q+8*i+7}, 0")
    a("s_mov_b64 exec, -1")
    for i in range(4):
        a(f"v_mov_b32 v{MX+i}, 0xff800000")
    a(f"s_mov_b32 s{sKo}, 0")
    a.lab("k_fbloop")
    ldK(0)
    a("s_waitcnt vmcnt(0)")
    for i in range(4):
        sb = SB[0]
        a(f"{MFMA} {vr(sb,16)}, {vr(KVB[0],4)}, {vr(Q+8*i,4)}, 0")
        a(f"{MFMA} {vr(sb,16)}, {vr(KVB[0]+4,4)}, {vr(Q+8*i+4,4)}, {vr(sb,16)}")
        a("s_nop 15")
        for r in range(0, 16, 2):
            a(f"v_max3_f32 v{MX+i}, v{MX+i}, v{sb+r}, v{sb+r+1}")
    a(f"""
    s_cmp_lt_u32 s{sKo}, 65536
    s_cbranch_scc1 k_fbloop
    """)
    for i in range(4):
        a(f"""
        s_add_u32 s3, s{sW}, {1+i}
        s_and_b32 s3, s3, 3
        s_lshl_b32 s3, s3, 10
        s_lshl_b32 s11, s{sW}, 8
        s_add_u32 s3, s3, s11
        v_lshl_add_u32 v4, v0, 2, s3
        ds_write_b32 v4, v{MX+i}
        """)
    lds_add(a, C_FB1, 4, 5)
    lds_wait(a, C_FB1, 4, 4, 5)
    for i in range(4):
        a(f"""
        s_add_u32 s3, s{sW}, {1+i}
        s_and_b32 s3, s3, 3
        s_lshl_b32 s3, s3, 10
        v_lshl_add_u32 v4, v2, 2, s3
        """)
        for k in range(8):
            a(f"ds_read_b32 v{MX+8+k}, v4 offset:{128*k}")
        a("s_waitcnt lgkmcnt(0)")
        a(f"""
        v_max3_f32 v5, v{MX+8}, v{MX+9}, v{MX+10}
        v_max3_f32 v5, v5, v{MX+11}, v{MX+12}
        v_max3_f32 v5, v5, v{MX+13}, v{MX+14}
        v_max_f32 v5, v5, v{MX+15}
        v_sub_f32 v5, 0, v5
        v_and_b32 v6, 0xffff0000, v5
        v_sub_f32 v6, v5, v6
        v_and_b32 v4, 0xffff0000, v6
        v_sub_f32 v4, v6, v4
        s_mov_b32 s3, 0x07060302
        s_mov_b32 exec_lo, 0
        v_perm_b32 v{Q+8*i+6}, v6, v5, s3
        v_lshrrev_b32 v{Q+8*i+7}, 16, v4
        s_mov_b64 exec, -1
        """)
    lds_add(a, C_FB2, 4, 5)
    lds_wait(a, C_FB2, 4, 4, 5)
    a("s_branch k_att_start")

    a.lab("k_end")
    a("s_endpgm")

def main(out):
    a = A()
    gen(a)
    txt = "; gated_mix: softmax MHA + SiLU FFN + sigmoid gate, one fused persistent kernel. Generated by work/gen3.py\n"
    txt += f"; @launch grid=(256,1,1) block=(512,1,1) lds={LDS_BYTES}\n"
    txt += '.amdgcn_target "amdgcn-amd-amdhsa--gfx950"\n.text\n'
    txt += a.text()
    txt += f""".section .rodata,"a"
.p2align 6
.amdhsa_kernel {NAME}
  .amdhsa_next_free_vgpr 248
  .amdhsa_next_free_sgpr 102
  .amdhsa_accum_offset 248
  .amdhsa_group_segment_fixed_size 0
  .amdhsa_kernarg_size 80
  .amdhsa_user_sgpr_count 2
  .amdhsa_user_sgpr_kernarg_segment_ptr 1
  .amdhsa_system_sgpr_workgroup_id_x 1
.end_amdhsa_kernel
"""
    open(out, "w").write(txt)

if __name__ == "__main__":
    main(sys.argv[1] if len(sys.argv) > 1 else "f.s")
```

```python
import math, struct, sys, os

def f2u(x):
    return struct.unpack("<I", struct.pack("<f", x))[0]

S, D, H, DH, F = 2048, 448, 16, 28, 1792
WS_QF = 0
WS_KV = 2 << 20
WS_HF = 6 << 20
WS_OF = 14 << 20
WS_G  = 16 << 20
WS_FL = (16 << 20) + 65536
FL_KV = WS_FL
FL_H  = WS_FL + 8192
FL_O  = WS_FL + 16384
WS_SIZE = (16 << 20) + 131072
PROF = int(os.environ.get("PROF", "0"))
WS_PROF = WS_SIZE
if PROF:
    WS_SIZE = WS_PROF + 2*256*8*64
OPT = dict(NB=4, TOUCH=1, PRIO_A=1, PRIO_F=2)
for kv in os.environ.get("OPT", "").split(","):
    if "=" in kv:
        k, v = kv.split("="); OPT[k] = int(v)

LOG2E = 1.4426950408889634
QSCALE = (DH ** -0.5) * LOG2E
NAME = "gated_mix__softmax_full_mha__dense_activation_silu__prompt_kernel"

class A:
    def __init__(self):
        self.l = []
        self.n = 0
    def __call__(self, s):
        for x in s.strip("\n").split("\n"):
            x = x.strip()
            if not x: continue
            self.l.append(x if x.endswith(":") else "  " + x)
    def lab(self, s):
        self.l.append(s + ":")
    def uniq(self, p):
        self.n += 1
        return f"{p}_{self.n}"
    def text(self):
        return "\n".join(self.l) + "\n"

def vr(b, n): return f"v[{b}:{b+n-1}]" if n > 1 else f"v{b}"
def sr(b, n): return f"s[{b}:{b+n-1}]" if n > 1 else f"s{b}"
MFMA = "v_mfma_f32_32x32x16_bf16"

SX, SWQ, SWS, SW1, SW2, SWO, SOUT, SG, SDBG = 36, 40, 44, 48, 52, 56, 60, 64, 68
SKV = 48
sMB, sJ, sW, sX, sIdx, sC, sK, sT = 72, 73, 74, 75, 76, 77, 78, 79
sE = 12
XBASE = 49152
QSLOT = 12288
LCNT = 36864
C_F1, C_OC, C_BAD, C_A2, C_RED, C_FB1, C_FB2, C_Q, C_KV, C_H, C_QX = [LCNT + 4*i for i in range(11)]
W1E = LCNT + 1024
RING0 = 40960
RING = 24576
OC3 = RING0 + 4*RING
LDS_BYTES = 163840

def srd(a, d, base, nbytes):
    a(f"s_mov_b32 s{d}, s{base}")
    a(f"s_mov_b32 s{d+1}, s{base+1}")
    a(f"s_mov_b32 s{d+2}, {nbytes}")
    a(f"s_mov_b32 s{d+3}, 0x00020000")

PV = OPT.get("PV", 0)
def stamp(a, i, cyc=False, pv=0):
    if PROF and (pv == PV or i == 0):
        assert 0 <= i < 11
        a(f"{'s_memtime' if cyc else 's_memrealtime'} s[{80+2*i}:{81+2*i}]")
def flush(a, wadd):
    if not PROF: return
    a("s_waitcnt lgkmcnt(0)")
    a(f"s_lshl_b32 s3, s2, 3")
    a(f"s_add_u32 s3, s3, s{sW}")
    a(f"s_add_u32 s3, s3, {wadd}")
    a(f"s_lshl_b32 s3, s3, 6")
    a(f"s_add_u32 s3, s3, {WS_PROF}")
    a("s_mov_b64 exec, 1")
    a("s_nop 4")
    for i in range(11):
        a(f"v_mov_b32 v{16+i}, s{80+2*i}")
    a("v_mov_b32 v27, 0")
    a("v_mov_b32 v28, 0")
    for i in range(3):
        a(f"buffer_store_dwordx4 v[{16+4*i}:{19+4*i}], v28, {sr(SWS,4)}, s3 offen offset:{16*i}")

def lds_add(a, cnt, vt0, vt1):
    a(f"""
    v_mov_b32 v{vt0}, {cnt}
    v_mov_b32 v{vt1}, 1
    s_mov_b64 exec, 1
    ds_add_u32 v{vt0}, v{vt1}
    s_mov_b64 exec, -1
    """)
def lds_wait(a, cnt, target, vt0, vt1, sleep=0):
    L = a.uniq("lw"); E = a.uniq("lwe")
    a(f"v_mov_b32 v{vt0}, {cnt}")
    a(f"s_mov_b32 s14, 0")
    a.lab(L)
    a(f"""
    ds_read_b32 v{vt1}, v{vt0}
    s_add_u32 s14, s14, 1
    s_waitcnt lgkmcnt(0)
    v_readfirstlane_b32 s15, v{vt1}
    s_cmp_gt_u32 s14, 0x200000
    s_cbranch_scc1 {E}
    s_cmp_ge_u32 s15, {target}
    s_cbranch_scc1 {E}
    {f"s_sleep {sleep}" if sleep else ""}
    s_branch {L}
    """)
    a.lab(E)

def nonce_issue(a, vt):
    a(f"v_mov_b32 v{vt}, 0")
    a(f"buffer_load_dwordx2 {vr(vt+2,2)}, v{vt}, {sr(SDBG,4)}, 0 offen sc1")
def nonce_get(a, vt):
    L = a.uniq("ng"); E = a.uniq("nge")
    a("s_mov_b32 s14, 0")
    a.lab(L)
    a(f"""
    s_waitcnt vmcnt(0)
    v_readfirstlane_b32 s{sE}, v{vt+2}
    v_readfirstlane_b32 s{sE+1}, v{vt+3}
    s_add_u32 s14, s14, 1
    s_cmp_gt_u32 s14, 0x40000
    s_cbranch_scc1 {E}
    s_cmp_lg_u32 s{sE}, 0
    s_cbranch_scc1 {E}
    buffer_load_dwordx2 {vr(vt+2,2)}, v{vt}, {sr(SDBG,4)}, 0 offen sc1
    s_branch {L}
    """)
    a.lab(E)
def publish(a, soff, vt):
    a(f"""
    v_mov_b32 v{vt}, s{sE}
    v_mov_b32 v{vt+1}, s{sE+1}
    v_mov_b32 v{vt+2}, 0
    s_mov_b64 exec, 1
    buffer_store_dwordx2 {vr(vt,2)}, v{vt+2}, {sr(SWS,4)}, s{soff} offen sc1
    s_mov_b64 exec, -1
    """)
def poll(a, nl, voff, soff, vt):
    L = a.uniq("pl"); E = a.uniq("ple")
    a(f"s_mov_b32 exec_lo, {((1<<nl)-1) & 0xffffffff:#x}")
    a(f"s_mov_b32 exec_hi, {((1<<nl)-1) >> 32:#x}")
    a("s_mov_b32 s14, 0")
    a.lab(L)
    a(f"""
    buffer_load_dwordx2 {vr(vt,2)}, v{voff}, {sr(SWS,4)}, s{soff} offen sc1
    s_add_u32 s14, s14, 1
    s_waitcnt vmcnt(0)
    v_cmp_eq_u64 vcc, {sr(sE,2)}, {vr(vt,2)}
    s_cmp_gt_u32 s14, 0x40000
    s_cbranch_scc1 {E}
    s_cmp_eq_u64 vcc, exec
    s_cbranch_scc1 {E}
    s_sleep {OPT.get("PSLEEP", 3)}
    s_branch {L}
    """)
    a.lab(E)
    a("s_mov_b64 exec, -1")

def poll4(a, nl, voff, soff, vt):
    L = a.uniq("pl"); E = a.uniq("ple")
    a(f"s_mov_b32 exec_lo, {((1<<nl)-1) & 0xffffffff:#x}")
    a(f"s_mov_b32 exec_hi, {((1<<nl)-1) >> 32:#x}")
    a("s_mov_b32 s14, 0")
    a.lab(L)
    a(f"""
    buffer_load_dwordx4 {vr(vt,4)}, v{voff}, {sr(SWS,4)}, s{soff} offen sc1
    s_add_u32 s14, s14, 1
    s_waitcnt vmcnt(0)
    v_cmp_eq_u64 vcc, {sr(sE,2)}, {vr(vt,2)}
    v_cmp_eq_u64 s[{sT-1}:{sT}], {sr(sE,2)}, {vr(vt+2,2)}
    s_cmp_gt_u32 s14, 0x40000
    s_cbranch_scc1 {E}
    s_and_b64 vcc, vcc, s[{sT-1}:{sT}]
    s_cmp_eq_u64 vcc, exec
    s_cbranch_scc1 {E}
    s_sleep {OPT.get("PSLEEP", 3)}
    s_branch {L}
    """)
    a.lab(E)
    a("s_mov_b64 exec, -1")

def gen(a):
    NB = OPT["NB"]
    a.l.append(f".globl {NAME}")
    a.l.append(".p2align 8")
    a.l.append(f".type {NAME},@function")
    a.lab(NAME)
    a(f"""
    s_cmp_ge_u32 s2, 256
    s_cbranch_scc1 k_end
    s_load_dwordx16 s[16:31], s[0:1], 0
    s_load_dwordx4 s[32:35], s[0:1], 64
    """)
    if PROF:
        for i in range(1, 11):
            a(f"s_mov_b64 s[{80+2*i}:{81+2*i}], 0")
        stamp(a, 0)
    VXO = 20
    XA = 8
    a(f"""
    v_lshrrev_b32 v1, 6, v0
    v_and_b32 v0, 63, v0
    s_and_b32 s{sX}, s2, 7
    s_lshr_b32 s{sIdx}, s2, 3
    v_readfirstlane_b32 s{sW}, v1
    s_and_b32 s{sMB}, s{sX}, 1
    s_lshl_b32 s{sMB}, s{sMB}, 3
    s_and_b32 s3, s{sIdx}, 7
    s_add_u32 s{sMB}, s{sMB}, s3
    s_lshr_b32 s{sJ}, s{sX}, 1
    s_lshl_b32 s{sJ}, s{sJ}, 2
    s_lshr_b32 s3, s{sIdx}, 3
    s_add_u32 s{sJ}, s{sJ}, s3
    v_lshrrev_b32 v14, 3, v0
    v_mul_u32_u24 v14, 896, v14
    v_lshrrev_b32 v15, 4, v0
    v_and_b32 v1, 7, v0
    v_xor_b32 v15, v15, v1
    v_lshl_add_u32 v{VXO}, v15, 4, v14
    v_xor_b32 v15, 4, v15
    v_lshl_add_u32 v{VXO+1}, v15, 4, v14
    v_add_u32 v{VXO+2}, {2*6144}, v{VXO}
    v_add_u32 v{VXO+3}, {3*6144}, v{VXO+1}
    v_add_u32 v{VXO+1}, 6144, v{VXO+1}
    s_and_b32 s4, s{sW}, 3
    s_lshl_b32 s3, s{sMB}, 7
    s_lshl_b32 s6, s4, 5
    s_add_u32 s3, s3, s6
    s_mul_i32 s5, s3, 896
    s_and_b32 s3, s{sJ}, 3
    s_lshl_b32 s3, s3, 1
    s_and_b32 s11, s{sMB}, 7
    s_add_u32 s11, s11, s3
    s_cmp_ge_u32 s11, 7
    s_cselect_b32 s3, 7, 0
    s_sub_u32 s11, s11, s3
    s_mul_i32 s11, s11, {OPT.get("ROT", 1)}
    s_lshl_b32 s3, s11, 7
    s_add_u32 s5, s5, s3
    s_mov_b32 s15, s11
    s_lshl_b32 s6, s4, 12
    s_add_u32 s6, s6, {XBASE}
    v_and_b32 v2, 31, v0
    v_lshrrev_b32 v3, 5, v0
    v_bfe_u32 v4, v0, 2, 2
    v_bfe_u32 v5, v0, 4, 1
    v_and_b32 v6, 3, v0
    v_lshlrev_b32 v7, 4, v0
    """)
    VQO = 16
    a(f"s_mul_i32 s3, s{sJ}, 56")
    a(f"s_and_b32 s3, s3, -16")
    for i in range(3):
        a(f"""
        v_add_u32 v1, {64*i}, v0
        v_mul_u32_u24 v14, 43691, v1
        v_lshrrev_b32 v14, 19, v14
        v_mul_u32_u24 v15, 12, v14
        v_sub_u32 v1, v1, v15
        v_mul_u32_u24 v14, 2688, v14
        v_lshrrev_b32 v15, 2, v1
        v_mul_u32_u24 v15, 896, v15
        v_add_u32 v14, v14, v15
        v_and_b32 v1, 3, v1
        v_lshl_add_u32 v14, v1, 4, v14
        v_add_u32 v14, s3, v14
        v_subrev_u32 v{VQO+i}, {1024*i}, v14
        """)
    a(f"""
    s_cmp_lt_u32 s{sW}, 4
    s_mov_b32 s{sW}, s4
    s_waitcnt lgkmcnt(0)
    s_cbranch_scc1 k_A
    """)
    srd(a, SX, 16, S*D*2)
    def xdma(c):
        a(f"s_mov_b32 m0, s6")
        a(f"s_add_u32 s6, s6, 16384")
        for i in range(4):
            a(f"buffer_load_dwordx4 v{VXO+i}, {sr(SX,4)}, s5 offen offset:{1024*i} lds")
    def xa_setup():
        a(f"v_bfe_u32 v14, v0, 1, 3")
        a(f"v_lshlrev_b32 v15, 7, v2")
        for kk in range(4):
            a(f"v_add_u32 v1, {2*kk}, v3")
            a(f"v_xor_b32 v1, v1, v14")
            a(f"v_lshl_add_u32 v{XA+kk}, v1, 4, v15")
    VQO = 16
    GF = 112; AG = 48; XG = 64
    xdma(0)
    a(f"""
    s_cmp_lg_u32 s{sJ}, 14
    s_cbranch_scc1 k_F_nog
    v_lshlrev_b32 v14, 4, v3
    """)
    srd(a, SG, 28, D*2)
    a("s_mov_b32 s9, s11")
    for c in range(7):
        a("s_lshl_b32 s10, s9, 7")
        for kk in range(4):
            a(f"buffer_load_dwordx4 {vr(GF+4*(4*c+kk),4)}, v14, {sr(SG,4)}, s10 offen offset:{kk*32}")
        a("""
        s_add_u32 s9, s9, 1
        s_cmp_eq_u32 s9, 7
        s_cselect_b32 s9, 0, s9
        """)
    a.lab("k_F_nog")
    srd(a, SWQ, 18, D*3*D*2)
    a(f"""
    s_mul_i32 s7, s{sW}, {16*2688}
    s_mul_i32 s3, s11, {64*2688}
    s_add_u32 s7, s7, s3
    s_mul_i32 s8, s{sW}, 3072
    """)
    def qdma():
        a(f"s_mov_b32 m0, s8")
        a(f"s_add_u32 s8, s8, {QSLOT}")
        for i in range(3):
            a(f"buffer_load_dwordx4 v{VQO+i}, {sr(SWQ,4)}, s7 offen offset:{1024*i} lds")
        a(f"""
        s_add_u32 s15, s15, 1
        s_cmp_eq_u32 s15, 7
        s_cselect_b32 s3, 7, 0
        s_sub_u32 s15, s15, s3
        s_sub_u32 s3, 1, s3
        s_lshl_b32 s14, s3, 7
        s_add_u32 s5, s5, s14
        s_mul_i32 s14, s3, {64*2688}
        s_add_u32 s7, s7, s14
        """)
    qdma()
    for c in range(1, 3):
        xdma(c); qdma()
    stamp(a, 1, pv=1)
    srd(a, SWS, 34, WS_SIZE)
    srd(a, SDBG, 32, 256)
    srd(a, SW1, 24, D*F*2)
    xa_setup()
    a(f"""
    s_cmp_eq_u32 s{sJ}, 14
    s_cbranch_scc1 k_gate
    """)
    AF = 48
    W1R = 112
    XF = [16, 32, 224]
    WFr = [240, 244]
    TR0 = 12; TW0 = 13
    for kk in range(4):
        a(f"v_add_u32 v{XA+kk}, {XBASE}, v{XA+kk}")
    a(f"""
    v_lshrrev_b32 v14, 2, v0
    v_mul_u32_u24 v14, 3584, v14
    v_lshl_add_u32 v14, v6, 4, v14
    s_lshl_b32 s9, s{sJ}, 2
    s_add_u32 s9, s9, s{sW}
    s_lshl_b32 s10, s9, 6
    s_mul_i32 s3, s11, {64*3584}
    s_add_u32 s10, s10, s3
    s_sub_u32 s10, s10, {16*3584}
    s_cmp_lt_u32 s{sJ}, 14
    s_cselect_b32 s{SW1+2}, {D*F*2}, 0
    v_lshl_add_u32 v15, v3, 3, v4
    v_lshlrev_b32 v15, 6, v15
    v_lshl_add_u32 v15, v5, 5, v15
    v_lshl_add_u32 v15, v6, 3, v15
    s_lshl_b32 s4, s{sW}, 11
    s_add_u32 s4, s4, {W1E}
    v_add_u32 v{TR0}, s4, v15
    v_add_u32 v{TW0}, s4, v7
    """)
    for i in range(64):
        a(f"v_mov_b32 v{AF+i}, 0")
    def fstage_waits(extra):
        allow = [21, 16, 14, 12, 34, 31, 28]
        return allow
    def w1load(i):
        a(f"s_add_u32 s10, s10, {16*3584}")
        a(f"buffer_load_dwordx4 {vr(W1R+4*i,4)}, v14, {sr(SW1,4)}, s10 offen")
        if i % 4 == 3:
            a(f"""
            s_add_u32 s11, s11, 1
            s_cmp_eq_u32 s11, 7
            s_cselect_b32 s3, {448*3584}, 0
            s_sub_u32 s10, s10, s3
            """)
    allow = [14, 14, 14, 18, 24, 25, 28]
    for c in range(7):
        a(f"s_waitcnt vmcnt({allow[c]})")
        a("s_barrier")
        if c == 0: stamp(a, 1)
        stamp(a, 2+c, pv=1)
        if c <= 3:
            xdma(c+3); qdma()
            if c == 0: a(f"s_sub_u32 s8, s8, {4*QSLOT}")
            if c == 1: stamp(a, 9, pv=1)
        if 2 <= c <= 5:
            for i in {2: range(0, 4), 3: range(4, 10), 4: range(10, 18), 5: range(18, 28)}[c]:
                w1load(i)
        if c == 4:
            a(f"""
            v_lshlrev_b32 v1, 2, v0
            v_add_u32 v1, {LCNT}, v1
            v_mov_b32 v15, 0
            ds_write_b32 v1, v15
            s_waitcnt lgkmcnt(0)
            """)
    stamp(a, 2)
    stamp(a, 1, pv=2)
    stamp(a, 10, pv=1)
    a(f"s_setprio {OPT['PRIO_F']}")
    a(f"""
    s_cmp_eq_u32 s{sJ}, 15
    s_cbranch_scc1 k_f1_done
    """)
    w1n = [28]
    def f_stage_l(i):
        return [f"s_waitcnt vmcnt({w1n[0]-1-i})", f"ds_write_b128 v{TW0}, {vr(W1R+4*i,4)} offset:{1024*(i%2)}"]
    def f_xreads_l(i):
        b = XF[i % 3]
        c, kk = i // 4, i % 4
        return [f"ds_read_b128 {vr(b+4*mt,4)}, v{XA+kk} offset:{(c%4)*16384+4096*mt}" for mt in range(4)]
    def f_wreads_l(i):
        w = WFr[i % 2]
        return [f"ds_read_b64_tr_b16 {vr(w+2*u,2)}, v{TR0} offset:{1024*(i%2)+256*u}" for u in range(2)]
    def f_mfma_l(i):
        b = XF[i % 3]; w = WFr[i % 2]
        return [f"{MFMA} {vr(AF+16*mt,16)}, {vr(w,4)}, {vr(b+4*mt,4)}, {vr(AF+16*mt,16)}" for mt in range(4)]
    stamp(a, 1, pv=3); stamp(a, 2, True, pv=3); stamp(a, 1, True, pv=4)
    for x in f_stage_l(0) + f_xreads_l(0) + f_wreads_l(0) + f_stage_l(1) + f_xreads_l(1): a(x)
    for t in range(28):
        n = 5 if t + 1 < 28 else 0
        a(f"s_waitcnt lgkmcnt({n})")
        if t in (0, 7, 14, 21): stamp(a, 2 + t//7, pv=2)
        if t in (0,2,4,6,8,12,16,20,24): stamp(a, 2+(0,2,4,6,8,12,16,20,24).index(t), True, pv=4)
        if t == 4: stamp(a, 3, True, pv=3)
        if t == 18: stamp(a, 4, True, pv=3)
        M = f_mfma_l(t)
        Wr = f_wreads_l(t+1) if t + 1 < 28 else []
        R = f_xreads_l(t+2) if t + 2 < 28 else []
        if t + 2 == 16:
            for k2 in range(4):
                a(f"v_add_u32 v{XA+k2}, 0x10000, v{XA+k2}")
        a(M[0])
        for x in Wr: a(x)
        a(M[1])
        for x in R[0:2]: a(x)
        a(M[2])
        for x in R[2:4]: a(x)
        if t >= OPT.get("W1T", 5) and w1n[0] < 28:
            w1load(w1n[0]); w1load(w1n[0]+1); w1n[0] += 2
        a(M[3])
        St = f_stage_l(t+2) if t + 2 < 28 else []
        for x in St: a(x)
    stamp(a, 3)
    stamp(a, 6, pv=2)
    stamp(a, 5, pv=3); stamp(a, 6, True, pv=3)
    lds_wait(a, C_Q, 4, 12, 13, sleep=1)
    lds_add(a, C_F1, 12, 13)
    nonce_issue(a, 232)
    a(f"""
    s_mov_b32 s4, {f2u(-LOG2E):#x}
    s_mov_b32 s5, {f2u(-LOG2E):#x}
    s_mov_b32 s6, 1.0
    s_mov_b32 s7, 1.0
    s_lshl_b32 s3, s{sMB}, 2
    s_mul_i32 s3, s3, 56
    s_add_u32 s3, s3, s9
    s_lshl_b32 s3, s3, 11
    s_add_u32 s8, s3, {WS_HF}
    s_lshl_b32 s3, s{sMB}, 9
    s_lshl_b32 s10, s9, 3
    s_add_u32 s10, s10, s3
    s_add_u32 s10, s10, {FL_H}
    """)
    T = 16
    for mt in range(4):
        acc = AF + 16*mt
        HP = 32 + 8*(mt & 1)
        for g in range(2):
            prs = [4*g+i for i in range(4)]
            if OPT.get("PK", 0):
                for i, p in enumerate(prs):
                    a(f"v_pk_mul_f32 {vr(T+2*i,2)}, {vr(acc+2*p,2)}, s[4:5]")
                for i in range(8):
                    a(f"v_exp_f32 v{T+i}, v{T+i}")
                for i in range(4):
                    a(f"v_pk_add_f32 {vr(T+2*i,2)}, {vr(T+2*i,2)}, s[6:7]")
                for i in range(8):
                    a(f"v_rcp_f32 v{T+i}, v{T+i}")
                for i, p in enumerate(prs):
                    a(f"v_pk_mul_f32 {vr(T+2*i,2)}, {vr(acc+2*p,2)}, {vr(T+2*i,2)}")
            else:
                for i in range(8):
                    a(f"v_mul_f32 v{T+i}, s4, v{acc+8*g+i}")
                for i in range(8):
                    a(f"v_exp_f32 v{T+i}, v{T+i}")
                for i in range(8):
                    a(f"v_add_f32 v{T+i}, 1.0, v{T+i}")
                for i in range(8):
                    a(f"v_rcp_f32 v{T+i}, v{T+i}")
                for i in range(8):
                    a(f"v_mul_f32 v{T+i}, v{acc+8*g+i}, v{T+i}")
            for i, p in enumerate(prs):
                a(f"v_cvt_pk_bf16_f32 v{HP+p}, v{T+2*i}, v{T+2*i+1}")
            a(f"buffer_store_dwordx4 {vr(HP+4*g,4)}, v7, {sr(SWS,4)}, s8 offen offset:{g*1024} sc1")
        a(f"s_add_u32 s8, s8, {56*2048}")
    stamp(a, 4)
    stamp(a, 7, pv=2)
    stamp(a, 7, pv=3); stamp(a, 8, True, pv=3)
    nonce_get(a, 232)
    publish(a, 10, 16)
    a("s_branch k_ffn2")
    a.lab("k_gate")
    a(f"""
    s_lshl_b32 s3, s{sW}, 12
    s_add_u32 s3, s3, {XBASE}
    """)
    for kk in range(4):
        a(f"v_add_u32 v{XA+kk}, s3, v{XA+kk}")
    for i in range(16):
        a(f"v_mov_b32 v{AG+i}, 0")
    gallow = [14, 14, 14, 14, 14, 7, 0]
    for c in range(7):
        a(f"s_waitcnt vmcnt({gallow[c]})")
        a("s_barrier")
        if c <= 3:
            xdma(c+3); qdma()
            if c == 0: a(f"s_sub_u32 s8, s8, {4*QSLOT}")
        if c == 6:
            nonce_issue(a, 232)
        for kk in range(4):
            a(f"ds_read_b128 {vr(XG+4*kk,4)}, v{XA+kk}")
            a(f"v_add_u32 v{XA+kk}, 0x4000, v{XA+kk}")
        if c == 4:
            a(f"""
            v_lshlrev_b32 v1, 2, v0
            v_add_u32 v1, {LCNT}, v1
            v_mov_b32 v15, 0
            ds_write_b32 v1, v15
            s_waitcnt lgkmcnt(0)
            """)
        for kk in range(4):
            a(f"s_waitcnt lgkmcnt({3-kk})")
            a(f"{MFMA} {vr(AG,16)}, {vr(GF+4*(4*c+kk),4)}, {vr(XG+4*kk,4)}, {vr(AG,16)}")
    a(f"""
    s_lshl_b32 s3, s{sMB}, 9
    s_lshl_b32 s4, s{sW}, 7
    s_add_u32 s4, s3, s4
    s_add_u32 s4, s4, {WS_G}
    s_lshl_b32 s10, s{sW}, 3
    s_add_u32 s10, s10, s3
    s_add_u32 s10, s10, {FL_H + 56*8}
    v_lshlrev_b32 v13, 2, v2
    s_nop 7
    v_mul_f32 v14, {f2u(-LOG2E):#x}, v{AG}
    v_exp_f32 v14, v14
    s_nop 0
    v_add_f32 v14, 1.0, v14
    v_rcp_f32 v14, v14
    s_nop 0
    buffer_store_dword v14, v13, {sr(SWS,4)}, s4 offen sc1
    """)
    nonce_get(a, 232)
    publish(a, 10, 16)
    lds_wait(a, C_Q, 4, 1, 15, sleep=1)
    lds_add(a, C_F1, 12, 13)
    a("s_branch k_ffn2")
    a.lab("k_f1_done")
    lds_wait(a, C_Q, 4, 12, 13, sleep=1)
    lds_add(a, C_F1, 12, 13)
    nonce_issue(a, 232)
    nonce_get(a, 232)
    a.lab("k_ffn2")
    stamp(a, 5)
    ACC = 16; WOF = 112; OFR = 176
    FD = OPT.get("FD", 3)
    HBr = [112 + 16*i for i in range(FD)]
    WF2 = [80, 96]
    VD = 8; TA = 14
    sRb, sCb, sM0, sWo, sHo, sHo1, sT3 = 4, 5, 6, 7, 8, 9, 11
    a(f"""
    s_cmp_ge_u32 s{sIdx}, {0 if OPT.get('NOF2') else 28}
    s_cbranch_scc1 k_f_done
    s_mul_i32 s3, s{sIdx}, 37
    s_lshr_b32 s3, s3, 8
    s_mul_i32 s{sT}, s3, 7
    s_sub_u32 s{sCb}, s{sIdx}, s{sT}
    s_lshl_b32 s{sRb}, s{sX}, 2
    s_add_u32 s{sRb}, s{sRb}, s3
    """)
    srd(a, SW2, 26, F*D*2)
    srd(a, SWO, 20, D*D*2)
    srd(a, SOUT, 30, S*D*2)
    a(f"""
    v_lshrrev_b32 v1, 3, v0
    v_mul_u32_u24 v1, 896, v1
    v_bfe_u32 v12, v0, 2, 1
    v_xor_b32 v12, v12, v5
    v_lshl_add_u32 v1, v12, 6, v1
    v_lshl_add_u32 v{VD}, v6, 4, v1
    v_add_u32 v{VD+1}, 6144, v{VD}
    v_add_u32 v{VD+2}, {2*6144}, v{VD}
    v_add_u32 v{VD+3}, {3*6144}, v{VD}
    s_mul_i32 s{sM0}, s{sW}, {RING}
    s_add_u32 s{sM0}, s{sM0}, {RING0}
    v_lshl_add_u32 v1, v3, 2, v4
    v_lshlrev_b32 v1, 7, v1
    v_lshl_add_u32 v1, v5, 5, v1
    v_lshl_add_u32 v1, v6, 3, v1
    v_add_u32 v1, s{sM0}, v1
    v_bfe_u32 v13, v0, 3, 1
    v_lshl_add_u32 v{TA}, v13, 6, v1
    v_xor_b32 v13, 1, v13
    v_lshl_add_u32 v{TA+1}, v13, 6, v1
    s_mul_i32 s{sWo}, s{sW}, {448*896}
    s_lshl_b32 s3, s{sCb}, 7
    s_add_u32 s{sWo}, s{sWo}, s3
    s_mul_i32 s3, s{sRb}, 112
    s_mul_i32 s{sT}, s{sW}, 14
    s_add_u32 s3, s3, s{sT}
    s_lshl_b32 s3, s3, 11
    s_add_u32 s{sHo}, s3, {WS_HF}
    s_add_u32 s{sHo1}, s{sHo}, {56*2048}
    s_mov_b32 s{sT3}, s{sM0}
    """)
    a(f"""
    s_and_b32 s3, s{sRb}, 1
    s_lshl_b32 s3, s3, 4
    v_lshlrev_b32 v1, 4, v0
    v_add_u32 v13, s3, v1
    v_cmp_gt_u32 vcc, 28, v0
    s_lshr_b32 s3, s{sRb}, 1
    s_lshl_b32 s3, s3, 9
    v_cndmask_b32 v1, v13, v1, vcc
    s_add_u32 s10, s3, {FL_H}
    v_mul_u32_u24 v4, 7, v0
    v_add_u32 v4, s{sCb}, v4
    v_cmp_le_u32 vcc, 224, v4
    v_lshlrev_b32 v4, 7, v4
    v_add_u32 v5, {56*2048 - 224*128}, v4
    v_lshlrev_b32 v6, 2, v2
    v_cndmask_b32 v4, v4, v5, vcc
    """)
    for i in range(64):
        a(f"v_mov_b32 v{ACC+i}, 0")
    lds_wait(a, C_F1, 4, 80, 81, sleep=1)
    def wdma_l(i):
        L = [f"s_add_u32 m0, s{sM0}, {4096*(i % (FD+1))}\n s_nop 0\n buffer_load_dwordx4 v{VD}, {sr(SW2,4)}, s{sWo} offen lds"]
        for k in range(1, 4):
            L.append(f"buffer_load_dwordx4 v{VD+k}, {sr(SW2,4)}, s{sWo} offen offset:{1024*k} lds")
        L[-1] += f"\n s_add_u32 s{sWo}, s{sWo}, {32*896}"
        return L
    def hld_l(i):
        hb = HBr[i % FD]
        L = []
        for kk in range(2):
            for mi in range(2):
                L.append(f"buffer_load_dwordx4 {vr(hb+8*mi+4*kk,4)}, v7, {sr(SWS,4)}, s{sHo if mi == 0 else sHo1} offen offset:{2048*(i%2)+1024*kk} sc1")
        if i % 2 == 1:
            L[-1] += f"\n s_add_u32 s{sHo}, s{sHo}, 4096\n s_add_u32 s{sHo1}, s{sHo1}, 4096"
        return L
    def tread_list(dst, off):
        L = []
        for kk in range(2):
            for ni in range(2):
                for u in range(2):
                    L.append(f"ds_read_b64_tr_b16 {vr(dst(ni,kk)+2*u,2)}, v{TA+ni} offset:{off+(16*kk+8*u)*128}")
        return L
    def treads(dst, off):
        for x in tread_list(dst, off): a(x)
    for i in range(FD):
        for x in wdma_l(i): a(x)
    a(f"""
    s_cmp_lg_u32 s{sW}, 0
    s_cbranch_scc1 k_f_w
    """)
    poll4(a, 29, 1, 10, 80)
    lds_add(a, C_H, 80, 81)
    a("s_branch k_f_go")
    a.lab("k_f_w")
    lds_wait(a, C_H, 1, 80, 81, sleep=2)
    a.lab("k_f_go")
    stamp(a, 6)
    a(f"s_setprio {OPT.get('PRIO_F2', 0)}")
    a(f"""
    s_lshl_b32 s3, s{sRb}, 8
    s_add_u32 s3, s3, {WS_G}
    """)
    ops = []
    for x in hld_l(0): a(x); ops.append(("h", 0))
    if OPT["TOUCH"]:
        a(f"buffer_load_dword v5, v4, {sr(SWS,4)}, s{sHo} offen sc1"); ops.append(("t", 0))
    for i in range(1, FD):
        for x in hld_l(i): a(x); ops.append(("h", i))
    a(f"buffer_load_dword v1, v6, {sr(SWS,4)}, s3 offen sc1"); ops.append(("g", 0))
    a(f"buffer_load_dword v13, v6, {sr(SWS,4)}, s3 offen offset:128 sc1"); ops.append(("g", 0))
    def newer(tag):
        idx = [k for k, o in enumerate(ops) if o == tag]
        return len(ops) - 1 - idx[-1] if idx else None
    treads(lambda ni,kk: WF2[0]+8*ni+4*kk, 0) if False else None
    a(f"s_waitcnt vmcnt({len(ops)})")
    treads(lambda ni,kk: WF2[0]+8*ni+4*kk, 0)
    for i in range(14):
        b = i % 2
        need = [newer(("h", i))]
        if i + 1 < 14 and newer(("w", i+1)) is not None: need.append(newer(("w", i+1)))
        a(f"s_waitcnt vmcnt({min(need)}) lgkmcnt(0)")
        rl = tread_list(lambda ni,kk: WF2[1-b]+8*ni+4*kk, 4096*((i+1) % (FD+1))) if i + 1 < 14 else []
        wl = wdma_l(i+FD) if i + FD < 14 else []
        hl_ = hld_l(i+FD) if i + FD < 14 else []
        m = 0
        for kk in range(2):
            for mi in range(2):
                for ni in range(2):
                    acc = ACC + 16*(2*mi+ni)
                    hb = HBr[i % FD]
                    a(f"{MFMA} {vr(acc,16)}, {vr(WF2[b]+8*ni+4*kk,4)}, {vr(hb+8*mi+4*kk,4)}, {vr(acc,16)}")
                    if rl and m < 4:
                        a(rl[2*m]); a(rl[2*m+1])
                    if wl and m < 4:
                        a(wl[m]); ops.append(("w", i+FD))
                    if hl_ and m in (4, 5):
                        a(hl_[m-4]); ops.append(("h", i+FD))
                    if hl_ and m == 7:
                        a(hl_[2]); a(hl_[3]); ops.append(("h", i+FD)); ops.append(("h", i+FD))
                    m += 1
    a("s_waitcnt vmcnt(0) lgkmcnt(0)")
    stamp(a, 7)
    a("s_setprio 2")
    a(f"""
    s_mul_i32 s{sWo}, s{sW}, {4*28*896}
    s_lshl_b32 s3, s{sCb}, 7
    s_add_u32 s{sWo}, s{sWo}, s3
    s_mov_b32 s{sM0}, s{sT3}
    """)
    for hl in range(4):
        a(f"s_mov_b32 m0, s{sM0}")
        a(f"s_add_u32 s{sM0}, s{sM0}, 4096")
        for i in range(4):
            a(f"buffer_load_dwordx4 v{VD+i}, {sr(SWO,4)}, s{sWo} offen offset:{1024*i} lds")
        a(f"s_add_u32 s{sWo}, s{sWo}, {28*896}")
    a(f"""
    v_sub_f32 v4, 1.0, v1
    v_sub_f32 v6, 1.0, v13
    """)
    for mi in range(2):
        for r in range(32):
            a(f"v_mul_f32 v{ACC+32*mi+r}, v{4+2*mi}, v{ACC+32*mi+r}")
    a(f"""
    v_lshrrev_b32 v1, 2, v0
    v_lshlrev_b32 v1, 7, v1
    v_and_b32 v13, 3, v0
    v_lshl_add_u32 v1, v13, 3, v1
    s_lshl_b32 s3, s{sRb}, 8
    s_lshl_b32 s{sT}, s{sW}, 5
    s_add_u32 s3, s3, s{sT}
    s_add_u32 s{sT}, s3, {FL_O}
    s_lshl_b32 s3, s{sRb}, 5
    s_lshl_b32 s{sHo}, s{sW}, 2
    s_add_u32 s3, s3, s{sHo}
    s_lshl_b32 s3, s3, 11
    s_add_u32 s{sHo}, s3, {WS_OF}
    s_add_u32 s{sWo}, s{sHo}, 32768
    s_waitcnt vmcnt(0)
    """)
    for hl in range(4):
        treads(lambda ni,kk: WOF+16*hl+8*kk+4*ni, 4096*hl)
        a("s_waitcnt lgkmcnt(4)")
    a("s_waitcnt lgkmcnt(0)")
    stamp(a, 8)
    lds_wait(a, C_A2, 4, 8, 9, sleep=2)
    a("s_setprio 3")
    poll(a, 8, 1, sT, 8)
    stamp(a, 9)
    for hl in range(4):
        if hl == 2:
            a(f"s_add_u32 s{sHo}, s{sHo}, 4096")
            a(f"s_add_u32 s{sWo}, s{sWo}, 4096")
        for kk in range(2):
            for mi in range(2):
                so = sHo if mi == 0 else sWo
                a(f"buffer_load_dwordx4 {vr(OFR+16*hl+8*kk+4*mi,4)}, v7, {sr(SWS,4)}, s{so} offen offset:{2048*(hl&1)+1024*kk} sc1")
    n = 16
    for hl in range(4):
        for kk in range(2):
            n -= 2
            a(f"s_waitcnt vmcnt({n})")
            for mi in range(2):
                for ni in range(2):
                    acc = ACC + 16*(2*mi+ni)
                    a(f"{MFMA} {vr(acc,16)}, {vr(WOF+16*hl+8*kk+4*ni,4)}, {vr(OFR+16*hl+8*kk+4*mi,4)}, {vr(acc,16)}")
    a(f"""
    v_add_u32 v4, s{sT3}, v7
    s_lshl_b32 s3, s{sW}, 12
    s_add_u32 s3, s3, {RING0}
    v_add_u32 v5, s3, v7
    s_nop 7
    """)
    RR = 80
    for wv in range(4):
        a(f"s_cmp_lg_u32 s{sW}, {wv}")
        a(f"s_cbranch_scc1 k_red{wv}_skip")
        for t in range(4):
            if t == wv: continue
            for r4 in range(4):
                a(f"ds_write_b128 v4, {vr(ACC+16*t+4*r4,4)} offset:{4096*t+1024*r4}")
        for r in range(16):
            a(f"v_mov_b32 v{128+r}, v{ACC+16*wv+r}")
        a.lab(f"k_red{wv}_skip")
    lds_add(a, C_RED, 8, 9)
    a(f"""
    s_lshr_b32 s3, s{sW}, 1
    s_lshl_b32 s3, s3, 5
    s_lshl_b32 s{sT}, s{sRb}, 6
    s_add_u32 s3, s3, s{sT}
    s_mul_i32 s3, s3, 896
    s_lshl_b32 s{sT}, s{sCb}, 7
    s_add_u32 s3, s3, s{sT}
    s_and_b32 s{sT}, s{sW}, 1
    s_lshl_b32 s{sT}, s{sT}, 6
    s_add_u32 s{sT}, s3, s{sT}
    v_mul_u32_u24 v4, 896, v2
    v_lshrrev_b32 v6, 5, v0
    v_lshl_add_u32 v4, v6, 4, v4
    """)
    lds_wait(a, C_RED, 4, 8, 9)
    for i in range(3):
        a(f"""
        s_add_u32 s3, s{sW}, {1+i}
        s_and_b32 s3, s3, 3
        s_mul_i32 s3, s3, {RING}
        v_add_u32 v6, s3, v5
        """)
        for r4 in range(4):
            a(f"ds_read_b128 {vr(RR+16*i+4*r4,4)}, v6 offset:{1024*r4}")
    for i in range(3):
        a(f"s_waitcnt lgkmcnt({8-4*i})")
        for p in range(8):
            a(f"v_pk_add_f32 {vr(128+2*p,2)}, {vr(128+2*p,2)}, {vr(RR+16*i+2*p,2)}")
    for p in range(8):
        a(f"v_cvt_pk_bf16_f32 v{16+p}, v{128+2*p}, v{128+2*p+1}")
    a(f"""
    s_nop 1
    v_permlane32_swap_b32 v16, v18
    v_permlane32_swap_b32 v17, v19
    v_permlane32_swap_b32 v20, v22
    v_permlane32_swap_b32 v21, v23
    buffer_store_dwordx4 v[16:19], v4, {sr(SOUT,4)}, s{sT} offen
    buffer_store_dwordx4 v[20:23], v4, {sr(SOUT,4)}, s{sT} offen offset:32
    """)
    if PROF:
        a("s_waitcnt vmcnt(0)"); stamp(a, 10)
    a.lab("k_f_done")
    flush(a, 4)
    a("s_endpgm")
    a.lab("k_A")
    if OPT.get("CPF", 0):
        a(f"""
        s_getpc_b64 s[8:9]
        k_pc0:
        s_sub_u32 s64, s8, k_pc0-{NAME}
        s_subb_u32 s65, s9, 0
        s_mov_b32 s66, k_code_end-{NAME}
        s_mov_b32 s67, 0x00020000
        s_lshl_b32 s3, s{sW}, 13
        v_lshlrev_b32 v14, 7, v0
        buffer_load_dword v28, v14, s[64:67], s3 offen
        """)
    a(f"s_setprio 3")
    srd(a, SWS, 34, WS_SIZE)
    srd(a, SDBG, 32, 256)
    if OPT.get("TLB", 0):
        srd(a, SW2, 26, F*D*2)
        srd(a, SWO, 20, D*D*2)
        srd(a, SOUT, 30, S*D*2)
        sh = OPT.get("TLBSH", 21)
        a(f"""
        v_lshlrev_b32 v14, {sh}, v0
        s_lshl_b32 s3, s{sW}, {sh+6}
        buffer_load_dword v24, v14, {sr(SWS,4)}, s3 offen sc1
        buffer_load_dword v25, v14, {sr(SW2,4)}, s3 offen
        buffer_load_dword v26, v14, {sr(SWO,4)}, s3 offen
        buffer_load_dword v27, v14, {sr(SOUT,4)}, s3 offen sc1
        """)
    a(f"""
    s_or_b32 s3, s2, s{sW}
    s_cmp_lg_u32 s3, 0
    s_cbranch_scc1 k_A_nonce_done
    s_memrealtime s[8:9]
    v_mov_b32 v14, 0
    s_waitcnt lgkmcnt(0)
    s_or_b32 s8, s8, 1
    v_mov_b32 v18, s8
    v_mov_b32 v19, s9
    s_mov_b64 exec, 1
    buffer_store_dwordx2 v[18:19], v14, {sr(SDBG,4)}, 0 offen sc1
    s_mov_b64 exec, -1
    s_waitcnt vmcnt(0)
    """)
    a.lab("k_A_nonce_done")
    WB = 12
    QB = [32, 48, 128, 144]
    AQ, AK, AV = 64, 80, 96
    xa_setup()
    a(f"""
    s_lshl_b32 s3, s{sW}, 12
    s_add_u32 s3, s3, {XBASE}
    """)
    for kk in range(4):
        a(f"v_add_u32 v{XA+kk}, s3, v{XA+kk}")
    a(f"""
    v_lshl_add_u32 v14, v3, 3, v4
    v_mul_u32_u24 v14, 192, v14
    v_lshl_add_u32 v14, v5, 5, v14
    v_lshl_add_u32 v{WB}, v6, 3, v14
    s_and_b32 s3, s{sJ}, 1
    s_lshl_b32 s3, s3, 3
    v_add_u32 v{WB}, s3, v{WB}
    """)
    for i in range(48):
        a(f"v_mov_b32 v{AQ+i}, 0")
    if OPT["TOUCH"]:
        srd(a, SW1, 24, D*F*2)
        a(f"""
        s_and_b32 s7, s{sMB}, 7
        s_mul_i32 s7, s7, 56
        s_mul_i32 s9, s{sW}, 14
        s_add_u32 s7, s7, s9
        s_mul_i32 s8, s7, 3584
        s_lshl_b32 s9, s{sJ}, 8
        s_add_u32 s8, s8, s9
        v_lshrrev_b32 v13, 1, v0
        v_mul_u32_u24 v13, 3584, v13
        v_and_b32 v15, 1, v0
        v_lshl_add_u32 v13, v15, 7, v13
        v_lshl_add_u32 v13, v3, 30, v13
        """)
        srd(a, SW2, 26, F*D*2)
        srd(a, SWO, 20, D*D*2)
        a(f"""
        s_lshl_b32 s9, s{sIdx}, 2
        s_add_u32 s9, s9, s{sW}
        s_mul_i32 s10, s9, {25*128}
        s_mul_i32 s9, s9, {98*128}
        v_lshlrev_b32 v28, 7, v0
        v_add_u32 v29, 8192, v28
        v_cmp_gt_u32 vcc, 34, v0
        v_bfrev_b32 v15, 1
        v_mov_b32 v30, v28
        v_cndmask_b32 v29, v15, v29, vcc
        v_cmp_gt_u32 vcc, 25, v0
        s_nop 1
        v_cndmask_b32 v30, v15, v30, vcc
        """)
    def qread_list(buf, kk):
        b = QB[buf]
        L = [f"ds_read_b128 {vr(b,4)}, v{XA+kk}"]
        for t in range(3):
            for u in range(2):
                L.append(f"ds_read_b64_tr_b16 {vr(b+4+4*t+2*u,2)}, v{WB} offset:{(16*kk+4*u)*192+t*64}")
        L.append(f"v_add_u32 v{XA+kk}, 0x4000, v{XA+kk}")
        return L
    def qmfma_list(buf):
        b = QB[buf]
        return [f"{MFMA} {vr(AQ,16)}, {vr(b+4,4)}, {vr(b,4)}, {vr(AQ,16)}",
                f"{MFMA} {vr(AK,16)}, {vr(b+8,4)}, {vr(b,4)}, {vr(AK,16)}",
                f"{MFMA} {vr(AV,16)}, {vr(b,4)}, {vr(b+12,4)}, {vr(AV,16)}"]
    def qstep(mbuf, rbuf, rkk):
        M = qmfma_list(mbuf); R = qread_list(rbuf, rkk) if rkk is not None else []
        cuts = [0, 3, 5, 8]
        for i in range(3):
            a(M[i])
            for x in R[cuts[i]:cuts[i+1]]: a(x)
    stamp(a, 1)
    a(f"""
    v_mov_b32 v31, 0x3f803f80
    v_cmp_eq_u32 vcc, 28, v2
    s_nop 1
    v_cndmask_b32 v31, 0, v31, vcc
    """)
    a("s_barrier")
    stamp(a, 2)
    nonce_issue(a, 16)
    if OPT["TOUCH"]:
        a(f"buffer_load_dword v27, v13, {sr(SW1,4)}, s8 offen")
    a(f"s_mov_b32 s{sC}, 0")
    a(f"s_movk_i32 s{sK}, {QSLOT}")
    for x in qread_list(0, 0): a(x)
    for x in qread_list(1, 1): a(x)
    a.lab("k_qloop")
    a("s_waitcnt lgkmcnt(7)"); qstep(0, 2, 2)
    a("s_waitcnt lgkmcnt(7)"); qstep(1, 3, 3)
    a(f"""
    s_cmp_eq_u32 s{sC}, 3
    s_cselect_b32 s3, {-3*QSLOT}, s{sK}
    v_add_u32 v{WB}, s3, v{WB}
    s_add_u32 s{sC}, s{sC}, 1
    s_cmp_eq_u32 s{sC}, 7
    s_waitcnt lgkmcnt(0)
    s_cbranch_scc1 k_qtail
    s_barrier
    """)
    qstep(2, 0, 0)
    if OPT["TOUCH"]:
        a(f"""
        s_cmp_lg_u32 s{sC}, {OPT.get("TB", 99)}
        s_cbranch_scc1 k_q_not
        buffer_load_dword v24, v28, {sr(SW2,4)}, s9 offen
        buffer_load_dword v25, v29, {sr(SW2,4)}, s9 offen
        buffer_load_dword v26, v30, {sr(SWO,4)}, s10 offen
        k_q_not:
        """)
    qstep(3, 1, 1)
    a("s_branch k_qloop")
    a.lab("k_qtail")
    qstep(2, 0, None)
    qstep(3, 1, None)
    a("s_setprio 3")
    lds_add(a, C_Q, 14, 15)
    stamp(a, 3)
    QP, KP, VP = 32, 40, 48
    SD = 112
    sHead, sQb, sKo, sVo, sPass, sPub = sJ, sMB, 6, 8, 9, 10
    a(f"""
    s_lshl_b32 s3, s{sJ}, 6
    s_lshl_b32 s4, s{sMB}, 2
    s_add_u32 s3, s3, s4
    s_add_u32 s3, s3, s{sW}
    s_lshl_b32 s6, s3, 12
    s_add_u32 s6, s6, {WS_KV}
    s_lshl_b32 s7, s3, 3
    s_add_u32 s7, s7, {FL_KV}
    s_mov_b32 s8, {f2u(QSCALE):#x}
    s_mov_b32 s9, {f2u(QSCALE):#x}
    s_mov_b32 s10, 0x07060302
    """)
    for p in range(8):
        a(f"v_cvt_pk_bf16_f32 v{KP+p}, v{AK+2*p}, v{AK+2*p+1}")
    a(f"""
    s_mov_b32 exec_lo, 0
    v_mov_b32 v{KP+6}, 0x3f803f80
    v_mov_b32 v{KP+7}, 0x3f80
    s_mov_b64 exec, -1
    buffer_store_dwordx4 {vr(KP,4)}, v7, {sr(SWS,4)}, s6 offen sc1
    buffer_store_dwordx4 {vr(KP+4,4)}, v7, {sr(SWS,4)}, s6 offen offset:1024 sc1
    """)
    for p in range(8):
        a(f"v_cvt_pk_bf16_f32 v{VP+p}, v{AV+2*p}, v{AV+2*p+1}")
    a(f"""
    s_mov_b32 exec_lo, 0xf0000000
    s_mov_b32 exec_hi, 0xf0000000
    """)
    for p in range(8):
        a(f"v_mov_b32 v{VP+p}, v31")
    a(f"""
    s_mov_b64 exec, -1
    buffer_store_dwordx4 {vr(VP,4)}, v7, {sr(SWS,4)}, s6 offen offset:2048 sc1
    buffer_store_dwordx4 {vr(VP+4,4)}, v7, {sr(SWS,4)}, s6 offen offset:3072 sc1
    """)
    stamp(a, 4)
    stamp(a, 1, pv=5)
    for p in range(16):
        a(f"v_mul_f32 v{AQ+p}, s8, v{AQ+p}")
    for p in range(8):
        a(f"v_cvt_pk_bf16_f32 v{QP+p}, v{AQ+2*p}, v{AQ+2*p+1}")
    a(f"""
    s_mov_b32 exec_lo, 0
    v_mov_b32 v{QP+6}, 0
    v_mov_b32 v{QP+7}, 0
    s_mov_b64 exec, -1
    s_lshl_b32 s3, s{sW}, 11
    v_add_u32 v13, s3, v7
    {MFMA} {vr(SD,16)}, {vr(KP,4)}, {vr(QP,4)}, 0
    {MFMA} {vr(SD,16)}, {vr(KP+4,4)}, {vr(QP+4,4)}, {vr(SD,16)}
    s_nop 12
    v_max3_f32 v14, v{SD}, v{SD+1}, v{SD+2}
    v_max3_f32 v15, v{SD+3}, v{SD+4}, v{SD+5}
    v_max3_f32 v14, v14, v{SD+6}, v{SD+7}
    v_max3_f32 v15, v15, v{SD+8}, v{SD+9}
    v_max3_f32 v14, v14, v{SD+10}, v{SD+11}
    v_max3_f32 v15, v15, v{SD+12}, v{SD+13}
    v_max3_f32 v14, v14, v{SD+14}, v{SD+15}
    v_max_f32 v14, v14, v15
    v_mov_b32 v15, v14
    s_nop 1
    v_permlane32_swap_b32 v14, v15
    v_max_f32 v14, v14, v15
    v_sub_f32 v14, 0, v14
    v_and_b32 v15, 0xffff0000, v14
    v_sub_f32 v15, v14, v15
    v_and_b32 v12, 0xffff0000, v15
    v_sub_f32 v12, v15, v12
    s_mov_b32 exec_lo, 0
    v_perm_b32 v{QP+6}, v15, v14, s10
    v_lshrrev_b32 v{QP+7}, 16, v12
    s_mov_b64 exec, -1
    """)
    stamp(a, 2, pv=5)
    nonce_get(a, 16)
    stamp(a, 3, pv=5)
    publish(a, 7, 16)
    stamp(a, 5)
    a(f"""
    ds_write_b128 v13, {vr(QP,4)}
    ds_write_b128 v13, {vr(QP+4,4)} offset:1024
    """)
    lds_add(a, C_QX, 14, 15)
    stamp(a, 4, pv=5)
    Q = 8
    O = 40
    SB = [104, 120]
    PB = [136, 144]
    KVB = [152 + 16*i for i in range(NB)]
    VG = 3
    assert 152 + 16*NB <= 248
    a(f"""
    s_lshl_b32 s3, s{sHead}, 6
    s_lshl_b32 s11, s{sW}, 4
    s_add_u32 s3, s3, s11
    s_lshl_b32 s3, s3, 12
    s_add_u32 s3, s3, {WS_KV}
    s_add_u32 s{SKV}, s34, s3
    s_addc_u32 s{SKV+1}, s35, 0
    s_mov_b32 s{SKV+2}, 65536
    s_mov_b32 s{SKV+3}, 0x00020000
    s_mov_b32 s{sPass}, 0
    s_mov_b32 s{sPub}, 0
    """)
    a(f"""
    s_lshl_b32 s11, s{sHead}, 9
    s_lshl_b32 s3, s{sQb}, 9
    s_sub_u32 s3, s3, s11
    s_add_u32 s3, s3, {8192 + 56*8 - 32*16}
    v_lshlrev_b32 v216, 4, v0
    v_add_u32 v217, s3, v216
    v_cmp_gt_u32 vcc, 32, v0
    s_add_u32 s7, s11, {FL_KV}
    s_nop 0
    v_cndmask_b32 v216, v217, v216, vcc
    """)
    for i in range(8):
        a(f"v_mov_b32 v{KVB[NB-1]+8+i}, 0")
    for i in range(8):
        a(f"v_mov_b32 v{PB[1]+i}, 0")
    for i in range(64):
        a(f"v_mov_b32 v{O+i}, 0")
    if OPT.get("TB", 99) == 9:
        a(f"""
        s_lshl_b32 s3, s{sIdx}, 2
        s_add_u32 s3, s3, s{sW}
        s_mul_i32 s5, s3, {25*128}
        s_mul_i32 s4, s3, {98*128}
        buffer_load_dword v24, v28, {sr(SW2,4)}, s4 offen
        buffer_load_dword v25, v29, {sr(SW2,4)}, s4 offen
        buffer_load_dword v26, v30, {sr(SWO,4)}, s5 offen
        """)
    lds_wait(a, C_QX, 4, 218, 219)
    for i in range(4):
        a(f"""
        s_add_u32 s3, s{sW}, {1+i}
        s_and_b32 s3, s3, 3
        s_lshl_b32 s3, s3, 11
        v_add_u32 v1, s3, v7
        ds_read_b128 {vr(Q+8*i,4)}, v1
        ds_read_b128 {vr(Q+8*i+4,4)}, v1 offset:1024
        """)
    stamp(a, 5, pv=5)
    a(f"""
    s_cmp_lg_u32 s{sW}, 0
    s_cbranch_scc1 k_a_w
    """)
    poll4(a, 34, 216, 7, 220)
    lds_add(a, C_KV, 218, 219)
    a("s_branch k_a_go")
    a.lab("k_a_w")
    lds_wait(a, C_KV, 1, 218, 219, sleep=1)
    a.lab("k_a_go")
    stamp(a, 6, pv=5)
    stamp(a, 6)
    def ldK(b):
        a(f"buffer_load_dwordx4 {vr(KVB[b],4)}, v7, {sr(SKV,4)}, s{sKo} offen sc1")
        a(f"buffer_load_dwordx4 {vr(KVB[b]+4,4)}, v7, {sr(SKV,4)}, s{sKo} offen offset:1024 sc1")
        a(f"s_add_u32 s{sKo}, s{sKo}, 4096")
    def ldV(b):
        a(f"buffer_load_dwordx4 {vr(KVB[b]+8,4)}, v7, {sr(SKV,4)}, s{sVo} offen offset:2048 sc1")
        a(f"buffer_load_dwordx4 {vr(KVB[b]+12,4)}, v7, {sr(SKV,4)}, s{sVo} offen offset:3072 sc1")
        a(f"s_add_u32 s{sVo}, s{sVo}, 4096")
    a(f"""
    s_lshl_b32 s3, s{sQb}, 9
    s_lshl_b32 s11, s{sW}, 7
    s_add_u32 s3, s3, s11
    s_add_u32 s3, s3, {WS_G}
    v_lshlrev_b32 v4, 2, v2
    buffer_load_dword v{VG}, v4, {sr(SWS,4)}, s3 offen sc1
    s_branch k_att_first
    """)
    a.lab("k_att_start")
    for i in range(8):
        a(f"v_mov_b32 v{KVB[NB-1]+8+i}, 0")
    for i in range(8):
        a(f"v_mov_b32 v{PB[1]+i}, 0")
    for i in range(64):
        a(f"v_mov_b32 v{O+i}, 0")
    a.lab("k_att_first")
    a(f"s_mov_b32 s{sKo}, 0")
    a(f"s_mov_b32 s{sVo}, 0")
    for b in range(NB):
        ldK(b)
        if b < NB-1:
            ldV(b)
    nt2 = 0
    if OPT["TOUCH"]:
        a(f"""
        s_and_b32 s3, s{sQb}, 7
        s_lshl_b32 s3, s3, 7
        v_lshlrev_b32 v4, 10, v0
        buffer_load_dword v6, v4, {sr(SKV,4)}, s3 offen sc1
        """)
        nt2 = 1
    a(f"s_mov_b32 s{sC}, 0")
    a(f"s_waitcnt vmcnt({4*(NB-1)+nt2}) lgkmcnt(0)")
    stamp(a, 7)
    a(f"{MFMA} {vr(SB[0],16)}, {vr(KVB[0],4)}, {vr(Q,4)}, 0")
    a(f"{MFMA} {vr(SB[0],16)}, {vr(KVB[0]+4,4)}, {vr(Q+4,4)}, {vr(SB[0],16)}")
    a(f"s_setprio {OPT['PRIO_A']}")
    a("s_nop 15")
    a.lab("k_aloop")
    NU = 4*NB
    def body_ops():
        ops = []
        for u in range(NU):
            t, qi = u // 4, u % 4
            if qi == 3: ops.append(("waitK", t))
            if qi == 2: ops += [("K", t)]*2
            if qi == 1: ops.append(("waitV", t))
            if qi == 0: ops += [("V", (t-1) % NB)]*2
        return ops
    ops2 = body_ops()*2
    def count_after(pos, kind, buf):
        n = 0
        for p in range(pos-1, -1, -1):
            if ops2[p] == (kind, buf): return n
            if not ops2[p][0].startswith("wait"): n += 1
        raise Exception
    L1 = len(body_ops())
    waitn = {}
    for p in range(L1, 2*L1):
        k, t = ops2[p]
        if k == "waitK": waitn[("K", t)] = count_after(p, "K", (t+1) % NB)
        if k == "waitV": waitn[("V", t)] = count_after(p, "V", t)
    for u in range(NU):
        t, qi = u // 4, u % 4
        un = (u+1) % NU; tn, qn = un // 4, un % 4
        up = (u-1) % NU; tp, qp = up // 4, up % 4
        sc, sn = SB[u % 2], SB[(u+1) % 2]
        pc, pp = PB[u % 2], PB[(u-1) % 2]
        def ex(r): a(f"v_exp_f32 v{sc+r}, v{sc+r}")
        def cv(p): a(f"v_cvt_pk_bf16_f32 v{pc+p}, v{sc+2*p}, v{sc+2*p+1}")
        if qi == 3:
            a(f"s_waitcnt vmcnt({min(4*(NB-1), waitn[('K', t)])})")
        a(f"{MFMA} {vr(sn,16)}, {vr(KVB[tn],4)}, {vr(Q+8*qn,4)}, 0")
        for r in range(0, 4): ex(r)
        a(f"{MFMA} {vr(sn,16)}, {vr(KVB[tn]+4,4)}, {vr(Q+8*qn+4,4)}, {vr(sn,16)}")
        if qi == 2 and not OPT.get("ANOL"):
            ldK(t)
        for r in range(4, 8): ex(r)
        cv(0); cv(1)
        if qi == 1:
            a(f"s_waitcnt vmcnt({min(4*(NB-1), waitn[('V', t)])})")
        a(f"{MFMA} {vr(O+16*qp,16)}, {vr(KVB[tp]+8,4)}, {vr(pp,4)}, {vr(O+16*qp,16)}")
        for r in range(8, 12): ex(r)
        cv(2); cv(3)
        a(f"{MFMA} {vr(O+16*qp,16)}, {vr(KVB[tp]+12,4)}, {vr(pp+4,4)}, {vr(O+16*qp,16)}")
        if qi == 0 and not OPT.get("ANOL"):
            ldV(tp)
        for r in range(12, 16): ex(r)
        cv(4); cv(5); cv(6); cv(7)
    a(f"""
    s_add_u32 s{sC}, s{sC}, 1
    s_cmp_lt_u32 s{sC}, {16//NB}
    s_cbranch_scc1 k_aloop
    """)
    up = NU-1
    stamp(a, 8)
    a("s_setprio 3")
    a(f"{MFMA} {vr(O+48,16)}, {vr(KVB[NB-1]+8,4)}, {vr(PB[up%2],4)}, {vr(O+48,16)}")
    a(f"{MFMA} {vr(O+48,16)}, {vr(KVB[NB-1]+12,4)}, {vr(PB[up%2]+4,4)}, {vr(O+48,16)}")
    lds_wait(a, C_F1, 4, 4, 5)
    def oc_base(dst, sreg):
        a(f"""
        s_mul_i32 s{dst}, s{sreg}, 12288
        s_cmp_eq_u32 s{sreg}, 3
        s_cselect_b32 s{dst}, {OC3}, s{dst}
        """)
    for i in range(3):
        a(f"""
        s_add_u32 s3, s{sW}, {1+i}
        s_and_b32 s3, s3, 3
        """)
        oc_base(11, 3)
        a(f"v_add_u32 v4, s11, v7")
        for r4 in range(4):
            a(f"ds_write_b128 v4, {vr(O+16*i+4*r4,4)} offset:{4096*i+1024*r4}")
    lds_add(a, C_OC, 5, 6)
    oc_base(11, sW)
    a(f"""
    v_add_u32 v1, s11, v7
    s_lshl_b32 s7, s{sPass}, 2
    s_add_u32 s7, s7, 4
    """)
    lds_wait(a, C_OC, "s7", 4, 5)
    R = 104
    for i in range(12):
        a(f"ds_read_b128 {vr(R+4*i,4)}, v1 offset:{1024*i}")
    OK_ = O + 48
    for i in range(3):
        a(f"s_waitcnt lgkmcnt({8-4*i})")
        for p in range(8):
            a(f"v_pk_add_f32 {vr(OK_+2*p,2)}, {vr(OK_+2*p,2)}, {vr(R+16*i+2*p,2)}")
    OP = R
    a(f"""
    v_mov_b32 v4, v{OK_+12}
    v_mov_b32 v5, v{OK_+12}
    s_lshl_b32 s3, s{sQb}, 2
    s_add_u32 s3, s3, s{sW}
    v_permlane32_swap_b32 v4, v5
    s_lshl_b32 s3, s3, 4
    s_add_u32 s3, s3, s{sHead}
    v_rcp_f32 v4, v5
    s_lshl_b32 s7, s3, 11
    s_add_u32 s7, s7, {WS_OF}
    v_mul_f32 v4, v4, v{VG}
    s_lshl_b32 s11, s3, 3
    s_add_u32 s11, s11, {FL_O}
    """)
    for p in range(8):
        a(f"v_pk_mul_f32 {vr(OK_+2*p,2)}, {vr(OK_+2*p,2)}, v[4:5] op_sel_hi:[1,0]")
    for p in range(8):
        a(f"v_cvt_pk_bf16_f32 v{OP+p}, v{OK_+2*p}, v{OK_+2*p+1}")
    a(f"""
    s_cmp_lg_u32 s{sPub}, 0
    s_cbranch_scc1 k_a_done
    s_mov_b32 exec_lo, 0
    v_mov_b32 v{OP+6}, 0
    v_mov_b32 v{OP+7}, 0
    s_mov_b64 exec, -1
    buffer_store_dwordx4 {vr(OP,4)}, v7, {sr(SWS,4)}, s7 offen sc1
    buffer_store_dwordx4 {vr(OP+4,4)}, v7, {sr(SWS,4)}, s7 offen offset:1024 sc1
    """)
    for p in range(1, 8):
        a(f"v_pk_add_f32 {vr(OK_,2)}, {vr(OK_,2)}, {vr(OK_+2*p,2)}")
    a(f"""
    v_add_f32 v{OK_}, v{OK_}, v{OK_+1}
    v_mul_f32 v{OK_}, 0, v{OK_}
    v_add_f32 v5, v5, v{OK_}
    v_mov_b32 v6, {f2u(2.0**40):#x}
    v_cmp_nlt_f32 vcc, v5, v6
    s_cmp_lg_u32 s{sPass}, 0
    s_cbranch_scc1 k_a_pub
    s_cbranch_vccz k_a_pub
    v_mov_b32 v4, {C_BAD}
    v_mov_b32 v6, 1
    ds_write_b32 v4, v6
    s_branch k_a_sync
    """)
    a.lab("k_a_pub")
    a("s_waitcnt vmcnt(0)")
    publish(a, 11, 4)
    a(f"s_mov_b32 s{sPub}, 1")
    stamp(a, 9)
    a.lab("k_a_sync")
    a(f"""
    s_cmp_lg_u32 s{sPass}, 0
    s_cbranch_scc1 k_a_done
    """)
    lds_add(a, C_A2, 4, 5)
    lds_wait(a, C_A2, 4, 4, 5)
    a(f"""
    v_mov_b32 v4, {C_BAD}
    ds_read_b32 v6, v4
    s_waitcnt lgkmcnt(0)
    v_readfirstlane_b32 s3, v6
    s_cmp_lg_u32 s3, 0
    s_cbranch_scc1 k_fallback
    """)
    a.lab("k_a_done")
    flush(a, 0)
    a("s_endpgm")
    a.lab("k_fallback")
    MX = O
    a(f"""
    s_mov_b32 s{sPass}, 1
    s_waitcnt vmcnt(0)
    s_mov_b32 exec_lo, 0
    """)
    for i in range(4):
        a(f"v_mov_b32 v{Q+8*i+6}, 0")
        a(f"v_mov_b32 v{Q+8*i+7}, 0")
    a("s_mov_b64 exec, -1")
    for i in range(4):
        a(f"v_mov_b32 v{MX+i}, 0xff800000")
    a(f"s_mov_b32 s{sKo}, 0")
    a.lab("k_fbloop")
    ldK(0)
    a("s_waitcnt vmcnt(0)")
    for i in range(4):
        sb = SB[0]
        a(f"{MFMA} {vr(sb,16)}, {vr(KVB[0],4)}, {vr(Q+8*i,4)}, 0")
        a(f"{MFMA} {vr(sb,16)}, {vr(KVB[0]+4,4)}, {vr(Q+8*i+4,4)}, {vr(sb,16)}")
        a("s_nop 15")
        for r in range(0, 16, 2):
            a(f"v_max3_f32 v{MX+i}, v{MX+i}, v{sb+r}, v{sb+r+1}")
    a(f"""
    s_cmp_lt_u32 s{sKo}, 65536
    s_cbranch_scc1 k_fbloop
    """)
    for i in range(4):
        a(f"""
        s_add_u32 s3, s{sW}, {1+i}
        s_and_b32 s3, s3, 3
        s_lshl_b32 s3, s3, 10
        s_lshl_b32 s11, s{sW}, 8
        s_add_u32 s3, s3, s11
        v_lshl_add_u32 v4, v0, 2, s3
        ds_write_b32 v4, v{MX+i}
        """)
    lds_add(a, C_FB1, 4, 5)
    lds_wait(a, C_FB1, 4, 4, 5)
    for i in range(4):
        a(f"""
        s_add_u32 s3, s{sW}, {1+i}
        s_and_b32 s3, s3, 3
        s_lshl_b32 s3, s3, 10
        v_lshl_add_u32 v4, v2, 2, s3
        """)
        for k in range(8):
            a(f"ds_read_b32 v{MX+8+k}, v4 offset:{128*k}")
        a("s_waitcnt lgkmcnt(0)")
        a(f"""
        v_max3_f32 v5, v{MX+8}, v{MX+9}, v{MX+10}
        v_max3_f32 v5, v5, v{MX+11}, v{MX+12}
        v_max3_f32 v5, v5, v{MX+13}, v{MX+14}
        v_max_f32 v5, v5, v{MX+15}
        v_sub_f32 v5, 0, v5
        v_and_b32 v6, 0xffff0000, v5
        v_sub_f32 v6, v5, v6
        v_and_b32 v4, 0xffff0000, v6
        v_sub_f32 v4, v6, v4
        s_mov_b32 s3, 0x07060302
        s_mov_b32 exec_lo, 0
        v_perm_b32 v{Q+8*i+6}, v6, v5, s3
        v_lshrrev_b32 v{Q+8*i+7}, 16, v4
        s_mov_b64 exec, -1
        """)
    lds_add(a, C_FB2, 4, 5)
    lds_wait(a, C_FB2, 4, 4, 5)
    a("s_branch k_att_start")

    a.lab("k_end")
    a("s_endpgm")
    a.lab("k_code_end")

def main(out):
    a = A()
    gen(a)
    txt = "; gated_mix: softmax MHA + SiLU FFN + sigmoid gate, one fused persistent kernel. Generated by work/gen3.py\n"
    txt += f"; @launch grid=(256,1,1) block=(512,1,1) lds={LDS_BYTES}\n"
    txt += '.amdgcn_target "amdgcn-amd-amdhsa--gfx950"\n.text\n'
    txt += a.text()
    txt += f""".section .rodata,"a"
.p2align 6
.amdhsa_kernel {NAME}
  .amdhsa_next_free_vgpr 248
  .amdhsa_next_free_sgpr 102
  .amdhsa_accum_offset 248
  .amdhsa_group_segment_fixed_size 0
  .amdhsa_kernarg_size 80
  .amdhsa_user_sgpr_count 2
  .amdhsa_user_sgpr_kernarg_segment_ptr 1
  .amdhsa_system_sgpr_workgroup_id_x 1
.end_amdhsa_kernel
"""
    open(out, "w").write(txt)

if __name__ == "__main__":
    main(sys.argv[1] if len(sys.argv) > 1 else "f.s")
```

```python
import math, struct, sys, os

def f2u(x):
    return struct.unpack("<I", struct.pack("<f", x))[0]

S, D, H, DH, F = 2048, 448, 16, 28, 1792
WS_QF = 0
WS_KV = 2 << 20
WS_HF = 6 << 20
WS_OF = 14 << 20
WS_G  = 16 << 20
WS_FL = (16 << 20) + 65536
FL_KV = WS_FL
FL_H  = WS_FL + 8192
FL_O  = WS_FL + 16384
WS_SIZE = (16 << 20) + 131072
PROF = int(os.environ.get("PROF", "0"))
WS_PROF = WS_SIZE
if PROF:
    WS_SIZE = WS_PROF + 2*256*8*64
OPT = dict(NB=4, TOUCH=1, PRIO_A=1, PRIO_F=2)
for kv in os.environ.get("OPT", "").split(","):
    if "=" in kv:
        k, v = kv.split("="); OPT[k] = int(v)

LOG2E = 1.4426950408889634
QSCALE = (DH ** -0.5) * LOG2E
NAME = "gated_mix__softmax_full_mha__dense_activation_silu__prompt_kernel"

class A:
    def __init__(self):
        self.l = []
        self.n = 0
    def __call__(self, s):
        for x in s.strip("\n").split("\n"):
            x = x.strip()
            if not x: continue
            self.l.append(x if x.endswith(":") else "  " + x)
    def lab(self, s):
        self.l.append(s + ":")
    def uniq(self, p):
        self.n += 1
        return f"{p}_{self.n}"
    def text(self):
        return "\n".join(self.l) + "\n"

def vr(b, n): return f"v[{b}:{b+n-1}]" if n > 1 else f"v{b}"
def sr(b, n): return f"s[{b}:{b+n-1}]" if n > 1 else f"s{b}"
MFMA = "v_mfma_f32_32x32x16_bf16"

SX, SWQ, SWS, SW1, SW2, SWO, SOUT, SG, SDBG = 36, 40, 44, 48, 52, 56, 60, 64, 68
SKV = 48
sMB, sJ, sW, sX, sIdx, sC, sK, sT = 72, 73, 74, 75, 76, 77, 78, 79
sE = 12
XBASE = 49152
QSLOT = 12288
LCNT = 36864
C_F1, C_OC, C_BAD, C_A2, C_RED, C_FB1, C_FB2, C_Q, C_KV, C_H, C_QX, C_S = [LCNT + 4*i for i in range(12)]
C_A3 = LCNT + 64
QXB = 12288
W1E = LCNT + 1024
RING0 = 40960
RING = 24576
OC3 = RING0 + 4*RING
LDS_BYTES = 163840

def srd(a, d, base, nbytes):
    a(f"s_mov_b32 s{d}, s{base}")
    a(f"s_mov_b32 s{d+1}, s{base+1}")
    a(f"s_mov_b32 s{d+2}, {nbytes}")
    a(f"s_mov_b32 s{d+3}, 0x00020000")

PV = OPT.get("PV", 0)
def stamp(a, i, cyc=False, pv=0):
    if PROF and (pv == PV or i == 0):
        assert 0 <= i < 11
        a(f"{'s_memtime' if cyc else 's_memrealtime'} s[{80+2*i}:{81+2*i}]")
def flush(a, wadd):
    if not PROF: return
    a("s_waitcnt lgkmcnt(0)")
    a(f"s_lshl_b32 s3, s2, 3")
    a(f"s_add_u32 s3, s3, s{sW}")
    a(f"s_add_u32 s3, s3, {wadd}")
    a(f"s_lshl_b32 s3, s3, 6")
    a(f"s_add_u32 s3, s3, {WS_PROF}")
    a("s_mov_b64 exec, 1")
    a("s_nop 4")
    for i in range(11):
        a(f"v_mov_b32 v{16+i}, s{80+2*i}")
    a("v_mov_b32 v27, 0")
    a("v_mov_b32 v28, 0")
    for i in range(3):
        a(f"buffer_store_dwordx4 v[{16+4*i}:{19+4*i}], v28, {sr(SWS,4)}, s3 offen offset:{16*i}")

def lds_add(a, cnt, vt0, vt1):
    a(f"""
    v_mov_b32 v{vt0}, {cnt}
    v_mov_b32 v{vt1}, 1
    s_mov_b64 exec, 1
    ds_add_u32 v{vt0}, v{vt1}
    s_mov_b64 exec, -1
    """)
def lds_wait(a, cnt, target, vt0, vt1, sleep=0):
    L = a.uniq("lw"); E = a.uniq("lwe")
    a(f"v_mov_b32 v{vt0}, {cnt}")
    a(f"s_mov_b32 s14, 0")
    a.lab(L)
    a(f"""
    ds_read_b32 v{vt1}, v{vt0}
    s_add_u32 s14, s14, 1
    s_waitcnt lgkmcnt(0)
    v_readfirstlane_b32 s15, v{vt1}
    s_cmp_gt_u32 s14, 0x200000
    s_cbranch_scc1 {E}
    s_cmp_ge_u32 s15, {target}
    s_cbranch_scc1 {E}
    {f"s_sleep {sleep}" if sleep else ""}
    s_branch {L}
    """)
    a.lab(E)

def nonce_issue(a, vt):
    a(f"v_mov_b32 v{vt}, 0")
    a(f"buffer_load_dwordx2 {vr(vt+2,2)}, v{vt}, {sr(SDBG,4)}, 0 offen sc1")
def nonce_get(a, vt):
    L = a.uniq("ng"); E = a.uniq("nge")
    a("s_mov_b32 s14, 0")
    a.lab(L)
    a(f"""
    s_waitcnt vmcnt(0)
    v_readfirstlane_b32 s{sE}, v{vt+2}
    v_readfirstlane_b32 s{sE+1}, v{vt+3}
    s_add_u32 s14, s14, 1
    s_cmp_gt_u32 s14, 0x40000
    s_cbranch_scc1 {E}
    s_cmp_lg_u32 s{sE}, 0
    s_cbranch_scc1 {E}
    buffer_load_dwordx2 {vr(vt+2,2)}, v{vt}, {sr(SDBG,4)}, 0 offen sc1
    s_branch {L}
    """)
    a.lab(E)
def publish(a, soff, vt):
    a(f"""
    v_mov_b32 v{vt}, s{sE}
    v_mov_b32 v{vt+1}, s{sE+1}
    v_mov_b32 v{vt+2}, 0
    s_mov_b64 exec, 1
    buffer_store_dwordx2 {vr(vt,2)}, v{vt+2}, {sr(SWS,4)}, s{soff} offen sc1
    s_mov_b64 exec, -1
    """)
def poll(a, nl, voff, soff, vt):
    L = a.uniq("pl"); E = a.uniq("ple")
    a(f"s_mov_b32 exec_lo, {((1<<nl)-1) & 0xffffffff:#x}")
    a(f"s_mov_b32 exec_hi, {((1<<nl)-1) >> 32:#x}")
    a("s_mov_b32 s14, 0")
    a.lab(L)
    a(f"""
    buffer_load_dwordx2 {vr(vt,2)}, v{voff}, {sr(SWS,4)}, s{soff} offen sc1
    s_add_u32 s14, s14, 1
    s_waitcnt vmcnt(0)
    v_cmp_eq_u64 vcc, {sr(sE,2)}, {vr(vt,2)}
    s_cmp_gt_u32 s14, 0x40000
    s_cbranch_scc1 {E}
    s_cmp_eq_u64 vcc, exec
    s_cbranch_scc1 {E}
    s_sleep {OPT.get("PSLEEP", 3)}
    s_branch {L}
    """)
    a.lab(E)
    a("s_mov_b64 exec, -1")

def poll4(a, nl, voff, soff, vt):
    L = a.uniq("pl"); E = a.uniq("ple")
    a(f"s_mov_b32 exec_lo, {((1<<nl)-1) & 0xffffffff:#x}")
    a(f"s_mov_b32 exec_hi, {((1<<nl)-1) >> 32:#x}")
    a("s_mov_b32 s14, 0")
    a.lab(L)
    a(f"""
    buffer_load_dwordx4 {vr(vt,4)}, v{voff}, {sr(SWS,4)}, s{soff} offen sc1
    s_add_u32 s14, s14, 1
    s_waitcnt vmcnt(0)
    v_cmp_eq_u64 vcc, {sr(sE,2)}, {vr(vt,2)}
    v_cmp_eq_u64 s[{sT-1}:{sT}], {sr(sE,2)}, {vr(vt+2,2)}
    s_cmp_gt_u32 s14, 0x40000
    s_cbranch_scc1 {E}
    s_and_b64 vcc, vcc, s[{sT-1}:{sT}]
    s_cmp_eq_u64 vcc, exec
    s_cbranch_scc1 {E}
    s_sleep {OPT.get("PSLEEP", 3)}
    s_branch {L}
    """)
    a.lab(E)
    a("s_mov_b64 exec, -1")

def gen(a):
    NB = OPT["NB"]
    a.l.append(f".globl {NAME}")
    a.l.append(".p2align 8")
    a.l.append(f".type {NAME},@function")
    a.lab(NAME)
    a(f"""
    s_cmp_ge_u32 s2, 256
    s_cbranch_scc1 k_end
    s_load_dwordx16 s[16:31], s[0:1], 0
    s_load_dwordx4 s[32:35], s[0:1], 64
    """)
    if PROF:
        for i in range(1, 11):
            a(f"s_mov_b64 s[{80+2*i}:{81+2*i}], 0")
        stamp(a, 0)
    VXO = 20
    XA = 8
    a(f"""
    v_lshrrev_b32 v1, 6, v0
    v_and_b32 v0, 63, v0
    s_and_b32 s{sX}, s2, 7
    s_lshr_b32 s{sIdx}, s2, 3
    v_readfirstlane_b32 s{sW}, v1
    s_and_b32 s{sMB}, s{sX}, 1
    s_lshl_b32 s{sMB}, s{sMB}, 3
    s_and_b32 s3, s{sIdx}, 7
    s_add_u32 s{sMB}, s{sMB}, s3
    s_lshr_b32 s{sJ}, s{sX}, 1
    s_lshl_b32 s{sJ}, s{sJ}, 2
    s_lshr_b32 s3, s{sIdx}, 3
    s_add_u32 s{sJ}, s{sJ}, s3
    v_lshrrev_b32 v14, 3, v0
    v_mul_u32_u24 v14, 896, v14
    v_lshrrev_b32 v15, 4, v0
    v_and_b32 v1, 7, v0
    v_xor_b32 v15, v15, v1
    v_lshl_add_u32 v{VXO}, v15, 4, v14
    v_xor_b32 v15, 4, v15
    v_lshl_add_u32 v{VXO+1}, v15, 4, v14
    v_add_u32 v{VXO+2}, {2*6144}, v{VXO}
    v_add_u32 v{VXO+3}, {3*6144}, v{VXO+1}
    v_add_u32 v{VXO+1}, 6144, v{VXO+1}
    s_and_b32 s4, s{sW}, 3
    s_lshl_b32 s3, s{sMB}, 7
    s_lshl_b32 s6, s4, 5
    s_add_u32 s3, s3, s6
    s_mul_i32 s5, s3, 896
    s_and_b32 s3, s{sJ}, 3
    s_lshl_b32 s3, s3, 1
    s_and_b32 s11, s{sMB}, 7
    s_add_u32 s11, s11, s3
    s_cmp_ge_u32 s11, 7
    s_cselect_b32 s3, 7, 0
    s_sub_u32 s11, s11, s3
    s_mul_i32 s11, s11, {OPT.get("ROT", 1)}
    s_lshl_b32 s3, s11, 7
    s_add_u32 s5, s5, s3
    s_mov_b32 s15, s11
    s_lshl_b32 s6, s4, 12
    s_add_u32 s6, s6, {XBASE}
    v_and_b32 v2, 31, v0
    v_lshrrev_b32 v3, 5, v0
    v_bfe_u32 v4, v0, 2, 2
    v_bfe_u32 v5, v0, 4, 1
    v_and_b32 v6, 3, v0
    v_lshlrev_b32 v7, 4, v0
    """)
    VQO = 16
    a(f"s_mul_i32 s3, s{sJ}, 56")
    a(f"s_and_b32 s3, s3, -16")
    for i in range(3):
        a(f"""
        v_add_u32 v1, {64*i}, v0
        v_mul_u32_u24 v14, 43691, v1
        v_lshrrev_b32 v14, 19, v14
        v_mul_u32_u24 v15, 12, v14
        v_sub_u32 v1, v1, v15
        v_mul_u32_u24 v14, 2688, v14
        v_lshrrev_b32 v15, 2, v1
        v_mul_u32_u24 v15, 896, v15
        v_add_u32 v14, v14, v15
        v_and_b32 v1, 3, v1
        v_lshl_add_u32 v14, v1, 4, v14
        v_add_u32 v14, s3, v14
        v_subrev_u32 v{VQO+i}, {1024*i}, v14
        """)
    a(f"""
    s_mul_i32 s7, s4, {16*2688}
    s_mul_i32 s3, s11, {64*2688}
    s_add_u32 s7, s7, s3
    s_mul_i32 s8, s4, 3072
    s_cmp_ge_u32 s{sW}, 4
    s_mov_b32 s{sW}, s4
    s_mov_b32 s14, s11
    s_movk_i32 s4, 128
    s_mov_b32 s9, {64*2688}
    s_waitcnt lgkmcnt(0)
    s_cbranch_scc1 k_F
    """)
    def xa_setup():
        a(f"v_bfe_u32 v14, v0, 1, 3")
        a(f"v_lshlrev_b32 v15, 7, v2")
        for kk in range(4):
            a(f"v_add_u32 v1, {2*kk}, v3")
            a(f"v_xor_b32 v1, v1, v14")
            a(f"v_lshl_add_u32 v{XA+kk}, v1, 4, v15")
    def zero_acc(base, n, z):
        for i in range(4): a(f"v_mov_b32 v{z+i}, 0")
        a("s_nop 1")
        for i in range(n):
            a(f"{MFMA} {vr(base+16*i,16)}, {vr(z,4)}, {vr(z,4)}, 0")
    ops = []
    def xdma(c):
        a(f"s_add_u32 m0, s6, {16384*c}")
        a(f"s_add_u32 s14, s14, 1")
        for i in range(4):
            a(f"buffer_load_dwordx4 v{VXO+i}, {sr(SX,4)}, s5 offen offset:{1024*i} lds"); ops.append(("x", c))
        a(f"""
        s_cmp_eq_u32 s14, 7
        s_cselect_b32 s3, -768, s4
        s_add_u32 s5, s5, s3
        """)
    def qdma(c):
        a(f"s_add_u32 m0, s8, {QSLOT*(c % 3)}")
        a(f"s_add_u32 s15, s15, 1")
        for i in range(3):
            a(f"buffer_load_dwordx4 v{VQO+i}, {sr(SWQ,4)}, s7 offen offset:{1024*i} lds"); ops.append(("q", c))
        a(f"""
        s_cmp_eq_u32 s15, 7
        s_cselect_b32 s3, {-6*64*2688}, s9
        s_add_u32 s7, s7, s3
        """)
    def landed(c):
        last = max(k for k, o in enumerate(ops) if o in (("x", c), ("q", c)))
        return len(ops) - 1 - last
    srd(a, SX, 16, S*D*2)
    xdma(0)
    srd(a, SWQ, 18, D*3*D*2)
    qdma(0)
    a("s_setprio 3")
    xdma(1); qdma(1)
    if not OPT.get("ES", 1):
        xdma(2); qdma(2); xdma(3)
    stamp(a, 1)
    srd(a, SWS, 34, WS_SIZE)
    srd(a, SDBG, 32, 256)
    WB = 12
    QB = [32, 48, 128, 144]
    AQ, AK, AV = 64, 80, 96
    VCS, VONE, VT = 24, 25, 26
    xa_setup()
    a(f"""
    s_lshl_b32 s3, s{sW}, 12
    s_add_u32 s3, s3, {XBASE}
    """)
    for kk in range(4):
        a(f"v_add_u32 v{XA+kk}, s3, v{XA+kk}")
    a(f"""
    v_lshl_add_u32 v14, v3, 3, v4
    v_mul_u32_u24 v14, 192, v14
    v_lshl_add_u32 v14, v5, 5, v14
    v_lshl_add_u32 v{WB}, v6, 3, v14
    s_and_b32 s3, s{sJ}, 1
    s_lshl_b32 s3, s3, 3
    v_add_u32 v{WB}, s3, v{WB}
    v_mov_b32 v31, 0x3f803f80
    v_cmp_eq_u32 vcc, 28, v2
    v_mov_b32 v{VCS}, {C_S}
    v_mov_b32 v{VONE}, 1
    v_cndmask_b32 v31, 0, v31, vcc
    """)
    zero_acc(AQ, 3, 128)
    if OPT.get("TB", 99) == 9:
        srd(a, SW2, 26, F*D*2)
        srd(a, SWO, 20, D*D*2)
        a(f"""
        v_lshlrev_b32 v28, 7, v0
        v_add_u32 v29, 8192, v28
        v_cmp_gt_u32 vcc, 34, v0
        v_bfrev_b32 v15, 1
        v_mov_b32 v30, v28
        v_cndmask_b32 v29, v15, v29, vcc
        v_cmp_gt_u32 vcc, 25, v0
        s_nop 1
        v_cndmask_b32 v30, v15, v30, vcc
        """)
    a("s_barrier")
    def qread_list(buf, c, kk):
        b = QB[buf]
        L = [f"ds_read_b128 {vr(b,4)}, v{XA+kk} offset:{(c%4)*16384}"]
        for t in range(3):
            for u in range(2):
                L.append(f"ds_read_b64_tr_b16 {vr(b+4+4*t+2*u,2)}, v{WB} offset:{QSLOT*(c%3)+(16*kk+4*u)*192+t*64}")
        return L
    def qstep(mbuf, R):
        b = QB[mbuf]
        M = [f"{MFMA} {vr(AQ,16)}, {vr(b+4,4)}, {vr(b,4)}, {vr(AQ,16)}",
             f"{MFMA} {vr(AK,16)}, {vr(b+8,4)}, {vr(b,4)}, {vr(AK,16)}",
             f"{MFMA} {vr(AV,16)}, {vr(b,4)}, {vr(b+12,4)}, {vr(AV,16)}"]
        n = len(R); cuts = [0, (n+2)//3, (2*n+2)//3, n]
        for i in range(3):
            a(M[i])
            for x in R[cuts[i]:cuts[i+1]]: a(x)
    def arrive(c):
        a(f"""
        s_waitcnt vmcnt({landed(c)}) lgkmcnt(0)
        s_mov_b64 exec, 1
        ds_add_u32 v{VCS}, v{VONE}
        s_mov_b64 exec, -1
        """)
    def spin(c):
        L = a.uniq("sp"); E = a.uniq("spe")
        a("s_mov_b32 s10, 0")
        a.lab(L)
        a(f"""
        ds_read_b32 v{VT}, v{VCS}
        s_add_u32 s10, s10, 1
        s_waitcnt lgkmcnt(0)
        v_readfirstlane_b32 s3, v{VT}
        s_cmp_gt_u32 s10, 0x200000
        s_cbranch_scc1 {E}
        s_cmp_ge_u32 s3, {4*(c+1)}
        s_cbranch_scc0 {L}
        """)
        a.lab(E)
    arrive(0)
    if OPT.get("ES", 1):
        xdma(2); qdma(2)
    spin(0)
    stamp(a, 2)
    for x in qread_list(0, 0, 0) + qread_list(1, 0, 1): a(x)
    if OPT.get("ES", 1):
        xdma(3)
    for c in range(7):
        a("s_waitcnt lgkmcnt(7)"); qstep(0, qread_list(2, c, 2))
        a("s_waitcnt lgkmcnt(7)"); qstep(1, qread_list(3, c, 3))
        if c < 6:
            arrive(c+1)
            qstep(2, [])
            spin(c+1)
            stamp(a, 3+c, pv=1)
            if c + 1 == 4:
                for k2 in range(4):
                    a(f"v_add_u32 v{XA+k2}, 0x10000, v{XA+k2}")
            qstep(3, qread_list(0, c+1, 0) + qread_list(1, c+1, 1))
            if c + 3 <= 6: qdma(c+3)
            if c + 4 <= 6: xdma(c+4)
            if c == 3:
                nonce_issue(a, 16); ops.append(("n", 0))
        else:
            a("s_waitcnt lgkmcnt(0)")
            lds_add(a, C_Q, 14, 15)
            qstep(2, []); qstep(3, [])
    stamp(a, 3)
    QP, KP, VP = 32, 40, 48
    SD = 112
    sHead, sQb, sKo, sVo, sPass, sPub = sJ, sMB, 6, 8, 9, 10
    a(f"""
    s_lshl_b32 s3, s{sJ}, 6
    s_lshl_b32 s4, s{sMB}, 2
    s_add_u32 s3, s3, s4
    s_add_u32 s3, s3, s{sW}
    s_lshl_b32 s6, s3, 12
    s_add_u32 s6, s6, {WS_KV}
    s_lshl_b32 s7, s3, 3
    s_add_u32 s7, s7, {FL_KV}
    s_mov_b32 s8, {f2u(QSCALE):#x}
    s_mov_b32 s9, {f2u(QSCALE):#x}
    s_mov_b32 s10, 0x07060302
    """)
    for p in range(8):
        a(f"v_cvt_pk_bf16_f32 v{KP+p}, v{AK+2*p}, v{AK+2*p+1}")
    a(f"""
    s_mov_b32 exec_lo, 0
    v_mov_b32 v{KP+6}, 0x3f803f80
    v_mov_b32 v{KP+7}, 0x3f80
    s_mov_b64 exec, -1
    buffer_store_dwordx4 {vr(KP,4)}, v7, {sr(SWS,4)}, s6 offen sc1
    buffer_store_dwordx4 {vr(KP+4,4)}, v7, {sr(SWS,4)}, s6 offen offset:1024 sc1
    """)
    for p in range(8):
        a(f"v_cvt_pk_bf16_f32 v{VP+p}, v{AV+2*p}, v{AV+2*p+1}")
    a(f"""
    s_mov_b32 exec_lo, 0xf0000000
    s_mov_b32 exec_hi, 0xf0000000
    """)
    for p in range(8):
        a(f"v_mov_b32 v{VP+p}, v31")
    a(f"""
    s_mov_b64 exec, -1
    buffer_store_dwordx4 {vr(VP,4)}, v7, {sr(SWS,4)}, s6 offen offset:2048 sc1
    buffer_store_dwordx4 {vr(VP+4,4)}, v7, {sr(SWS,4)}, s6 offen offset:3072 sc1
    """)
    stamp(a, 4)
    stamp(a, 1, pv=5)
    for p in range(16):
        a(f"v_mul_f32 v{AQ+p}, s8, v{AQ+p}")
    for p in range(8):
        a(f"v_cvt_pk_bf16_f32 v{QP+p}, v{AQ+2*p}, v{AQ+2*p+1}")
    a(f"""
    s_mov_b32 exec_lo, 0
    v_mov_b32 v{QP+6}, 0
    v_mov_b32 v{QP+7}, 0
    s_mov_b64 exec, -1
    s_lshl_b32 s3, s{sW}, 11
    s_add_u32 s3, s3, {QXB}
    v_add_u32 v13, s3, v7
    {MFMA} {vr(SD,16)}, {vr(KP,4)}, {vr(QP,4)}, 0
    {MFMA} {vr(SD,16)}, {vr(KP+4,4)}, {vr(QP+4,4)}, {vr(SD,16)}
    s_nop 12
    v_max3_f32 v14, v{SD}, v{SD+1}, v{SD+2}
    v_max3_f32 v15, v{SD+3}, v{SD+4}, v{SD+5}
    v_max3_f32 v14, v14, v{SD+6}, v{SD+7}
    v_max3_f32 v15, v15, v{SD+8}, v{SD+9}
    v_max3_f32 v14, v14, v{SD+10}, v{SD+11}
    v_max3_f32 v15, v15, v{SD+12}, v{SD+13}
    v_max3_f32 v14, v14, v{SD+14}, v{SD+15}
    v_max_f32 v14, v14, v15
    v_mov_b32 v15, v14
    s_nop 1
    v_permlane32_swap_b32 v14, v15
    v_max_f32 v14, v14, v15
    v_sub_f32 v14, 0, v14
    v_and_b32 v15, 0xffff0000, v14
    v_sub_f32 v15, v14, v15
    v_and_b32 v12, 0xffff0000, v15
    v_sub_f32 v12, v15, v12
    s_mov_b32 exec_lo, 0
    v_perm_b32 v{QP+6}, v15, v14, s10
    v_lshrrev_b32 v{QP+7}, 16, v12
    s_mov_b64 exec, -1
    """)
    stamp(a, 2, pv=5)
    nonce_get(a, 16)
    stamp(a, 3, pv=5)
    publish(a, 7, 16)
    stamp(a, 5)
    a(f"""
    ds_write_b128 v13, {vr(QP,4)}
    ds_write_b128 v13, {vr(QP+4,4)} offset:1024
    """)
    lds_add(a, C_QX, 14, 15)
    stamp(a, 4, pv=5)
    Q = 8
    O = 40
    SB = [104, 120]
    PB = [136, 144]
    KVB = [152 + 16*i for i in range(NB)]
    VG = 3
    assert 152 + 16*NB <= 248
    a(f"""
    s_lshl_b32 s3, s{sHead}, 6
    s_lshl_b32 s11, s{sW}, 4
    s_add_u32 s3, s3, s11
    s_lshl_b32 s3, s3, 12
    s_add_u32 s3, s3, {WS_KV}
    s_add_u32 s{SKV}, s34, s3
    s_addc_u32 s{SKV+1}, s35, 0
    s_mov_b32 s{SKV+2}, 65536
    s_mov_b32 s{SKV+3}, 0x00020000
    s_mov_b32 s{sPass}, 0
    s_mov_b32 s{sPub}, 0
    """)
    a(f"""
    s_lshl_b32 s11, s{sHead}, 9
    s_lshl_b32 s3, s{sQb}, 9
    s_sub_u32 s3, s3, s11
    s_add_u32 s3, s3, {8192 + 56*8 - 32*16}
    v_lshlrev_b32 v248, 4, v0
    v_add_u32 v249, s3, v248
    v_cmp_gt_u32 vcc, 32, v0
    s_add_u32 s7, s11, {FL_KV}
    s_nop 0
    v_cndmask_b32 v248, v249, v248, vcc
    """)
    zero_acc(O, 4, PB[1])
    if OPT.get("TB", 99) == 9:
        a(f"""
        s_lshl_b32 s3, s{sIdx}, 2
        s_add_u32 s3, s3, s{sW}
        s_mul_i32 s5, s3, {25*128}
        s_mul_i32 s4, s3, {98*128}
        buffer_load_dword v254, v28, {sr(SW2,4)}, s4 offen
        buffer_load_dword v254, v29, {sr(SW2,4)}, s4 offen
        buffer_load_dword v254, v30, {sr(SWO,4)}, s5 offen
        """)
    lds_wait(a, C_QX, 4, 250, 251)
    for i in range(4):
        a(f"""
        s_add_u32 s3, s{sW}, {1+i}
        s_and_b32 s3, s3, 3
        s_lshl_b32 s3, s3, 11
        v_add_u32 v1, s3, v7
        ds_read_b128 {vr(Q+8*i,4)}, v1 offset:{QXB}
        ds_read_b128 {vr(Q+8*i+4,4)}, v1 offset:{QXB+1024}
        """)
    stamp(a, 5, pv=5)
    a(f"""
    s_cmp_lg_u32 s{sW}, 0
    s_cbranch_scc1 k_a_w
    """)
    poll4(a, 34, 248, 7, 252)
    lds_add(a, C_KV, 250, 251)
    a("s_branch k_a_go")
    a.lab("k_a_w")
    lds_wait(a, C_KV, 1, 250, 251, sleep=1)
    a.lab("k_a_go")
    stamp(a, 6, pv=5)
    stamp(a, 6)
    def ldK(b):
        a(f"buffer_load_dwordx4 {vr(KVB[b],4)}, v7, {sr(SKV,4)}, s{sKo} offen sc1")
        a(f"buffer_load_dwordx4 {vr(KVB[b]+4,4)}, v7, {sr(SKV,4)}, s{sKo} offen offset:1024 sc1")
        a(f"s_add_u32 s{sKo}, s{sKo}, 4096")
    def ldV(b):
        a(f"buffer_load_dwordx4 {vr(KVB[b]+8,4)}, v7, {sr(SKV,4)}, s{sVo} offen offset:2048 sc1")
        a(f"buffer_load_dwordx4 {vr(KVB[b]+12,4)}, v7, {sr(SKV,4)}, s{sVo} offen offset:3072 sc1")
        a(f"s_add_u32 s{sVo}, s{sVo}, 4096")
    a(f"""
    s_lshl_b32 s3, s{sQb}, 9
    s_lshl_b32 s11, s{sW}, 7
    s_add_u32 s3, s3, s11
    s_add_u32 s3, s3, {WS_G}
    v_lshlrev_b32 v4, 2, v2
    buffer_load_dword v{VG}, v4, {sr(SWS,4)}, s3 offen sc1
    s_branch k_att_first
    """)
    a.lab("k_att_start")
    zero_acc(O, 4, PB[1])
    a.lab("k_att_first")
    a(f"s_mov_b32 s{sKo}, 0")
    a(f"s_mov_b32 s{sVo}, 0")
    aops = []
    def issue(kind, t):
        (ldK if kind == "K" else ldV)(t % NB); aops.extend([(kind, t)]*2)
    def need(kind, t):
        last = max(k for k, o in enumerate(aops) if o == (kind, t))
        return len(aops) - 1 - last
    UNR = OPT.get("UNR", 0)
    order = []
    for t in range(16 + (0 if UNR else NB)): order += [("K", t), ("V", t)]
    npro = 3 if UNR else 2*NB-1
    if not UNR:
        for i in range(8): a(f"v_mov_b32 v{KVB[NB-1]+8+i}, 0")
        for i in range(8): a(f"v_mov_b32 v{PB[1]+i}, 0")
    for _ in range(npro): issue(*order.pop(0))
    if OPT["TOUCH"]:
        a(f"""
        s_and_b32 s3, s{sQb}, 7
        s_lshl_b32 s3, s3, 7
        v_lshlrev_b32 v4, 10, v0
        buffer_load_dword v6, v4, {sr(SKV,4)}, s3 offen sc1
        """)
        aops.append(("T", 0))
    a(f"""
    s_lshl_b32 s3, s{sW}, 2
    s_add_u32 s3, s3, {C_A3}
    v_mov_b32 v248, s3
    v_mov_b32 v249, 1
    s_mov_b32 s{sC}, 0
    """)
    def oc_base(dst, sreg):
        a(f"""
        s_mul_i32 s{dst}, s{sreg}, 12288
        s_cmp_eq_u32 s{sreg}, 3
        s_cselect_b32 s{dst}, {OC3}, s{dst}
        """)
    for i in range(3):
        a(f"""
        s_add_u32 s3, s{sW}, {1+i}
        s_and_b32 s3, s3, 3
        """)
        oc_base(11, 3)
        a(f"v_add_u32 v{250+i}, s11, v7")
    a("ds_write_b32 v248, v249")
    a("v_mov_b32 v249, 2")
    a(f"s_waitcnt vmcnt({need('K', 0)}) lgkmcnt(0)")
    stamp(a, 7)
    stamp(a, 1, pv=6); stamp(a, 2, True, pv=6)
    a(f"{MFMA} {vr(SB[0],16)}, {vr(KVB[0],4)}, {vr(Q,4)}, 0")
    a(f"{MFMA} {vr(SB[0],16)}, {vr(KVB[0]+4,4)}, {vr(Q+4,4)}, {vr(SB[0],16)}")
    a(f"s_setprio {OPT['PRIO_A']}")
    a("s_nop 13")
    def free_at(kind, t):
        if t < NB: return -1
        return 4*(t-NB)+2 if kind == "K" else 4*(t-NB)+4
    ocw = []
    NU = 64 if UNR else 4*NB
    if not UNR: a.lab("k_aloop")
    for u in range(NU):
        t, qi = u // 4, u % 4
        un = u + 1; tn, qn = un // 4, un % 4
        up = u - 1; tp, qp = up // 4, up % 4
        sc, sn = SB[u % 2], SB[(u+1) % 2]
        pc, pp = PB[u % 2], PB[(u-1) % 2]
        def ex(r): a(f"v_exp_f32 v{sc+r}, v{sc+r}")
        def cv(p): a(f"v_cvt_pk_bf16_f32 v{pc+p}, v{sc+2*p}, v{sc+2*p+1}")
        def w_():
            if ocw: a(ocw.pop(0))
        def wt(kind, tt):
            a(f"s_waitcnt vmcnt({need(kind, tt) if UNR else 4*(NB-1)})")
        if un < 64:
            if qi == 3: wt('K', tn)
            a(f"{MFMA} {vr(sn,16)}, {vr(KVB[tn%NB],4)}, {vr(Q+8*qn,4)}, 0")
        ex(0); ex(1); w_(); ex(2); ex(3)
        if un < 64:
            a(f"{MFMA} {vr(sn,16)}, {vr(KVB[tn%NB]+4,4)}, {vr(Q+8*qn+4,4)}, {vr(sn,16)}")
        if not UNR and qi == 2: issue(*order.pop(0))
        ex(4); ex(5); w_(); ex(6); ex(7)
        cv(0); cv(1)
        if up >= 0 or not UNR:
            if qi == 1: wt('V', t)
            a(f"{MFMA} {vr(O+16*qp,16)}, {vr(KVB[tp%NB]+8,4)}, {vr(pp,4)}, {vr(O+16*qp,16)}")
        ex(8); ex(9); w_(); ex(10); ex(11)
        cv(2); cv(3)
        if up >= 0 or not UNR:
            a(f"{MFMA} {vr(O+16*qp,16)}, {vr(KVB[tp%NB]+12,4)}, {vr(pp+4,4)}, {vr(O+16*qp,16)}")
        if UNR:
            if order and free_at(*order[0]) <= u: issue(*order.pop(0))
        elif qi == 0: issue(*order.pop(0))
        ex(12); ex(13); w_(); ex(14); ex(15)
        cv(4); cv(5); cv(6); cv(7)
        if UNR:
            if u == OPT.get("AS1", 13):
                a("ds_write_b32 v248, v249")
                a("v_mov_b32 v249, 3")
            if u == OPT.get("ASU", 47):
                a("ds_write_b32 v248, v249")
            if u in (15, 31, 47):
                stamp(a, 3+2*(u//16), pv=6); stamp(a, 4+2*(u//16), True, pv=6)
            if u == 56:
                lds_wait(a, C_F1, 4, 4, 5)
            if u in (61, 62):
                i = u - 61
                ocw += [f"ds_write_b128 v{250+i}, {vr(O+16*i+4*r4,4)} offset:{4096*i+1024*r4}" for r4 in (0, 1, 2, 3)]
                ocw.insert(len(ocw)-4, "s_nop 0")
    if not UNR:
        a(f"""
        s_add_u32 s{sC}, s{sC}, 1
        ds_write_b32 v248, v249
        v_add_u32 v249, 1, v249
        s_cmp_lt_u32 s{sC}, {16//NB}
        s_cbranch_scc1 k_aloop
        """)
        for i in range(2):
            ocw += [f"ds_write_b128 v{250+i}, {vr(O+16*i+4*r4,4)} offset:{4096*i+1024*r4}" for r4 in (0, 1, 2, 3)]
    stamp(a, 8)
    stamp(a, 9, pv=6); stamp(a, 10, True, pv=6)
    stamp(a, 1, pv=7)
    a("s_setprio 3")
    a(f"{MFMA} {vr(O+48,16)}, {vr(KVB[15%NB]+8,4)}, {vr(PB[1],4)}, {vr(O+48,16)}")
    a(f"{MFMA} {vr(O+48,16)}, {vr(KVB[15%NB]+12,4)}, {vr(PB[1]+4,4)}, {vr(O+48,16)}")
    if not UNR: lds_wait(a, C_F1, 4, 4, 5)
    stamp(a, 2, pv=7)
    for x in ocw: a(x)
    for r4 in range(4):
        a(f"ds_write_b128 v252, {vr(O+32+4*r4,4)} offset:{8192+1024*r4}")
    lds_add(a, C_OC, 5, 6)
    stamp(a, 3, pv=7)
    oc_base(11, sW)
    a(f"""
    v_add_u32 v1, s11, v7
    s_lshl_b32 s7, s{sPass}, 2
    s_add_u32 s7, s7, 4
    """)
    lds_wait(a, C_OC, "s7", 4, 5)
    stamp(a, 4, pv=7)
    R = 104
    for i in range(12):
        a(f"ds_read_b128 {vr(R+4*i,4)}, v1 offset:{1024*i}")
    OK_ = O + 48
    for i in range(3):
        a(f"s_waitcnt lgkmcnt({8-4*i})")
        for p in range(16):
            a(f"v_add_f32 v{OK_+p}, v{OK_+p}, v{R+16*i+p}")
    OP = R
    stamp(a, 5, pv=7)
    a(f"""
    v_mov_b32 v4, v{OK_+12}
    v_mov_b32 v5, v{OK_+12}
    s_lshl_b32 s3, s{sQb}, 2
    s_add_u32 s3, s3, s{sW}
    v_permlane32_swap_b32 v4, v5
    s_lshl_b32 s3, s3, 4
    s_add_u32 s3, s3, s{sHead}
    v_rcp_f32 v4, v5
    s_lshl_b32 s7, s3, 11
    s_add_u32 s7, s7, {WS_OF}
    v_mul_f32 v4, v4, v{VG}
    s_lshl_b32 s11, s3, 3
    s_add_u32 s11, s11, {FL_O}
    """)
    for p in range(16):
        a(f"v_mul_f32 v{OK_+p}, v4, v{OK_+p}")
    for p in range(8):
        a(f"v_cvt_pk_bf16_f32 v{OP+p}, v{OK_+2*p}, v{OK_+2*p+1}")
    a(f"""
    s_cmp_lg_u32 s{sPub}, 0
    s_cbranch_scc1 k_a_done
    s_mov_b32 exec_lo, 0
    v_mov_b32 v{OP+6}, 0
    v_mov_b32 v{OP+7}, 0
    s_mov_b64 exec, -1
    buffer_store_dwordx4 {vr(OP,4)}, v7, {sr(SWS,4)}, s7 offen sc1
    buffer_store_dwordx4 {vr(OP+4,4)}, v7, {sr(SWS,4)}, s7 offen offset:1024 sc1
    """)
    stamp(a, 6, pv=7)
    for p in range(2, 16):
        a(f"v_add_f32 v{OK_+(p&1)}, v{OK_+(p&1)}, v{OK_+p}")
    a(f"""
    v_add_f32 v{OK_}, v{OK_}, v{OK_+1}
    v_mul_f32 v{OK_}, 0, v{OK_}
    v_add_f32 v5, v5, v{OK_}
    v_mov_b32 v6, {f2u(2.0**40):#x}
    v_cmp_nlt_f32 vcc, v5, v6
    s_cmp_lg_u32 s{sPass}, 0
    s_cbranch_scc1 k_a_pub
    s_cbranch_vccz k_a_pub
    v_mov_b32 v4, {C_BAD}
    v_mov_b32 v6, 1
    ds_write_b32 v4, v6
    s_branch k_a_sync
    """)
    a.lab("k_a_pub")
    stamp(a, 7, pv=7)
    a("s_waitcnt vmcnt(0)")
    stamp(a, 8, pv=7)
    publish(a, 11, 4)
    a(f"s_mov_b32 s{sPub}, 1")
    stamp(a, 9)
    a.lab("k_a_sync")
    a(f"""
    s_cmp_lg_u32 s{sPass}, 0
    s_cbranch_scc1 k_a_done
    """)
    lds_add(a, C_A2, 4, 5)
    lds_wait(a, C_A2, 4, 4, 5)
    a(f"""
    v_mov_b32 v4, {C_BAD}
    ds_read_b32 v6, v4
    s_waitcnt lgkmcnt(0)
    v_readfirstlane_b32 s3, v6
    s_cmp_lg_u32 s3, 0
    s_cbranch_scc1 k_fallback
    """)
    a.lab("k_a_done")
    flush(a, 0)
    a("s_endpgm")
    a.lab("k_fallback")
    MX = O
    a(f"""
    s_mov_b32 s{sPass}, 1
    s_waitcnt vmcnt(0)
    s_mov_b32 exec_lo, 0
    """)
    for i in range(4):
        a(f"v_mov_b32 v{Q+8*i+6}, 0")
        a(f"v_mov_b32 v{Q+8*i+7}, 0")
    a("s_mov_b64 exec, -1")
    for i in range(4):
        a(f"v_mov_b32 v{MX+i}, 0xff800000")
    a(f"s_mov_b32 s{sKo}, 0")
    a.lab("k_fbloop")
    ldK(0)
    a("s_waitcnt vmcnt(0)")
    for i in range(4):
        sb = SB[0]
        a(f"{MFMA} {vr(sb,16)}, {vr(KVB[0],4)}, {vr(Q+8*i,4)}, 0")
        a(f"{MFMA} {vr(sb,16)}, {vr(KVB[0]+4,4)}, {vr(Q+8*i+4,4)}, {vr(sb,16)}")
        a("s_nop 15")
        for r in range(0, 16, 2):
            a(f"v_max3_f32 v{MX+i}, v{MX+i}, v{sb+r}, v{sb+r+1}")
    a(f"""
    s_cmp_lt_u32 s{sKo}, 65536
    s_cbranch_scc1 k_fbloop
    """)
    for i in range(4):
        a(f"""
        s_add_u32 s3, s{sW}, {1+i}
        s_and_b32 s3, s3, 3
        s_lshl_b32 s3, s3, 10
        s_lshl_b32 s11, s{sW}, 8
        s_add_u32 s3, s3, s11
        v_lshl_add_u32 v4, v0, 2, s3
        ds_write_b32 v4, v{MX+i}
        """)
    lds_add(a, C_FB1, 4, 5)
    lds_wait(a, C_FB1, 4, 4, 5)
    for i in range(4):
        a(f"""
        s_add_u32 s3, s{sW}, {1+i}
        s_and_b32 s3, s3, 3
        s_lshl_b32 s3, s3, 10
        v_lshl_add_u32 v4, v2, 2, s3
        """)
        for k in range(8):
            a(f"ds_read_b32 v{MX+8+k}, v4 offset:{128*k}")
        a("s_waitcnt lgkmcnt(0)")
        a(f"""
        v_max3_f32 v5, v{MX+8}, v{MX+9}, v{MX+10}
        v_max3_f32 v5, v5, v{MX+11}, v{MX+12}
        v_max3_f32 v5, v5, v{MX+13}, v{MX+14}
        v_max_f32 v5, v5, v{MX+15}
        v_sub_f32 v5, 0, v5
        v_and_b32 v6, 0xffff0000, v5
        v_sub_f32 v6, v5, v6
        v_and_b32 v4, 0xffff0000, v6
        v_sub_f32 v4, v6, v4
        s_mov_b32 s3, 0x07060302
        s_mov_b32 exec_lo, 0
        v_perm_b32 v{Q+8*i+6}, v6, v5, s3
        v_lshrrev_b32 v{Q+8*i+7}, 16, v4
        s_mov_b64 exec, -1
        """)
    lds_add(a, C_FB2, 4, 5)
    lds_wait(a, C_FB2, 4, 4, 5)
    a("s_branch k_att_start")

    a.lab("k_F")
    GF = 112; AG = 48; XG = 64
    AF = 48
    W1R = 112
    XF = [16, 32, 224]
    WFr = [240, 244]
    TR0 = 12; TW0 = 13
    a(f"s_setprio {OPT['PRIO_F']}")
    srd(a, SDBG, 32, 256)
    a(f"""
    v_lshlrev_b32 v1, 2, v0
    v_add_u32 v1, {LCNT}, v1
    v_mov_b32 v15, 0
    ds_write_b32 v1, v15
    s_or_b32 s3, s2, s{sW}
    s_cmp_lg_u32 s3, 0
    s_cbranch_scc1 k_F_nonce_done
    s_memrealtime s[4:5]
    s_waitcnt lgkmcnt(0)
    s_or_b32 s4, s4, 1
    v_mov_b32 v18, s4
    v_mov_b32 v19, s5
    s_mov_b64 exec, 1
    buffer_store_dwordx2 v[18:19], v15, {sr(SDBG,4)}, 0 offen sc1
    s_mov_b64 exec, -1
    k_F_nonce_done:
    """)
    srd(a, SWS, 34, WS_SIZE)
    srd(a, SW1, 24, D*F*2)
    if OPT.get("CPF", 0):
        a(f"""
        s_getpc_b64 s[4:5]
        k_pc0:
        s_sub_u32 s60, s4, k_pc0-{NAME}
        s_subb_u32 s61, s5, 0
        s_mov_b32 s62, k_code_end-{NAME}
        s_mov_b32 s63, 0x00020000
        s_and_b32 s3, s{sIdx}, 1
        s_lshl_b32 s3, s3, 2
        s_add_u32 s3, s3, s{sW}
        s_lshl_b32 s3, s3, 13
        v_lshlrev_b32 v14, 7, v0
        buffer_load_dword v250, v14, s[60:63], s3 offen
        """)
    xa_setup()
    a(f"""
    s_cmp_ge_u32 s{sJ}, 14
    s_cbranch_scc1 k_gate
    v_lshrrev_b32 v14, 2, v0
    v_mul_u32_u24 v14, 3584, v14
    v_lshl_add_u32 v14, v6, 4, v14
    s_lshl_b32 s9, s{sJ}, 2
    s_add_u32 s9, s9, s{sW}
    s_lshl_b32 s10, s9, 6
    s_mul_i32 s3, s11, {64*3584}
    s_add_u32 s10, s10, s3
    s_sub_u32 s10, s10, {16*3584}
    """)
    if OPT.get("W1T", 1):
        a(f"""
        s_and_b32 s4, s{sMB}, 7
        s_mul_i32 s4, s4, 56
        s_mul_i32 s5, s{sW}, 14
        s_add_u32 s4, s4, s5
        s_mul_i32 s4, s4, 3584
        s_lshl_b32 s5, s{sJ}, 8
        s_add_u32 s4, s4, s5
        v_lshrrev_b32 v13, 1, v0
        v_mul_u32_u24 v13, 3584, v13
        v_and_b32 v15, 1, v0
        v_lshl_add_u32 v13, v15, 7, v13
        v_cmp_gt_u32 vcc, 28, v0
        v_bfrev_b32 v15, 1
        s_nop 0
        v_cndmask_b32 v13, v15, v13, vcc
        buffer_load_dword v251, v13, {sr(SW1,4)}, s4 offen
        """)
    def w1load(i):
        a(f"s_add_u32 s10, s10, {16*3584}")
        a(f"buffer_load_dwordx4 {vr(W1R+4*i,4)}, v14, {sr(SW1,4)}, s10 offen")
        if i % 4 == 3:
            a(f"""
            s_add_u32 s11, s11, 1
            s_cmp_eq_u32 s11, 7
            s_cselect_b32 s3, {448*3584}, 0
            s_sub_u32 s10, s10, s3
            """)
    for kk in range(4):
        a(f"v_add_u32 v{XA+kk}, {XBASE}, v{XA+kk}")
    a(f"""
    v_lshl_add_u32 v15, v3, 3, v4
    v_lshlrev_b32 v15, 6, v15
    v_lshl_add_u32 v15, v5, 5, v15
    v_lshl_add_u32 v15, v6, 3, v15
    s_lshl_b32 s4, s{sW}, 11
    s_add_u32 s4, s4, {W1E}
    v_add_u32 v{TR0}, s4, v15
    v_add_u32 v{TW0}, s4, v7
    """)
    zero_acc(AF, 4, 16)
    W1A = OPT.get("W1A", 28)
    LAG = OPT.get("LAG", 6)
    W1S = OPT.get("W1S", 1)
    if W1S == 0:
        for i in range(W1A): w1load(i)
    a("s_waitcnt lgkmcnt(0)")
    a("s_barrier")
    if W1S:
        lds_wait(a, C_S, 4*W1S, 1, 15, sleep=1)
        for i in range(W1A): w1load(i)
    stamp(a, 1)
    w1n = [W1A]
    def f_stage_l(i):
        return [f"s_waitcnt vmcnt({w1n[0]-1-i})", f"ds_write_b128 v{TW0}, {vr(W1R+4*i,4)} offset:{1024*(i%2)}"]
    def f_xreads_l(i):
        b = XF[i % 3]
        c, kk = i // 4, i % 4
        return [f"ds_read_b128 {vr(b+4*mt,4)}, v{XA+kk} offset:{(c%4)*16384+4096*mt}" for mt in range(4)]
    def f_wreads_l(i):
        w = WFr[i % 2]
        return [f"ds_read_b64_tr_b16 {vr(w+2*u,2)}, v{TR0} offset:{1024*(i%2)+256*u}" for u in range(2)]
    def f_mfma_l(i):
        b = XF[i % 3]; w = WFr[i % 2]
        return [f"{MFMA} {vr(AF+16*mt,16)}, {vr(w,4)}, {vr(b+4*mt,4)}, {vr(AF+16*mt,16)}" for mt in range(4)]
    for x in f_stage_l(0) + f_wreads_l(0) + f_stage_l(1): a(x)
    lds_wait(a, C_S, 4*min(7, 1+LAG), 1, 15, sleep=1)
    stamp(a, 2)
    for x in f_xreads_l(0) + f_xreads_l(1): a(x)
    for t in range(28):
        n = (4 if t == 0 else 5) if t + 1 < 28 else 0
        a(f"s_waitcnt lgkmcnt({n})")
        M = f_mfma_l(t)
        Wr = f_wreads_l(t+1) if t + 1 < 28 else []
        R = f_xreads_l(t+2) if t + 2 < 28 else []
        a(M[0])
        for x in Wr: a(x)
        W1G = OPT.get("W1G", 8)
        if t == W1G and w1n[0] < 28 and W1G > 0:
            lds_wait(a, C_QX, 4, 1, 15)
        if w1n[0] < 28 and t >= W1G:
            w1load(w1n[0]); w1n[0] += 1
            if W1G > 0 and w1n[0] < 28:
                w1load(w1n[0]); w1n[0] += 1
        a(M[1])
        if (t + 2) % 4 == 0 and t + 2 < 28 and (t+2)//4+LAG < 7:
            lds_wait(a, C_S, 4*min(7, (t+2)//4+1+LAG), 1, 15, sleep=1)
            stamp(a, 2+(t+2)//4, pv=2)
        if t + 2 == 16:
            for k2 in range(4):
                a(f"v_add_u32 v{XA+k2}, 0x10000, v{XA+k2}")
        for x in R[0:2]: a(x)
        a(M[2])
        for x in R[2:4]: a(x)
        a(M[3])
        if t + 2 < 28:
            for x in f_stage_l(t+2): a(x)
    stamp(a, 3)
    stamp(a, 6, pv=2)
    stamp(a, 5, pv=3); stamp(a, 6, True, pv=3)
    lds_wait(a, C_Q, 4, 12, 13, sleep=1)
    lds_add(a, C_F1, 12, 13)
    nonce_issue(a, 232)
    a(f"""
    s_mov_b32 s4, {f2u(-LOG2E):#x}
    s_mov_b32 s5, {f2u(-LOG2E):#x}
    s_mov_b32 s6, 1.0
    s_mov_b32 s7, 1.0
    s_lshl_b32 s3, s{sMB}, 2
    s_mul_i32 s3, s3, 56
    s_add_u32 s3, s3, s9
    s_lshl_b32 s3, s3, 11
    s_add_u32 s8, s3, {WS_HF}
    s_lshl_b32 s3, s{sMB}, 9
    s_lshl_b32 s10, s9, 3
    s_add_u32 s10, s10, s3
    s_add_u32 s10, s10, {FL_H}
    """)
    T = 16
    for mt in range(4):
        acc = AF + 16*mt
        HP = 112 + 8*mt
        for g in range(2):
            prs = [4*g+i for i in range(4)]
            if OPT.get("PK", 0):
                for i, p in enumerate(prs):
                    a(f"v_pk_mul_f32 {vr(T+2*i,2)}, {vr(acc+2*p,2)}, s[4:5]")
                for i in range(8):
                    a(f"v_exp_f32 v{T+i}, v{T+i}")
                for i in range(4):
                    a(f"v_pk_add_f32 {vr(T+2*i,2)}, {vr(T+2*i,2)}, s[6:7]")
                for i in range(8):
                    a(f"v_rcp_f32 v{T+i}, v{T+i}")
                for i, p in enumerate(prs):
                    a(f"v_pk_mul_f32 {vr(T+2*i,2)}, {vr(acc+2*p,2)}, {vr(T+2*i,2)}")
            else:
                for i in range(8):
                    a(f"v_mul_f32 v{T+i}, s4, v{acc+8*g+i}")
                for i in range(8):
                    a(f"v_exp_f32 v{T+i}, v{T+i}")
                for i in range(8):
                    a(f"v_add_f32 v{T+i}, 1.0, v{T+i}")
                for i in range(8):
                    a(f"v_rcp_f32 v{T+i}, v{T+i}")
                for i in range(8):
                    a(f"v_mul_f32 v{T+i}, v{acc+8*g+i}, v{T+i}")
            for i, p in enumerate(prs):
                a(f"v_cvt_pk_bf16_f32 v{HP+p}, v{T+2*i}, v{T+2*i+1}")
            if not OPT.get("HD", 1):
                a(f"buffer_store_dwordx4 {vr(HP+4*g,4)}, v7, {sr(SWS,4)}, s8 offen offset:{g*1024} sc1")
        if not OPT.get("HD", 1):
            a(f"s_add_u32 s8, s8, {56*2048}")
    if OPT.get("HD", 1):
        stamp(a, 4)
        a(f"""
        s_lshl_b32 s3, s{sW}, 2
        s_add_u32 s3, s3, {C_A3}
        """)
        lds_wait(a, "s3", OPT.get("HG", 1), 16, 17, sleep=OPT.get("FSL", 4))
        for mt in range(4):
            for g in range(2):
                a(f"buffer_store_dwordx4 {vr(112+8*mt+4*g,4)}, v7, {sr(SWS,4)}, s8 offen offset:{g*1024} sc1")
            a(f"s_add_u32 s8, s8, {56*2048}")
            a("s_waitcnt vmcnt(0)")
    if not OPT.get("HD", 1): stamp(a, 4)
    stamp(a, 7, pv=2)
    stamp(a, 7, pv=3); stamp(a, 8, True, pv=3)
    nonce_get(a, 232)
    publish(a, 10, 16)
    a("s_branch k_ffn2")
    a.lab("k_gate")
    a(f"""
    s_cmp_eq_u32 s{sJ}, 15
    s_cbranch_scc1 k_f15
    v_lshlrev_b32 v14, 4, v3
    """)
    srd(a, SG, 28, D*2)
    for c in range(7):
        a("s_lshl_b32 s10, s11, 7")
        for kk in range(4):
            a(f"buffer_load_dwordx4 {vr(GF+4*(4*c+kk),4)}, v14, {sr(SG,4)}, s10 offen offset:{kk*32}")
        a("""
        s_add_u32 s11, s11, 1
        s_cmp_eq_u32 s11, 7
        s_cselect_b32 s11, 0, s11
        """)
    a(f"""
    s_lshl_b32 s3, s{sW}, 12
    s_add_u32 s3, s3, {XBASE}
    """)
    for kk in range(4):
        a(f"v_add_u32 v{XA+kk}, s3, v{XA+kk}")
    zero_acc(AG, 1, 16)
    a("s_waitcnt lgkmcnt(0)")
    a("s_barrier")
    a("s_waitcnt vmcnt(0)")
    nonce_issue(a, 232)
    for c in range(7):
        lds_wait(a, C_S, 4*(c+1), 1, 15, sleep=1)
        for kk in range(4):
            a(f"ds_read_b128 {vr(XG+4*kk,4)}, v{XA+kk}")
            a(f"v_add_u32 v{XA+kk}, 0x4000, v{XA+kk}")
        for kk in range(4):
            a(f"s_waitcnt lgkmcnt({3-kk})")
            a(f"{MFMA} {vr(AG,16)}, {vr(GF+4*(4*c+kk),4)}, {vr(XG+4*kk,4)}, {vr(AG,16)}")
    a(f"""
    s_lshl_b32 s3, s{sMB}, 9
    s_lshl_b32 s4, s{sW}, 7
    s_add_u32 s4, s3, s4
    s_add_u32 s4, s4, {WS_G}
    s_lshl_b32 s10, s{sW}, 3
    s_add_u32 s10, s10, s3
    s_add_u32 s10, s10, {FL_H + 56*8}
    v_lshlrev_b32 v13, 2, v2
    s_nop 7
    v_mul_f32 v14, {f2u(-LOG2E):#x}, v{AG}
    v_exp_f32 v14, v14
    s_nop 0
    v_add_f32 v14, 1.0, v14
    v_rcp_f32 v14, v14
    s_nop 0
    buffer_store_dword v14, v13, {sr(SWS,4)}, s4 offen sc1
    """)
    nonce_get(a, 232)
    publish(a, 10, 16)
    lds_wait(a, C_Q, 4, 1, 15, sleep=1)
    lds_add(a, C_F1, 12, 13)
    a("s_branch k_ffn2")
    a.lab("k_f15")
    a("s_waitcnt lgkmcnt(0)")
    a("s_barrier")
    lds_wait(a, C_Q, 4, 12, 13, sleep=1)
    lds_add(a, C_F1, 12, 13)
    nonce_issue(a, 232)
    nonce_get(a, 232)
    a.lab("k_ffn2")
    stamp(a, 5)
    ACC = 16; WOF = 176; OFR = 80
    FD = OPT.get("FD", 3)
    HBr = [112 + 16*i for i in range(FD)]
    WF2 = [80, 96]
    VD = 8; TA = 14
    sRb, sCb, sM0, sWo, sHo, sHo1, sT3 = 4, 5, 6, 7, 8, 9, 11
    srd(a, SW2, 26, F*D*2)
    srd(a, SWO, 20, D*D*2)
    if OPT.get("FT", 1):
        a(f"""
        s_lshl_b32 s3, s{sIdx}, 2
        s_add_u32 s3, s3, s{sW}
        s_mul_i32 s5, s3, {25*128}
        s_mul_i32 s4, s3, {98*128}
        v_lshlrev_b32 v28, 7, v0
        v_add_u32 v29, 8192, v28
        v_cmp_gt_u32 vcc, 34, v0
        v_bfrev_b32 v15, 1
        v_mov_b32 v30, v28
        v_cndmask_b32 v29, v15, v29, vcc
        v_cmp_gt_u32 vcc, 25, v0
        s_nop 1
        v_cndmask_b32 v30, v15, v30, vcc
        """)
        a(f"""
        s_lshl_b32 s10, s{sW}, 2
        s_add_u32 s10, s10, {C_A3}
        """)
        lds_wait(a, "s10", OPT.get("TG", 2), 80, 81, sleep=OPT.get("FSL", 4))
        a(f"""
        buffer_load_dword v240, v28, {sr(SW2,4)}, s4 offen
        s_waitcnt vmcnt(0)
        buffer_load_dword v241, v29, {sr(SW2,4)}, s4 offen
        buffer_load_dword v242, v30, {sr(SWO,4)}, s5 offen
        s_waitcnt vmcnt(0)
        """)
    a(f"""
    s_cmp_ge_u32 s{sIdx}, {0 if OPT.get('NOF2') else 28}
    s_cbranch_scc1 k_f_done
    s_mul_i32 s3, s{sIdx}, 37
    s_lshr_b32 s3, s3, 8
    s_mul_i32 s{sT}, s3, 7
    s_sub_u32 s{sCb}, s{sIdx}, s{sT}
    s_lshl_b32 s{sRb}, s{sX}, 2
    s_add_u32 s{sRb}, s{sRb}, s3
    """)
    srd(a, SOUT, 30, S*D*2)
    a(f"""
    v_lshrrev_b32 v1, 3, v0
    v_mul_u32_u24 v1, 896, v1
    v_bfe_u32 v12, v0, 2, 1
    v_xor_b32 v12, v12, v5
    v_lshl_add_u32 v1, v12, 6, v1
    v_lshl_add_u32 v{VD}, v6, 4, v1
    v_add_u32 v{VD+1}, 6144, v{VD}
    v_add_u32 v{VD+2}, {2*6144}, v{VD}
    v_add_u32 v{VD+3}, {3*6144}, v{VD}
    s_mul_i32 s{sM0}, s{sW}, {RING}
    s_add_u32 s{sM0}, s{sM0}, {RING0}
    v_lshl_add_u32 v1, v3, 2, v4
    v_lshlrev_b32 v1, 7, v1
    v_lshl_add_u32 v1, v5, 5, v1
    v_lshl_add_u32 v1, v6, 3, v1
    v_add_u32 v1, s{sM0}, v1
    v_bfe_u32 v13, v0, 3, 1
    v_lshl_add_u32 v{TA}, v13, 6, v1
    v_xor_b32 v13, 1, v13
    v_lshl_add_u32 v{TA+1}, v13, 6, v1
    s_mul_i32 s{sWo}, s{sW}, {448*896}
    s_lshl_b32 s3, s{sCb}, 7
    s_add_u32 s{sWo}, s{sWo}, s3
    s_mul_i32 s3, s{sRb}, 112
    s_mul_i32 s{sT}, s{sW}, 14
    s_add_u32 s3, s3, s{sT}
    s_lshl_b32 s3, s3, 11
    s_add_u32 s{sHo}, s3, {WS_HF}
    s_add_u32 s{sHo1}, s{sHo}, {56*2048}
    s_mov_b32 s{sT3}, s{sM0}
    """)
    a(f"""
    s_and_b32 s3, s{sRb}, 1
    s_lshl_b32 s3, s3, 4
    v_lshlrev_b32 v1, 4, v0
    v_add_u32 v13, s3, v1
    v_cmp_gt_u32 vcc, 28, v0
    s_lshr_b32 s3, s{sRb}, 1
    s_lshl_b32 s3, s3, 9
    v_cndmask_b32 v1, v13, v1, vcc
    s_add_u32 s10, s3, {FL_H}
    v_mul_u32_u24 v4, 7, v0
    v_add_u32 v4, s{sCb}, v4
    v_cmp_le_u32 vcc, 224, v4
    v_lshlrev_b32 v4, 7, v4
    v_add_u32 v5, {56*2048 - 224*128}, v4
    v_lshlrev_b32 v6, 2, v2
    v_cndmask_b32 v4, v4, v5, vcc
    """)
    zero_acc(ACC, 4, 80)
    lds_wait(a, C_F1, 4, 80, 81, sleep=1)
    def wdma_l(i):
        L = [f"s_add_u32 m0, s{sM0}, {4096*(i % (FD+1))}\n s_nop 0\n buffer_load_dwordx4 v{VD}, {sr(SW2,4)}, s{sWo} offen lds"]
        for k in range(1, 4):
            L.append(f"buffer_load_dwordx4 v{VD+k}, {sr(SW2,4)}, s{sWo} offen offset:{1024*k} lds")
        L[-1] += f"\n s_add_u32 s{sWo}, s{sWo}, {32*896}"
        return L
    def hld_l(i):
        hb = HBr[i % FD]
        L = []
        for kk in range(2):
            for mi in range(2):
                L.append(f"buffer_load_dwordx4 {vr(hb+8*mi+4*kk,4)}, v7, {sr(SWS,4)}, s{sHo if mi == 0 else sHo1} offen offset:{2048*(i%2)+1024*kk} sc1")
        if i % 2 == 1:
            L[-1] += f"\n s_add_u32 s{sHo}, s{sHo}, 4096\n s_add_u32 s{sHo1}, s{sHo1}, 4096"
        return L
    def tread_list(dst, off):
        L = []
        for kk in range(2):
            for ni in range(2):
                for u in range(2):
                    L.append(f"ds_read_b64_tr_b16 {vr(dst(ni,kk)+2*u,2)}, v{TA+ni} offset:{off+(16*kk+8*u)*128}")
        return L
    def treads(dst, off):
        for x in tread_list(dst, off): a(x)
    a(f"""
    s_mul_i32 s15, s{sW}, {4*28*896}
    s_lshl_b32 s3, s{sCb}, 7
    s_add_u32 s15, s15, s3
    """)
    for hl in range(4):
        a(f"s_add_u32 m0, s{sM0}, {4096*hl}")
        a("s_nop 0")
        for i in range(4):
            a(f"buffer_load_dwordx4 v{VD+i}, {sr(SWO,4)}, s15 offen offset:{1024*i} lds")
        a(f"s_add_u32 s15, s15, {28*896}")
    for hl in range(4):
        a(f"s_waitcnt vmcnt({12-4*hl})")
        treads(lambda ni,kk: WOF+16*hl+8*kk+4*ni, 4096*hl)
        a("s_waitcnt lgkmcnt(4)")
    a("s_waitcnt lgkmcnt(0)")
    for i in range(FD):
        for x in wdma_l(i): a(x)
    a(f"""
    s_cmp_lg_u32 s{sW}, 0
    s_cbranch_scc1 k_f_w
    """)
    poll4(a, 29, 1, 10, 80)
    lds_add(a, C_H, 80, 81)
    a("s_branch k_f_go")
    a.lab("k_f_w")
    lds_wait(a, C_H, 1, 80, 81, sleep=2)
    a.lab("k_f_go")
    stamp(a, 6)
    a(f"s_setprio {OPT.get('PRIO_F2', 0)}")
    a(f"""
    s_lshl_b32 s3, s{sRb}, 8
    s_add_u32 s3, s3, {WS_G}
    """)
    ops = []
    for x in hld_l(0): a(x); ops.append(("h", 0))
    if OPT["TOUCH"]:
        a(f"buffer_load_dword v5, v4, {sr(SWS,4)}, s{sHo} offen sc1"); ops.append(("t", 0))
    for i in range(1, FD):
        for x in hld_l(i): a(x); ops.append(("h", i))
    a(f"buffer_load_dword v1, v6, {sr(SWS,4)}, s3 offen sc1"); ops.append(("g", 0))
    a(f"buffer_load_dword v13, v6, {sr(SWS,4)}, s3 offen offset:128 sc1"); ops.append(("g", 0))
    def newer(tag):
        idx = [k for k, o in enumerate(ops) if o == tag]
        return len(ops) - 1 - idx[-1] if idx else None
    treads(lambda ni,kk: WF2[0]+8*ni+4*kk, 0) if False else None
    if OPT.get("ASIG", 3) > 0:
        a(f"""
        s_lshl_b32 s10, s{sW}, 2
        s_add_u32 s10, s10, {C_A3}
        """)
        lds_wait(a, "s10", 3 if OPT.get("UNR", 0) else OPT.get("ASI", 3)+1, 240, 241, sleep=OPT.get("FSL", 4))
        stamp(a, 2, pv=0) if False else None
    a(f"s_waitcnt vmcnt({len(ops)})")
    treads(lambda ni,kk: WF2[0]+8*ni+4*kk, 0)
    for i in range(14):
        b = i % 2
        need = [newer(("h", i))]
        if i + 1 < 14 and newer(("w", i+1)) is not None: need.append(newer(("w", i+1)))
        a(f"s_waitcnt vmcnt({min(need)}) lgkmcnt(0)")
        rl = tread_list(lambda ni,kk: WF2[1-b]+8*ni+4*kk, 4096*((i+1) % (FD+1))) if i + 1 < 14 else []
        wl = wdma_l(i+FD) if i + FD < 14 else []
        hl_ = hld_l(i+FD) if i + FD < 14 else []
        m = 0
        for kk in range(2):
            for mi in range(2):
                for ni in range(2):
                    acc = ACC + 16*(2*mi+ni)
                    hb = HBr[i % FD]
                    a(f"{MFMA} {vr(acc,16)}, {vr(WF2[b]+8*ni+4*kk,4)}, {vr(hb+8*mi+4*kk,4)}, {vr(acc,16)}")
                    if rl and m < 4:
                        a(rl[2*m]); a(rl[2*m+1])
                    if wl and m < 4:
                        a(wl[m]); ops.append(("w", i+FD))
                    if hl_ and m in (4, 5):
                        a(hl_[m-4]); ops.append(("h", i+FD))
                    if hl_ and m == 7:
                        a(hl_[2]); a(hl_[3]); ops.append(("h", i+FD)); ops.append(("h", i+FD))
                    m += 1
    a("s_waitcnt vmcnt(0) lgkmcnt(0)")
    stamp(a, 7)
    a("s_setprio 2")
    a(f"""
    v_sub_f32 v4, 1.0, v1
    v_sub_f32 v6, 1.0, v13
    """)
    for mi in range(2):
        for r in range(32):
            a(f"v_mul_f32 v{ACC+32*mi+r}, v{4+2*mi}, v{ACC+32*mi+r}")
    a(f"""
    v_lshrrev_b32 v1, 2, v0
    v_lshlrev_b32 v1, 7, v1
    v_and_b32 v13, 3, v0
    v_lshl_add_u32 v1, v13, 3, v1
    s_lshl_b32 s3, s{sRb}, 8
    s_lshl_b32 s{sT}, s{sW}, 5
    s_add_u32 s3, s3, s{sT}
    s_add_u32 s{sT}, s3, {FL_O}
    s_lshl_b32 s3, s{sRb}, 5
    s_lshl_b32 s{sHo}, s{sW}, 2
    s_add_u32 s3, s3, s{sHo}
    s_lshl_b32 s3, s3, 11
    s_add_u32 s{sHo}, s3, {WS_OF}
    s_add_u32 s{sWo}, s{sHo}, 32768
    s_waitcnt vmcnt(0)
    """)
    stamp(a, 8)
    lds_wait(a, C_A2, 4, 8, 9, sleep=2)
    a("s_setprio 3")
    poll(a, 8, 1, sT, 8)
    stamp(a, 9)
    stamp(a, 1, pv=7)
    for hl in range(4):
        if hl == 2:
            a(f"s_add_u32 s{sHo}, s{sHo}, 4096")
            a(f"s_add_u32 s{sWo}, s{sWo}, 4096")
        for kk in range(2):
            for mi in range(2):
                so = sHo if mi == 0 else sWo
                a(f"buffer_load_dwordx4 {vr(OFR+16*hl+8*kk+4*mi,4)}, v7, {sr(SWS,4)}, s{so} offen offset:{2048*(hl&1)+1024*kk} sc1")
    n = 16
    for hl in range(4):
        for kk in range(2):
            n -= 2
            a(f"s_waitcnt vmcnt({n})")
            if n == 14: stamp(a, 2, pv=7)
            for mi in range(2):
                for ni in range(2):
                    acc = ACC + 16*(2*mi+ni)
                    a(f"{MFMA} {vr(acc,16)}, {vr(WOF+16*hl+8*kk+4*ni,4)}, {vr(OFR+16*hl+8*kk+4*mi,4)}, {vr(acc,16)}")
    stamp(a, 3, pv=7)
    a(f"""
    v_add_u32 v4, s{sT3}, v7
    s_lshl_b32 s3, s{sW}, 12
    s_add_u32 s3, s3, {RING0}
    v_add_u32 v5, s3, v7
    s_nop 7
    """)
    RR = 80
    for wv in range(4):
        a(f"s_cmp_lg_u32 s{sW}, {wv}")
        a(f"s_cbranch_scc1 k_red{wv}_skip")
        for t in range(4):
            if t == wv: continue
            for r4 in range(4):
                a(f"ds_write_b128 v4, {vr(ACC+16*t+4*r4,4)} offset:{4096*t+1024*r4}")
        for r in range(16):
            a(f"v_mov_b32 v{128+r}, v{ACC+16*wv+r}")
        a.lab(f"k_red{wv}_skip")
    lds_add(a, C_RED, 8, 9)
    stamp(a, 4, pv=7)
    a(f"""
    s_lshr_b32 s3, s{sW}, 1
    s_lshl_b32 s3, s3, 5
    s_lshl_b32 s{sT}, s{sRb}, 6
    s_add_u32 s3, s3, s{sT}
    s_mul_i32 s3, s3, 896
    s_lshl_b32 s{sT}, s{sCb}, 7
    s_add_u32 s3, s3, s{sT}
    s_and_b32 s{sT}, s{sW}, 1
    s_lshl_b32 s{sT}, s{sT}, 6
    s_add_u32 s{sT}, s3, s{sT}
    v_mul_u32_u24 v4, 896, v2
    v_lshrrev_b32 v6, 5, v0
    v_lshl_add_u32 v4, v6, 4, v4
    """)
    lds_wait(a, C_RED, 4, 8, 9)
    stamp(a, 5, pv=7)
    for i in range(3):
        a(f"""
        s_add_u32 s3, s{sW}, {1+i}
        s_and_b32 s3, s3, 3
        s_mul_i32 s3, s3, {RING}
        v_add_u32 v6, s3, v5
        """)
        for r4 in range(4):
            a(f"ds_read_b128 {vr(RR+16*i+4*r4,4)}, v6 offset:{1024*r4}")
    for i in range(3):
        a(f"s_waitcnt lgkmcnt({8-4*i})")
        for p in range(8):
            a(f"v_pk_add_f32 {vr(128+2*p,2)}, {vr(128+2*p,2)}, {vr(RR+16*i+2*p,2)}")
    for p in range(8):
        a(f"v_cvt_pk_bf16_f32 v{16+p}, v{128+2*p}, v{128+2*p+1}")
    a(f"""
    s_nop 1
    v_permlane32_swap_b32 v16, v18
    v_permlane32_swap_b32 v17, v19
    v_permlane32_swap_b32 v20, v22
    v_permlane32_swap_b32 v21, v23
    buffer_store_dwordx4 v[16:19], v4, {sr(SOUT,4)}, s{sT} offen
    buffer_store_dwordx4 v[20:23], v4, {sr(SOUT,4)}, s{sT} offen offset:32
    """)
    stamp(a, 6, pv=7)
    if PROF:
        a("s_waitcnt vmcnt(0)"); stamp(a, 10); stamp(a, 7, pv=7)
    a.lab("k_f_done")
    flush(a, 4)
    a("s_endpgm")
    a.lab("k_end")
    a("s_endpgm")
    a.lab("k_code_end")

def main(out):
    a = A()
    gen(a)
    txt = "; gated_mix: softmax MHA + SiLU FFN + sigmoid gate, one fused persistent kernel. Generated by work/gen4.py\n"
    txt += f"; @launch grid=(256,1,1) block=(512,1,1) lds={LDS_BYTES}\n"
    txt += '.amdgcn_target "amdgcn-amd-amdhsa--gfx950"\n.text\n'
    txt += a.text()
    txt += f""".section .rodata,"a"
.p2align 6
.amdhsa_kernel {NAME}
  .amdhsa_next_free_vgpr 256
  .amdhsa_next_free_sgpr 102
  .amdhsa_accum_offset 256
  .amdhsa_group_segment_fixed_size 0
  .amdhsa_kernarg_size 80
  .amdhsa_user_sgpr_count 2
  .amdhsa_user_sgpr_kernarg_segment_ptr 1
  .amdhsa_system_sgpr_workgroup_id_x 1
.end_amdhsa_kernel
"""
    open(out, "w").write(txt)

if __name__ == "__main__":
    main(sys.argv[1] if len(sys.argv) > 1 else "f.s")
```

```python
import math, struct, sys, os

def f2u(x):
    return struct.unpack("<I", struct.pack("<f", x))[0]

S, D, H, DH, F = 2048, 448, 16, 28, 1792
WS_QF = 0
WS_KV = 2 << 20
WS_HF = 6 << 20
WS_OF = 14 << 20
WS_G  = 16 << 20
WS_FL = (16 << 20) + 65536
FL_KV = WS_FL
FL_H  = WS_FL + 8192
FL_O  = WS_FL + 16384
WS_SIZE = (16 << 20) + 131072
PROF = int(os.environ.get("PROF", "0"))
WS_PROF = WS_SIZE
if PROF:
    WS_SIZE = WS_PROF + 2*256*8*64
OPT = dict(NB=4, TOUCH=1, PRIO_A=1, PRIO_F=2)
for kv in os.environ.get("OPT", "").split(","):
    if "=" in kv:
        k, v = kv.split("="); OPT[k] = int(v)

LOG2E = 1.4426950408889634
QSCALE = (DH ** -0.5) * LOG2E
NAME = "gated_mix__softmax_full_mha__dense_activation_silu__prompt_kernel"

class A:
    def __init__(self):
        self.l = []
        self.n = 0
    def __call__(self, s):
        for x in s.strip("\n").split("\n"):
            x = x.strip()
            if not x: continue
            self.l.append(x if x.endswith(":") else "  " + x)
    def lab(self, s):
        self.l.append(s + ":")
    def uniq(self, p):
        self.n += 1
        return f"{p}_{self.n}"
    def text(self):
        return "\n".join(self.l) + "\n"

def vr(b, n): return f"v[{b}:{b+n-1}]" if n > 1 else f"v{b}"
def sr(b, n): return f"s[{b}:{b+n-1}]" if n > 1 else f"s{b}"
MFMA = "v_mfma_f32_32x32x16_bf16"

SX, SWQ, SWS, SW1, SW2, SWO, SOUT, SG, SDBG = 36, 40, 44, 48, 52, 56, 60, 64, 68
SKV = 48
sMB, sJ, sW, sX, sIdx, sC, sK, sT = 72, 73, 74, 75, 76, 77, 78, 79
sE = 12
XBASE = 49152
QSLOT = 12288
LCNT = 36864
C_F1, C_OC, C_BAD, C_A2, C_RED, C_FB1, C_FB2, C_Q, C_KV, C_H, C_QX, C_S = [LCNT + 4*i for i in range(12)]
C_A3 = LCNT + 64
QXB = 12288
W1E = LCNT + 1024
RING0 = 40960
RING = 24576
OC3 = RING0 + 4*RING
LDS_BYTES = 163840

def srd(a, d, base, nbytes):
    a(f"s_mov_b32 s{d}, s{base}")
    a(f"s_mov_b32 s{d+1}, s{base+1}")
    a(f"s_mov_b32 s{d+2}, {nbytes}")
    a(f"s_mov_b32 s{d+3}, 0x00020000")

PV = OPT.get("PV", 0)
def stamp(a, i, cyc=False, pv=0):
    if PROF and (pv == PV or i == 0):
        assert 0 <= i < 11
        a(f"{'s_memtime' if cyc else 's_memrealtime'} s[{80+2*i}:{81+2*i}]")
def flush(a, wadd):
    if not PROF: return
    if OPT.get("HPROF"):
        L = a.uniq("hp")
        a("s_waitcnt lgkmcnt(0)")
        a(f"s_or_b32 s3, s2, s{sW}")
        a(f"s_cmp_lg_u32 s3, {OPT.get('HWG', 0)}")
        a(f"s_cbranch_scc1 {L}")
        sel = [2, 3, 7, 8, 9, 1, 10] if wadd == 0 else [2, 3, 4, 6, 7, 9, 10]
        a("s_mov_b64 exec, 1")
        a("v_mov_b32 v28, 0")
        for k, i in enumerate(sel):
            if wadd == 0 and i == 1:
                continue
            if wadd == 0 and i == 10:
                a(f"s_sub_u32 s3, s{80+2*10}, s{80+2*1}")
            else:
                a(f"s_sub_u32 s3, s{80+2*i}, s80")
            a(f"v_mov_b32 v16, s3")
            a(f"buffer_store_dword v16, v28, {sr(SDBG,4)}, 0 offen offset:{8+4*k+(28 if wadd else 0)}")
        a.lab(L)
        return
    a("s_waitcnt lgkmcnt(0)")
    a(f"s_lshl_b32 s3, s2, 3")
    a(f"s_add_u32 s3, s3, s{sW}")
    a(f"s_add_u32 s3, s3, {wadd}")
    a(f"s_lshl_b32 s3, s3, 6")
    a(f"s_add_u32 s3, s3, {WS_PROF}")
    a("s_mov_b64 exec, 1")
    a("s_nop 4")
    for i in range(11):
        a(f"v_mov_b32 v{16+i}, s{80+2*i}")
    a("v_mov_b32 v27, 0")
    a("v_mov_b32 v28, 0")
    for i in range(3):
        a(f"buffer_store_dwordx4 v[{16+4*i}:{19+4*i}], v28, {sr(SWS,4)}, s3 offen offset:{16*i}")

def lds_add(a, cnt, vt0, vt1):
    a(f"""
    v_mov_b32 v{vt0}, {cnt}
    v_mov_b32 v{vt1}, 1
    s_mov_b64 exec, 1
    ds_add_u32 v{vt0}, v{vt1}
    s_mov_b64 exec, -1
    """)
def lds_wait(a, cnt, target, vt0, vt1, sleep=0):
    L = a.uniq("lw"); E = a.uniq("lwe")
    a(f"v_mov_b32 v{vt0}, {cnt}")
    a(f"s_mov_b32 s14, 0")
    a.lab(L)
    a(f"""
    ds_read_b32 v{vt1}, v{vt0}
    s_add_u32 s14, s14, 1
    s_waitcnt lgkmcnt(0)
    v_readfirstlane_b32 s15, v{vt1}
    s_cmp_gt_u32 s14, 0x200000
    s_cbranch_scc1 {E}
    s_cmp_ge_u32 s15, {target}
    s_cbranch_scc1 {E}
    {f"s_sleep {sleep}" if sleep else ""}
    s_branch {L}
    """)
    a.lab(E)

def nonce_issue(a, vt):
    a(f"v_mov_b32 v{vt}, 0")
    a(f"buffer_load_dwordx2 {vr(vt+2,2)}, v{vt}, {sr(SDBG,4)}, 0 offen sc1")
def nonce_get(a, vt):
    L = a.uniq("ng"); E = a.uniq("nge")
    a("s_mov_b32 s14, 0")
    a.lab(L)
    a(f"""
    s_waitcnt vmcnt(0)
    v_readfirstlane_b32 s{sE}, v{vt+2}
    v_readfirstlane_b32 s{sE+1}, v{vt+3}
    s_add_u32 s14, s14, 1
    s_cmp_gt_u32 s14, 0x40000
    s_cbranch_scc1 {E}
    s_cmp_lg_u32 s{sE}, 0
    s_cbranch_scc1 {E}
    buffer_load_dwordx2 {vr(vt+2,2)}, v{vt}, {sr(SDBG,4)}, 0 offen sc1
    s_branch {L}
    """)
    a.lab(E)
def publish(a, soff, vt):
    a(f"""
    v_mov_b32 v{vt}, s{sE}
    v_mov_b32 v{vt+1}, s{sE+1}
    v_mov_b32 v{vt+2}, 0
    s_mov_b64 exec, 1
    buffer_store_dwordx2 {vr(vt,2)}, v{vt+2}, {sr(SWS,4)}, s{soff} offen sc1
    s_mov_b64 exec, -1
    """)
def poll(a, nl, voff, soff, vt):
    L = a.uniq("pl"); E = a.uniq("ple")
    a(f"s_mov_b32 exec_lo, {((1<<nl)-1) & 0xffffffff:#x}")
    a(f"s_mov_b32 exec_hi, {((1<<nl)-1) >> 32:#x}")
    a("s_mov_b32 s14, 0")
    a.lab(L)
    a(f"""
    buffer_load_dwordx2 {vr(vt,2)}, v{voff}, {sr(SWS,4)}, s{soff} offen sc1
    s_add_u32 s14, s14, 1
    s_waitcnt vmcnt(0)
    v_cmp_eq_u64 vcc, {sr(sE,2)}, {vr(vt,2)}
    s_cmp_gt_u32 s14, 0x40000
    s_cbranch_scc1 {E}
    s_cmp_eq_u64 vcc, exec
    s_cbranch_scc1 {E}
    s_sleep {OPT.get("PSLEEP", 3)}
    s_branch {L}
    """)
    a.lab(E)
    a("s_mov_b64 exec, -1")

def poll4(a, nl, voff, soff, vt):
    L = a.uniq("pl"); E = a.uniq("ple")
    a(f"s_mov_b32 exec_lo, {((1<<nl)-1) & 0xffffffff:#x}")
    a(f"s_mov_b32 exec_hi, {((1<<nl)-1) >> 32:#x}")
    a("s_mov_b32 s14, 0")
    a.lab(L)
    a(f"""
    buffer_load_dwordx4 {vr(vt,4)}, v{voff}, {sr(SWS,4)}, s{soff} offen sc1
    s_add_u32 s14, s14, 1
    s_waitcnt vmcnt(0)
    v_cmp_eq_u64 vcc, {sr(sE,2)}, {vr(vt,2)}
    v_cmp_eq_u64 s[{sT-1}:{sT}], {sr(sE,2)}, {vr(vt+2,2)}
    s_cmp_gt_u32 s14, 0x40000
    s_cbranch_scc1 {E}
    s_and_b64 vcc, vcc, s[{sT-1}:{sT}]
    s_cmp_eq_u64 vcc, exec
    s_cbranch_scc1 {E}
    s_sleep {OPT.get("PSLEEP", 3)}
    s_branch {L}
    """)
    a.lab(E)
    a("s_mov_b64 exec, -1")

def gen(a):
    NB = OPT["NB"]
    a.l.append(f".globl {NAME}")
    a.l.append(".p2align 8")
    a.l.append(f".type {NAME},@function")
    a.lab(NAME)
    a(f"""
    s_cmp_ge_u32 s2, 256
    s_cbranch_scc1 k_end
    s_load_dwordx16 s[16:31], s[0:1], 0
    s_load_dwordx4 s[32:35], s[0:1], 64
    """)
    if PROF:
        for i in range(1, 11):
            a(f"s_mov_b64 s[{80+2*i}:{81+2*i}], 0")
        stamp(a, 0)
    VXO = 20
    XA = 8
    a(f"""
    v_lshrrev_b32 v1, 6, v0
    v_and_b32 v0, 63, v0
    s_and_b32 s{sX}, s2, 7
    s_lshr_b32 s{sIdx}, s2, 3
    v_readfirstlane_b32 s{sW}, v1
    s_and_b32 s{sMB}, s{sX}, 1
    s_lshl_b32 s{sMB}, s{sMB}, 3
    s_and_b32 s3, s{sIdx}, 7
    s_add_u32 s{sMB}, s{sMB}, s3
    s_lshr_b32 s{sJ}, s{sX}, 1
    s_lshl_b32 s{sJ}, s{sJ}, 2
    s_lshr_b32 s3, s{sIdx}, 3
    s_add_u32 s{sJ}, s{sJ}, s3
    v_lshrrev_b32 v14, 3, v0
    v_mul_u32_u24 v14, 896, v14
    v_lshrrev_b32 v15, 4, v0
    v_and_b32 v1, 7, v0
    v_xor_b32 v15, v15, v1
    v_lshl_add_u32 v{VXO}, v15, 4, v14
    v_xor_b32 v15, 4, v15
    v_lshl_add_u32 v{VXO+1}, v15, 4, v14
    v_add_u32 v{VXO+2}, {2*6144}, v{VXO}
    v_add_u32 v{VXO+3}, {3*6144}, v{VXO+1}
    v_add_u32 v{VXO+1}, 6144, v{VXO+1}
    s_and_b32 s4, s{sW}, 3
    s_lshl_b32 s3, s{sMB}, 7
    s_lshl_b32 s6, s4, 5
    s_add_u32 s3, s3, s6
    s_mul_i32 s5, s3, 896
    s_and_b32 s3, s{sJ}, 3
    s_lshl_b32 s3, s3, 1
    s_and_b32 s11, s{sMB}, 7
    s_add_u32 s11, s11, s3
    s_cmp_ge_u32 s11, 7
    s_cselect_b32 s3, 7, 0
    s_sub_u32 s11, s11, s3
    s_mul_i32 s11, s11, {OPT.get("ROT", 1)}
    s_lshl_b32 s3, s11, 7
    s_add_u32 s5, s5, s3
    s_mov_b32 s15, s11
    s_lshl_b32 s6, s4, 12
    s_add_u32 s6, s6, {XBASE}
    v_and_b32 v2, 31, v0
    v_lshrrev_b32 v3, 5, v0
    v_bfe_u32 v4, v0, 2, 2
    v_bfe_u32 v5, v0, 4, 1
    v_and_b32 v6, 3, v0
    v_lshlrev_b32 v7, 4, v0
    """)
    VQO = 16
    a(f"s_mul_i32 s3, s{sJ}, 56")
    a(f"s_and_b32 s3, s3, -16")
    for i in range(3):
        a(f"""
        v_add_u32 v1, {64*i}, v0
        v_mul_u32_u24 v14, 43691, v1
        v_lshrrev_b32 v14, 19, v14
        v_mul_u32_u24 v15, 12, v14
        v_sub_u32 v1, v1, v15
        v_mul_u32_u24 v14, 2688, v14
        v_lshrrev_b32 v15, 2, v1
        v_mul_u32_u24 v15, 896, v15
        v_add_u32 v14, v14, v15
        v_and_b32 v1, 3, v1
        v_lshl_add_u32 v14, v1, 4, v14
        v_add_u32 v14, s3, v14
        v_subrev_u32 v{VQO+i}, {1024*i}, v14
        """)
    a(f"""
    s_mul_i32 s7, s4, {16*2688}
    s_mul_i32 s3, s11, {64*2688}
    s_add_u32 s7, s7, s3
    s_mul_i32 s8, s4, 3072
    s_cmp_ge_u32 s{sW}, 4
    s_mov_b32 s{sW}, s4
    s_mov_b32 s14, s11
    s_movk_i32 s4, 128
    s_mov_b32 s9, {64*2688}
    s_waitcnt lgkmcnt(0)
    s_cbranch_scc1 k_F
    """)
    def xa_setup():
        a(f"v_bfe_u32 v14, v0, 1, 3")
        a(f"v_lshlrev_b32 v15, 7, v2")
        for kk in range(4):
            a(f"v_add_u32 v1, {2*kk}, v3")
            a(f"v_xor_b32 v1, v1, v14")
            a(f"v_lshl_add_u32 v{XA+kk}, v1, 4, v15")
    def zero_acc(base, n, z):
        for i in range(4): a(f"v_mov_b32 v{z+i}, 0")
        a("s_nop 1")
        for i in range(n):
            a(f"{MFMA} {vr(base+16*i,16)}, {vr(z,4)}, {vr(z,4)}, 0")
    ops = []
    def xdma(c):
        a(f"s_add_u32 m0, s6, {16384*c}")
        a(f"s_add_u32 s14, s14, 1")
        for i in range(4):
            a(f"buffer_load_dwordx4 v{VXO+i}, {sr(SX,4)}, s5 offen offset:{1024*i} lds"); ops.append(("x", c))
        a(f"""
        s_cmp_eq_u32 s14, 7
        s_cselect_b32 s3, -768, s4
        s_add_u32 s5, s5, s3
        """)
    def qdma(c):
        a(f"s_add_u32 m0, s8, {QSLOT*(c % 3)}")
        a(f"s_add_u32 s15, s15, 1")
        for i in range(3):
            a(f"buffer_load_dwordx4 v{VQO+i}, {sr(SWQ,4)}, s7 offen offset:{1024*i} lds"); ops.append(("q", c))
        a(f"""
        s_cmp_eq_u32 s15, 7
        s_cselect_b32 s3, {-6*64*2688}, s9
        s_add_u32 s7, s7, s3
        """)
    def landed(c):
        last = max(k for k, o in enumerate(ops) if o in (("x", c), ("q", c)))
        return len(ops) - 1 - last
    srd(a, SX, 16, S*D*2)
    xdma(0)
    srd(a, SWQ, 18, D*3*D*2)
    qdma(0)
    a("s_setprio 3")
    xdma(1); qdma(1)
    if not OPT.get("ES", 1):
        xdma(2); qdma(2); xdma(3)
    stamp(a, 1)
    srd(a, SWS, 34, WS_SIZE)
    srd(a, SDBG, 32, 256)
    WB = 12
    QB = [32, 48, 128, 144]
    AQ, AK, AV = 64, 80, 96
    VCS, VONE, VT = 24, 25, 26
    xa_setup()
    a(f"""
    s_lshl_b32 s3, s{sW}, 12
    s_add_u32 s3, s3, {XBASE}
    """)
    for kk in range(4):
        a(f"v_add_u32 v{XA+kk}, s3, v{XA+kk}")
    a(f"""
    v_lshl_add_u32 v14, v3, 3, v4
    v_mul_u32_u24 v14, 192, v14
    v_lshl_add_u32 v14, v5, 5, v14
    v_lshl_add_u32 v{WB}, v6, 3, v14
    s_and_b32 s3, s{sJ}, 1
    s_lshl_b32 s3, s3, 3
    v_add_u32 v{WB}, s3, v{WB}
    v_mov_b32 v31, 0x3f803f80
    v_cmp_eq_u32 vcc, 28, v2
    v_mov_b32 v{VCS}, {C_S}
    v_mov_b32 v{VONE}, 1
    v_cndmask_b32 v31, 0, v31, vcc
    """)
    zero_acc(AQ, 3, 128)
    if OPT.get("TB", 99) == 9:
        srd(a, SW2, 26, F*D*2)
        srd(a, SWO, 20, D*D*2)
        a(f"""
        v_lshlrev_b32 v28, 7, v0
        v_add_u32 v29, 8192, v28
        v_cmp_gt_u32 vcc, 34, v0
        v_bfrev_b32 v15, 1
        v_mov_b32 v30, v28
        v_cndmask_b32 v29, v15, v29, vcc
        v_cmp_gt_u32 vcc, 25, v0
        s_nop 1
        v_cndmask_b32 v30, v15, v30, vcc
        """)
    a("s_barrier")
    def qread_list(buf, c, kk):
        b = QB[buf]
        L = [f"ds_read_b128 {vr(b,4)}, v{XA+kk} offset:{(c%4)*16384}"]
        for t in range(3):
            for u in range(2):
                L.append(f"ds_read_b64_tr_b16 {vr(b+4+4*t+2*u,2)}, v{WB} offset:{QSLOT*(c%3)+(16*kk+4*u)*192+t*64}")
        return L
    def qstep(mbuf, R):
        b = QB[mbuf]
        M = [f"{MFMA} {vr(AQ,16)}, {vr(b+4,4)}, {vr(b,4)}, {vr(AQ,16)}",
             f"{MFMA} {vr(AK,16)}, {vr(b+8,4)}, {vr(b,4)}, {vr(AK,16)}",
             f"{MFMA} {vr(AV,16)}, {vr(b,4)}, {vr(b+12,4)}, {vr(AV,16)}"]
        n = len(R); cuts = [0, (n+2)//3, (2*n+2)//3, n]
        for i in range(3):
            a(M[i])
            for x in R[cuts[i]:cuts[i+1]]: a(x)
    def arrive(c):
        a(f"""
        s_waitcnt vmcnt({landed(c)}) lgkmcnt(0)
        s_mov_b64 exec, 1
        ds_add_u32 v{VCS}, v{VONE}
        s_mov_b64 exec, -1
        """)
    def spin(c):
        L = a.uniq("sp"); E = a.uniq("spe")
        a("s_mov_b32 s10, 0")
        a.lab(L)
        a(f"""
        ds_read_b32 v{VT}, v{VCS}
        s_add_u32 s10, s10, 1
        s_waitcnt lgkmcnt(0)
        v_readfirstlane_b32 s3, v{VT}
        s_cmp_gt_u32 s10, 0x200000
        s_cbranch_scc1 {E}
        s_cmp_ge_u32 s3, {4*(c+1)}
        s_cbranch_scc0 {L}
        """)
        a.lab(E)
    arrive(0)
    if OPT.get("ES", 1):
        xdma(2); qdma(2)
    spin(0)
    stamp(a, 2)
    for x in qread_list(0, 0, 0) + qread_list(1, 0, 1): a(x)
    if OPT.get("ES", 1):
        xdma(3)
    for c in range(7):
        a("s_waitcnt lgkmcnt(7)"); qstep(0, qread_list(2, c, 2))
        a("s_waitcnt lgkmcnt(7)"); qstep(1, qread_list(3, c, 3))
        if c < 6:
            arrive(c+1)
            qstep(2, [])
            spin(c+1)
            stamp(a, 3+c, pv=1)
            if c + 1 == 4:
                for k2 in range(4):
                    a(f"v_add_u32 v{XA+k2}, 0x10000, v{XA+k2}")
            qstep(3, qread_list(0, c+1, 0) + qread_list(1, c+1, 1))
            if c + 3 <= 6: qdma(c+3)
            if c + 4 <= 6: xdma(c+4)
            if c == 3:
                nonce_issue(a, 16); ops.append(("n", 0))
        else:
            a("s_waitcnt lgkmcnt(0)")
            lds_add(a, C_Q, 14, 15)
            qstep(2, []); qstep(3, [])
    stamp(a, 3)
    QP, KP, VP = 32, 40, 48
    SD = 112
    sHead, sQb, sKo, sVo, sPass, sPub = sJ, sMB, 6, 8, 9, 10
    a(f"""
    s_lshl_b32 s3, s{sJ}, 6
    s_lshl_b32 s4, s{sMB}, 2
    s_add_u32 s3, s3, s4
    s_add_u32 s3, s3, s{sW}
    s_lshl_b32 s6, s3, 12
    s_add_u32 s6, s6, {WS_KV}
    s_lshl_b32 s7, s3, 3
    s_add_u32 s7, s7, {FL_KV}
    s_mov_b32 s8, {f2u(QSCALE):#x}
    s_mov_b32 s9, {f2u(QSCALE):#x}
    s_mov_b32 s10, 0x07060302
    """)
    for p in range(8):
        a(f"v_cvt_pk_bf16_f32 v{KP+p}, v{AK+2*p}, v{AK+2*p+1}")
    a(f"""
    s_mov_b32 exec_lo, 0
    v_mov_b32 v{KP+6}, 0x3f803f80
    v_mov_b32 v{KP+7}, 0x3f80
    s_mov_b64 exec, -1
    buffer_store_dwordx4 {vr(KP,4)}, v7, {sr(SWS,4)}, s6 offen sc1
    buffer_store_dwordx4 {vr(KP+4,4)}, v7, {sr(SWS,4)}, s6 offen offset:1024 sc1
    """)
    for p in range(8):
        a(f"v_cvt_pk_bf16_f32 v{VP+p}, v{AV+2*p}, v{AV+2*p+1}")
    a(f"""
    s_mov_b32 exec_lo, 0xf0000000
    s_mov_b32 exec_hi, 0xf0000000
    """)
    for p in range(8):
        a(f"v_mov_b32 v{VP+p}, v31")
    a(f"""
    s_mov_b64 exec, -1
    buffer_store_dwordx4 {vr(VP,4)}, v7, {sr(SWS,4)}, s6 offen offset:2048 sc1
    buffer_store_dwordx4 {vr(VP+4,4)}, v7, {sr(SWS,4)}, s6 offen offset:3072 sc1
    """)
    stamp(a, 4)
    stamp(a, 1, pv=5)
    for p in range(16):
        a(f"v_mul_f32 v{AQ+p}, s8, v{AQ+p}")
    for p in range(8):
        a(f"v_cvt_pk_bf16_f32 v{QP+p}, v{AQ+2*p}, v{AQ+2*p+1}")
    a(f"""
    s_mov_b32 exec_lo, 0
    v_mov_b32 v{QP+6}, 0
    v_mov_b32 v{QP+7}, 0
    s_mov_b64 exec, -1
    s_lshl_b32 s3, s{sW}, 11
    s_add_u32 s3, s3, {QXB}
    v_add_u32 v13, s3, v7
    {MFMA} {vr(SD,16)}, {vr(KP,4)}, {vr(QP,4)}, 0
    {MFMA} {vr(SD,16)}, {vr(KP+4,4)}, {vr(QP+4,4)}, {vr(SD,16)}
    s_nop 12
    v_max3_f32 v14, v{SD}, v{SD+1}, v{SD+2}
    v_max3_f32 v15, v{SD+3}, v{SD+4}, v{SD+5}
    v_max3_f32 v14, v14, v{SD+6}, v{SD+7}
    v_max3_f32 v15, v15, v{SD+8}, v{SD+9}
    v_max3_f32 v14, v14, v{SD+10}, v{SD+11}
    v_max3_f32 v15, v15, v{SD+12}, v{SD+13}
    v_max3_f32 v14, v14, v{SD+14}, v{SD+15}
    v_max_f32 v14, v14, v15
    v_mov_b32 v15, v14
    s_nop 1
    v_permlane32_swap_b32 v14, v15
    v_max_f32 v14, v14, v15
    v_sub_f32 v14, 0, v14
    v_and_b32 v15, 0xffff0000, v14
    v_sub_f32 v15, v14, v15
    v_and_b32 v12, 0xffff0000, v15
    v_sub_f32 v12, v15, v12
    s_mov_b32 exec_lo, 0
    v_perm_b32 v{QP+6}, v15, v14, s10
    v_lshrrev_b32 v{QP+7}, 16, v12
    s_mov_b64 exec, -1
    """)
    stamp(a, 2, pv=5)
    nonce_get(a, 16)
    stamp(a, 3, pv=5)
    publish(a, 7, 16)
    stamp(a, 5)
    a(f"""
    ds_write_b128 v13, {vr(QP,4)}
    ds_write_b128 v13, {vr(QP+4,4)} offset:1024
    """)
    lds_add(a, C_QX, 14, 15)
    stamp(a, 4, pv=5)
    Q = 8
    O = 40
    SB = [104, 120]
    PB = [136, 144]
    KVB = [152 + 16*i for i in range(NB)]
    VG = 3
    assert 152 + 16*NB <= 248
    a(f"""
    s_lshl_b32 s3, s{sHead}, 6
    s_lshl_b32 s11, s{sW}, 4
    s_add_u32 s3, s3, s11
    s_lshl_b32 s3, s3, 12
    s_add_u32 s3, s3, {WS_KV}
    s_add_u32 s{SKV}, s34, s3
    s_addc_u32 s{SKV+1}, s35, 0
    s_mov_b32 s{SKV+2}, 65536
    s_mov_b32 s{SKV+3}, 0x00020000
    s_mov_b32 s{sPass}, 0
    s_mov_b32 s{sPub}, 0
    """)
    a(f"""
    s_lshl_b32 s11, s{sHead}, 9
    s_lshl_b32 s3, s{sQb}, 9
    s_sub_u32 s3, s3, s11
    s_add_u32 s3, s3, {8192 + 56*8 - 32*16}
    v_lshlrev_b32 v248, 4, v0
    v_add_u32 v249, s3, v248
    v_cmp_gt_u32 vcc, 32, v0
    s_add_u32 s7, s11, {FL_KV}
    s_nop 0
    v_cndmask_b32 v248, v249, v248, vcc
    """)
    zero_acc(O, 4, PB[1])
    if OPT.get("TB", 99) == 9:
        a(f"""
        s_lshl_b32 s3, s{sIdx}, 2
        s_add_u32 s3, s3, s{sW}
        s_mul_i32 s5, s3, {25*128}
        s_mul_i32 s4, s3, {98*128}
        buffer_load_dword v254, v28, {sr(SW2,4)}, s4 offen
        buffer_load_dword v254, v29, {sr(SW2,4)}, s4 offen
        buffer_load_dword v254, v30, {sr(SWO,4)}, s5 offen
        """)
    lds_wait(a, C_QX, 4, 250, 251)
    for i in range(4):
        a(f"""
        s_add_u32 s3, s{sW}, {1+i}
        s_and_b32 s3, s3, 3
        s_lshl_b32 s3, s3, 11
        v_add_u32 v1, s3, v7
        ds_read_b128 {vr(Q+8*i,4)}, v1 offset:{QXB}
        ds_read_b128 {vr(Q+8*i+4,4)}, v1 offset:{QXB+1024}
        """)
    stamp(a, 5, pv=5)
    a(f"""
    s_cmp_lg_u32 s{sW}, 0
    s_cbranch_scc1 k_a_w
    """)
    poll4(a, 34, 248, 7, 252)
    lds_add(a, C_KV, 250, 251)
    a("s_branch k_a_go")
    a.lab("k_a_w")
    lds_wait(a, C_KV, 1, 250, 251, sleep=1)
    a.lab("k_a_go")
    stamp(a, 6, pv=5)
    stamp(a, 6)
    def ldK(b):
        a(f"buffer_load_dwordx4 {vr(KVB[b],4)}, v7, {sr(SKV,4)}, s{sKo} offen sc1")
        a(f"buffer_load_dwordx4 {vr(KVB[b]+4,4)}, v7, {sr(SKV,4)}, s{sKo} offen offset:1024 sc1")
        a(f"s_add_u32 s{sKo}, s{sKo}, 4096")
    def ldV(b):
        a(f"buffer_load_dwordx4 {vr(KVB[b]+8,4)}, v7, {sr(SKV,4)}, s{sVo} offen offset:2048 sc1")
        a(f"buffer_load_dwordx4 {vr(KVB[b]+12,4)}, v7, {sr(SKV,4)}, s{sVo} offen offset:3072 sc1")
        a(f"s_add_u32 s{sVo}, s{sVo}, 4096")
    a(f"""
    s_lshl_b32 s3, s{sQb}, 9
    s_lshl_b32 s11, s{sW}, 7
    s_add_u32 s3, s3, s11
    s_add_u32 s3, s3, {WS_G}
    v_lshlrev_b32 v4, 2, v2
    buffer_load_dword v{VG}, v4, {sr(SWS,4)}, s3 offen sc1
    s_branch k_att_first
    """)
    a.lab("k_att_start")
    zero_acc(O, 4, PB[1])
    a.lab("k_att_first")
    a(f"s_mov_b32 s{sKo}, 0")
    a(f"s_mov_b32 s{sVo}, 0")
    aops = []
    def issue(kind, t):
        (ldK if kind == "K" else ldV)(t % NB); aops.extend([(kind, t)]*2)
    def need(kind, t):
        last = max(k for k, o in enumerate(aops) if o == (kind, t))
        return len(aops) - 1 - last
    UNR = OPT.get("UNR", 0)
    order = []
    for t in range(16 + (0 if UNR else NB)): order += [("K", t), ("V", t)]
    npro = 3 if UNR else 2*NB-1
    if not UNR:
        for i in range(8): a(f"v_mov_b32 v{KVB[NB-1]+8+i}, 0")
        for i in range(8): a(f"v_mov_b32 v{PB[1]+i}, 0")
    for _ in range(npro): issue(*order.pop(0))
    if OPT["TOUCH"]:
        a(f"""
        s_and_b32 s3, s{sQb}, 7
        s_lshl_b32 s3, s3, 7
        v_lshlrev_b32 v4, 10, v0
        buffer_load_dword v6, v4, {sr(SKV,4)}, s3 offen sc1
        """)
        aops.append(("T", 0))
    a(f"""
    s_lshl_b32 s3, s{sW}, 2
    s_add_u32 s3, s3, {C_A3}
    v_mov_b32 v248, s3
    v_mov_b32 v249, 1
    s_mov_b32 s{sC}, 0
    """)
    def oc_base(dst, sreg):
        a(f"""
        s_mul_i32 s{dst}, s{sreg}, 12288
        s_cmp_eq_u32 s{sreg}, 3
        s_cselect_b32 s{dst}, {OC3}, s{dst}
        """)
    for i in range(3):
        a(f"""
        s_add_u32 s3, s{sW}, {1+i}
        s_and_b32 s3, s3, 3
        """)
        oc_base(11, 3)
        a(f"v_add_u32 v{250+i}, s11, v7")
    a("ds_write_b32 v248, v249")
    a("v_mov_b32 v249, 2")
    a(f"s_waitcnt vmcnt({need('K', 0)}) lgkmcnt(0)")
    stamp(a, 7)
    stamp(a, 1, pv=6); stamp(a, 2, True, pv=6)
    if OPT.get("HPROF"): stamp(a, 1, True)
    a(f"{MFMA} {vr(SB[0],16)}, {vr(KVB[0],4)}, {vr(Q,4)}, 0")
    a(f"{MFMA} {vr(SB[0],16)}, {vr(KVB[0]+4,4)}, {vr(Q+4,4)}, {vr(SB[0],16)}")
    a(f"s_setprio {OPT['PRIO_A']}")
    a("s_nop 13")
    def free_at(kind, t):
        if t < NB: return -1
        return 4*(t-NB)+2 if kind == "K" else 4*(t-NB)+4
    ocw = []
    NU = 64 if UNR else 4*NB
    if not UNR: a.lab("k_aloop")
    for u in range(NU):
        t, qi = u // 4, u % 4
        un = u + 1; tn, qn = un // 4, un % 4
        up = u - 1; tp, qp = up // 4, up % 4
        sc, sn = SB[u % 2], SB[(u+1) % 2]
        pc, pp = PB[u % 2], PB[(u-1) % 2]
        def ex(r): a(f"v_exp_f32 v{sc+r}, v{sc+r}")
        def cv(p): a(f"v_cvt_pk_bf16_f32 v{pc+p}, v{sc+2*p}, v{sc+2*p+1}")
        def w_():
            if ocw: a(ocw.pop(0))
        def wt(kind, tt):
            a(f"s_waitcnt vmcnt({need(kind, tt) if UNR else 4*(NB-1)})")
        if un < 64:
            if qi == 3: wt('K', tn)
            a(f"{MFMA} {vr(sn,16)}, {vr(KVB[tn%NB],4)}, {vr(Q+8*qn,4)}, 0")
        ex(0); ex(1); w_(); ex(2); ex(3)
        if un < 64:
            a(f"{MFMA} {vr(sn,16)}, {vr(KVB[tn%NB]+4,4)}, {vr(Q+8*qn+4,4)}, {vr(sn,16)}")
        if not UNR and qi == 2: issue(*order.pop(0))
        ex(4); ex(5); w_(); ex(6); ex(7)
        cv(0); cv(1)
        if up >= 0 or not UNR:
            if qi == 1: wt('V', t)
            a(f"{MFMA} {vr(O+16*qp,16)}, {vr(KVB[tp%NB]+8,4)}, {vr(pp,4)}, {vr(O+16*qp,16)}")
        ex(8); ex(9); w_(); ex(10); ex(11)
        cv(2); cv(3)
        if up >= 0 or not UNR:
            a(f"{MFMA} {vr(O+16*qp,16)}, {vr(KVB[tp%NB]+12,4)}, {vr(pp+4,4)}, {vr(O+16*qp,16)}")
        if UNR:
            if order and free_at(*order[0]) <= u: issue(*order.pop(0))
        elif qi == 0: issue(*order.pop(0))
        ex(12); ex(13); w_(); ex(14); ex(15)
        cv(4); cv(5); cv(6); cv(7)
        if UNR:
            if u == OPT.get("AS1", 13):
                a("ds_write_b32 v248, v249")
                a("v_mov_b32 v249, 3")
            if u == OPT.get("ASU", 47):
                a("ds_write_b32 v248, v249")
            if u in (15, 31, 47):
                stamp(a, 3+2*(u//16), pv=6); stamp(a, 4+2*(u//16), True, pv=6)
            if u == 56:
                lds_wait(a, C_F1, 4, 4, 5)
            if u in (61, 62):
                i = u - 61
                ocw += [f"ds_write_b128 v{250+i}, {vr(O+16*i+4*r4,4)} offset:{4096*i+1024*r4}" for r4 in (0, 1, 2, 3)]
                ocw.insert(len(ocw)-4, "s_nop 0")
    if not UNR:
        a(f"""
        s_add_u32 s{sC}, s{sC}, 1
        ds_write_b32 v248, v249
        v_add_u32 v249, 1, v249
        s_cmp_lt_u32 s{sC}, {16//NB}
        s_cbranch_scc1 k_aloop
        """)
        for i in range(2):
            ocw += [f"ds_write_b128 v{250+i}, {vr(O+16*i+4*r4,4)} offset:{4096*i+1024*r4}" for r4 in (0, 1, 2, 3)]
    stamp(a, 8)
    stamp(a, 9, pv=6); stamp(a, 10, True, pv=6)
    if OPT.get("HPROF"): stamp(a, 10, True)
    stamp(a, 1, pv=7)
    a("s_setprio 3")
    a(f"{MFMA} {vr(O+48,16)}, {vr(KVB[15%NB]+8,4)}, {vr(PB[1],4)}, {vr(O+48,16)}")
    a(f"{MFMA} {vr(O+48,16)}, {vr(KVB[15%NB]+12,4)}, {vr(PB[1]+4,4)}, {vr(O+48,16)}")
    if not UNR: lds_wait(a, C_F1, 4, 4, 5)
    stamp(a, 2, pv=7)
    for x in ocw: a(x)
    for r4 in range(4):
        a(f"ds_write_b128 v252, {vr(O+32+4*r4,4)} offset:{8192+1024*r4}")
    lds_add(a, C_OC, 5, 6)
    stamp(a, 3, pv=7)
    oc_base(11, sW)
    a(f"""
    v_add_u32 v1, s11, v7
    s_lshl_b32 s7, s{sPass}, 2
    s_add_u32 s7, s7, 4
    """)
    lds_wait(a, C_OC, "s7", 4, 5)
    stamp(a, 4, pv=7)
    R = 104
    for i in range(12):
        a(f"ds_read_b128 {vr(R+4*i,4)}, v1 offset:{1024*i}")
    OK_ = O + 48
    for i in range(3):
        a(f"s_waitcnt lgkmcnt({8-4*i})")
        for p in range(16):
            a(f"v_add_f32 v{OK_+p}, v{OK_+p}, v{R+16*i+p}")
    OP = R
    stamp(a, 5, pv=7)
    a(f"""
    v_mov_b32 v4, v{OK_+12}
    v_mov_b32 v5, v{OK_+12}
    s_lshl_b32 s3, s{sQb}, 2
    s_add_u32 s3, s3, s{sW}
    v_permlane32_swap_b32 v4, v5
    s_lshl_b32 s3, s3, 4
    s_add_u32 s3, s3, s{sHead}
    v_rcp_f32 v4, v5
    s_lshl_b32 s7, s3, 11
    s_add_u32 s7, s7, {WS_OF}
    v_mul_f32 v4, v4, v{VG}
    s_lshl_b32 s11, s3, 3
    s_add_u32 s11, s11, {FL_O}
    """)
    for p in range(16):
        a(f"v_mul_f32 v{OK_+p}, v4, v{OK_+p}")
    for p in range(8):
        a(f"v_cvt_pk_bf16_f32 v{OP+p}, v{OK_+2*p}, v{OK_+2*p+1}")
    a(f"""
    s_cmp_lg_u32 s{sPub}, 0
    s_cbranch_scc1 k_a_done
    s_mov_b32 exec_lo, 0
    v_mov_b32 v{OP+6}, 0
    v_mov_b32 v{OP+7}, 0
    s_mov_b64 exec, -1
    buffer_store_dwordx4 {vr(OP,4)}, v7, {sr(SWS,4)}, s7 offen sc1
    buffer_store_dwordx4 {vr(OP+4,4)}, v7, {sr(SWS,4)}, s7 offen offset:1024 sc1
    """)
    stamp(a, 6, pv=7)
    for p in range(2, 16):
        a(f"v_add_f32 v{OK_+(p&1)}, v{OK_+(p&1)}, v{OK_+p}")
    a(f"""
    v_add_f32 v{OK_}, v{OK_}, v{OK_+1}
    v_mul_f32 v{OK_}, 0, v{OK_}
    v_add_f32 v5, v5, v{OK_}
    v_mov_b32 v6, {f2u(2.0**40):#x}
    v_cmp_nlt_f32 vcc, v5, v6
    s_cmp_lg_u32 s{sPass}, 0
    s_cbranch_scc1 k_a_pub
    s_cbranch_vccz k_a_pub
    v_mov_b32 v4, {C_BAD}
    v_mov_b32 v6, 1
    ds_write_b32 v4, v6
    s_branch k_a_sync
    """)
    a.lab("k_a_pub")
    stamp(a, 7, pv=7)
    a("s_waitcnt vmcnt(0)")
    stamp(a, 8, pv=7)
    publish(a, 11, 4)
    a(f"s_mov_b32 s{sPub}, 1")
    stamp(a, 9)
    a.lab("k_a_sync")
    a(f"""
    s_cmp_lg_u32 s{sPass}, 0
    s_cbranch_scc1 k_a_done
    """)
    lds_add(a, C_A2, 4, 5)
    lds_wait(a, C_A2, 4, 4, 5)
    a(f"""
    v_mov_b32 v4, {C_BAD}
    ds_read_b32 v6, v4
    s_waitcnt lgkmcnt(0)
    v_readfirstlane_b32 s3, v6
    s_cmp_lg_u32 s3, 0
    s_cbranch_scc1 k_fallback
    """)
    a.lab("k_a_done")
    flush(a, 0)
    a("s_endpgm")
    a.lab("k_fallback")
    MX = O
    a(f"""
    s_mov_b32 s{sPass}, 1
    s_waitcnt vmcnt(0)
    s_mov_b32 exec_lo, 0
    """)
    for i in range(4):
        a(f"v_mov_b32 v{Q+8*i+6}, 0")
        a(f"v_mov_b32 v{Q+8*i+7}, 0")
    a("s_mov_b64 exec, -1")
    for i in range(4):
        a(f"v_mov_b32 v{MX+i}, 0xff800000")
    a(f"s_mov_b32 s{sKo}, 0")
    a.lab("k_fbloop")
    ldK(0)
    a("s_waitcnt vmcnt(0)")
    for i in range(4):
        sb = SB[0]
        a(f"{MFMA} {vr(sb,16)}, {vr(KVB[0],4)}, {vr(Q+8*i,4)}, 0")
        a(f"{MFMA} {vr(sb,16)}, {vr(KVB[0]+4,4)}, {vr(Q+8*i+4,4)}, {vr(sb,16)}")
        a("s_nop 15")
        for r in range(0, 16, 2):
            a(f"v_max3_f32 v{MX+i}, v{MX+i}, v{sb+r}, v{sb+r+1}")
    a(f"""
    s_cmp_lt_u32 s{sKo}, 65536
    s_cbranch_scc1 k_fbloop
    """)
    for i in range(4):
        a(f"""
        s_add_u32 s3, s{sW}, {1+i}
        s_and_b32 s3, s3, 3
        s_lshl_b32 s3, s3, 10
        s_lshl_b32 s11, s{sW}, 8
        s_add_u32 s3, s3, s11
        v_lshl_add_u32 v4, v0, 2, s3
        ds_write_b32 v4, v{MX+i}
        """)
    lds_add(a, C_FB1, 4, 5)
    lds_wait(a, C_FB1, 4, 4, 5)
    for i in range(4):
        a(f"""
        s_add_u32 s3, s{sW}, {1+i}
        s_and_b32 s3, s3, 3
        s_lshl_b32 s3, s3, 10
        v_lshl_add_u32 v4, v2, 2, s3
        """)
        for k in range(8):
            a(f"ds_read_b32 v{MX+8+k}, v4 offset:{128*k}")
        a("s_waitcnt lgkmcnt(0)")
        a(f"""
        v_max3_f32 v5, v{MX+8}, v{MX+9}, v{MX+10}
        v_max3_f32 v5, v5, v{MX+11}, v{MX+12}
        v_max3_f32 v5, v5, v{MX+13}, v{MX+14}
        v_max_f32 v5, v5, v{MX+15}
        v_sub_f32 v5, 0, v5
        v_and_b32 v6, 0xffff0000, v5
        v_sub_f32 v6, v5, v6
        v_and_b32 v4, 0xffff0000, v6
        v_sub_f32 v4, v6, v4
        s_mov_b32 s3, 0x07060302
        s_mov_b32 exec_lo, 0
        v_perm_b32 v{Q+8*i+6}, v6, v5, s3
        v_lshrrev_b32 v{Q+8*i+7}, 16, v4
        s_mov_b64 exec, -1
        """)
    lds_add(a, C_FB2, 4, 5)
    lds_wait(a, C_FB2, 4, 4, 5)
    a("s_branch k_att_start")

    a.lab("k_F")
    GF = 112; AG = 48; XG = 64
    AF = 48
    W1R = 112
    XF = [16, 32, 224]
    WFr = [240, 244]
    TR0 = 12; TW0 = 13
    a(f"s_setprio {OPT['PRIO_F']}")
    srd(a, SDBG, 32, 256)
    a(f"""
    v_lshlrev_b32 v1, 2, v0
    v_add_u32 v1, {LCNT}, v1
    v_mov_b32 v15, 0
    ds_write_b32 v1, v15
    s_or_b32 s3, s2, s{sW}
    s_cmp_lg_u32 s3, 0
    s_cbranch_scc1 k_F_nonce_done
    s_memrealtime s[4:5]
    s_waitcnt lgkmcnt(0)
    s_or_b32 s4, s4, 1
    v_mov_b32 v18, s4
    v_mov_b32 v19, s5
    s_mov_b64 exec, 1
    buffer_store_dwordx2 v[18:19], v15, {sr(SDBG,4)}, 0 offen sc1
    s_mov_b64 exec, -1
    k_F_nonce_done:
    """)
    srd(a, SWS, 34, WS_SIZE)
    srd(a, SW1, 24, D*F*2)
    if OPT.get("CPF", 0):
        a(f"""
        s_getpc_b64 s[4:5]
        k_pc0:
        s_sub_u32 s60, s4, k_pc0-{NAME}
        s_subb_u32 s61, s5, 0
        s_mov_b32 s62, k_code_end-{NAME}
        s_mov_b32 s63, 0x00020000
        s_and_b32 s3, s{sIdx}, 1
        s_lshl_b32 s3, s3, 2
        s_add_u32 s3, s3, s{sW}
        s_lshl_b32 s3, s3, 13
        v_lshlrev_b32 v14, 7, v0
        buffer_load_dword v250, v14, s[60:63], s3 offen
        """)
    xa_setup()
    a(f"""
    s_cmp_ge_u32 s{sJ}, 14
    s_cbranch_scc1 k_gate
    v_lshrrev_b32 v14, 2, v0
    v_mul_u32_u24 v14, 3584, v14
    v_lshl_add_u32 v14, v6, 4, v14
    s_lshl_b32 s9, s{sJ}, 2
    s_add_u32 s9, s9, s{sW}
    s_lshl_b32 s10, s9, 6
    s_mul_i32 s3, s11, {64*3584}
    s_add_u32 s10, s10, s3
    s_sub_u32 s10, s10, {16*3584}
    """)
    if OPT.get("W1T", 1):
        a(f"""
        s_and_b32 s4, s{sMB}, 7
        s_mul_i32 s4, s4, 56
        s_mul_i32 s5, s{sW}, 14
        s_add_u32 s4, s4, s5
        s_mul_i32 s4, s4, 3584
        s_lshl_b32 s5, s{sJ}, 8
        s_add_u32 s4, s4, s5
        v_lshrrev_b32 v13, 1, v0
        v_mul_u32_u24 v13, 3584, v13
        v_and_b32 v15, 1, v0
        v_lshl_add_u32 v13, v15, 7, v13
        v_cmp_gt_u32 vcc, 28, v0
        v_bfrev_b32 v15, 1
        s_nop 0
        v_cndmask_b32 v13, v15, v13, vcc
        buffer_load_dword v251, v13, {sr(SW1,4)}, s4 offen
        """)
    def w1load(i):
        a(f"s_add_u32 s10, s10, {16*3584}")
        a(f"buffer_load_dwordx4 {vr(W1R+4*i,4)}, v14, {sr(SW1,4)}, s10 offen")
        if i % 4 == 3:
            a(f"""
            s_add_u32 s11, s11, 1
            s_cmp_eq_u32 s11, 7
            s_cselect_b32 s3, {448*3584}, 0
            s_sub_u32 s10, s10, s3
            """)
    for kk in range(4):
        a(f"v_add_u32 v{XA+kk}, {XBASE}, v{XA+kk}")
    a(f"""
    v_lshl_add_u32 v15, v3, 3, v4
    v_lshlrev_b32 v15, 6, v15
    v_lshl_add_u32 v15, v5, 5, v15
    v_lshl_add_u32 v15, v6, 3, v15
    s_lshl_b32 s4, s{sW}, 11
    s_add_u32 s4, s4, {W1E}
    v_add_u32 v{TR0}, s4, v15
    v_add_u32 v{TW0}, s4, v7
    """)
    zero_acc(AF, 4, 16)
    W1A = OPT.get("W1A", 28)
    LAG = OPT.get("LAG", 6)
    W1S = OPT.get("W1S", 1)
    if W1S == 0:
        for i in range(W1A): w1load(i)
    a("s_waitcnt lgkmcnt(0)")
    a("s_barrier")
    if W1S:
        lds_wait(a, C_S, 4*W1S, 1, 15, sleep=1)
        for i in range(W1A): w1load(i)
    stamp(a, 1)
    w1n = [W1A]
    def f_stage_l(i):
        return [f"s_waitcnt vmcnt({w1n[0]-1-i})", f"ds_write_b128 v{TW0}, {vr(W1R+4*i,4)} offset:{1024*(i%2)}"]
    def f_xreads_l(i):
        b = XF[i % 3]
        c, kk = i // 4, i % 4
        return [f"ds_read_b128 {vr(b+4*mt,4)}, v{XA+kk} offset:{(c%4)*16384+4096*mt}" for mt in range(4)]
    def f_wreads_l(i):
        w = WFr[i % 2]
        return [f"ds_read_b64_tr_b16 {vr(w+2*u,2)}, v{TR0} offset:{1024*(i%2)+256*u}" for u in range(2)]
    def f_mfma_l(i):
        b = XF[i % 3]; w = WFr[i % 2]
        return [f"{MFMA} {vr(AF+16*mt,16)}, {vr(w,4)}, {vr(b+4*mt,4)}, {vr(AF+16*mt,16)}" for mt in range(4)]
    for x in f_stage_l(0) + f_wreads_l(0) + f_stage_l(1): a(x)
    lds_wait(a, C_S, 4*min(7, 1+LAG), 1, 15, sleep=1)
    stamp(a, 2)
    for x in f_xreads_l(0) + f_xreads_l(1): a(x)
    for t in range(28):
        n = (4 if t == 0 else 5) if t + 1 < 28 else 0
        a(f"s_waitcnt lgkmcnt({n})")
        M = f_mfma_l(t)
        Wr = f_wreads_l(t+1) if t + 1 < 28 else []
        R = f_xreads_l(t+2) if t + 2 < 28 else []
        a(M[0])
        for x in Wr: a(x)
        W1G = OPT.get("W1G", 8)
        if t == W1G and w1n[0] < 28 and W1G > 0:
            lds_wait(a, C_QX, 4, 1, 15)
        if w1n[0] < 28 and t >= W1G:
            w1load(w1n[0]); w1n[0] += 1
            if W1G > 0 and w1n[0] < 28:
                w1load(w1n[0]); w1n[0] += 1
        a(M[1])
        if (t + 2) % 4 == 0 and t + 2 < 28 and (t+2)//4+LAG < 7:
            lds_wait(a, C_S, 4*min(7, (t+2)//4+1+LAG), 1, 15, sleep=1)
            stamp(a, 2+(t+2)//4, pv=2)
        if t + 2 == 16:
            for k2 in range(4):
                a(f"v_add_u32 v{XA+k2}, 0x10000, v{XA+k2}")
        for x in R[0:2]: a(x)
        a(M[2])
        for x in R[2:4]: a(x)
        a(M[3])
        if t + 2 < 28:
            for x in f_stage_l(t+2): a(x)
    stamp(a, 3)
    stamp(a, 6, pv=2)
    stamp(a, 5, pv=3); stamp(a, 6, True, pv=3)
    lds_wait(a, C_Q, 4, 12, 13, sleep=1)
    lds_add(a, C_F1, 12, 13)
    nonce_issue(a, 232)
    a(f"""
    s_mov_b32 s4, {f2u(-LOG2E):#x}
    s_mov_b32 s5, {f2u(-LOG2E):#x}
    s_mov_b32 s6, 1.0
    s_mov_b32 s7, 1.0
    s_lshl_b32 s3, s{sMB}, 2
    s_mul_i32 s3, s3, 56
    s_add_u32 s3, s3, s9
    s_lshl_b32 s3, s3, 11
    s_add_u32 s8, s3, {WS_HF}
    s_lshl_b32 s3, s{sMB}, 9
    s_lshl_b32 s10, s9, 3
    s_add_u32 s10, s10, s3
    s_add_u32 s10, s10, {FL_H}
    """)
    T = 16
    for mt in range(4):
        acc = AF + 16*mt
        HP = 112 + 8*mt
        for g in range(2):
            prs = [4*g+i for i in range(4)]
            if OPT.get("PK", 0):
                for i, p in enumerate(prs):
                    a(f"v_pk_mul_f32 {vr(T+2*i,2)}, {vr(acc+2*p,2)}, s[4:5]")
                for i in range(8):
                    a(f"v_exp_f32 v{T+i}, v{T+i}")
                for i in range(4):
                    a(f"v_pk_add_f32 {vr(T+2*i,2)}, {vr(T+2*i,2)}, s[6:7]")
                for i in range(8):
                    a(f"v_rcp_f32 v{T+i}, v{T+i}")
                for i, p in enumerate(prs):
                    a(f"v_pk_mul_f32 {vr(T+2*i,2)}, {vr(acc+2*p,2)}, {vr(T+2*i,2)}")
            else:
                for i in range(8):
                    a(f"v_mul_f32 v{T+i}, s4, v{acc+8*g+i}")
                for i in range(8):
                    a(f"v_exp_f32 v{T+i}, v{T+i}")
                for i in range(8):
                    a(f"v_add_f32 v{T+i}, 1.0, v{T+i}")
                for i in range(8):
                    a(f"v_rcp_f32 v{T+i}, v{T+i}")
                for i in range(8):
                    a(f"v_mul_f32 v{T+i}, v{acc+8*g+i}, v{T+i}")
            for i, p in enumerate(prs):
                a(f"v_cvt_pk_bf16_f32 v{HP+p}, v{T+2*i}, v{T+2*i+1}")
            if not OPT.get("HD", 1):
                a(f"buffer_store_dwordx4 {vr(HP+4*g,4)}, v7, {sr(SWS,4)}, s8 offen offset:{g*1024} sc1")
        if not OPT.get("HD", 1):
            a(f"s_add_u32 s8, s8, {56*2048}")
    if OPT.get("HD", 1):
        stamp(a, 4)
        a(f"""
        s_lshl_b32 s3, s{sW}, 2
        s_add_u32 s3, s3, {C_A3}
        """)
        lds_wait(a, "s3", OPT.get("HG", 1), 16, 17, sleep=OPT.get("FSL", 4))
        for mt in range(4):
            for g in range(2):
                a(f"buffer_store_dwordx4 {vr(112+8*mt+4*g,4)}, v7, {sr(SWS,4)}, s8 offen offset:{g*1024} sc1")
            a(f"s_add_u32 s8, s8, {56*2048}")
            a("s_waitcnt vmcnt(0)")
    if not OPT.get("HD", 1): stamp(a, 4)
    stamp(a, 7, pv=2)
    stamp(a, 7, pv=3); stamp(a, 8, True, pv=3)
    nonce_get(a, 232)
    publish(a, 10, 16)
    a("s_branch k_ffn2")
    a.lab("k_gate")
    a(f"""
    s_cmp_eq_u32 s{sJ}, 15
    s_cbranch_scc1 k_f15
    v_lshlrev_b32 v14, 4, v3
    """)
    srd(a, SG, 28, D*2)
    for c in range(7):
        a("s_lshl_b32 s10, s11, 7")
        for kk in range(4):
            a(f"buffer_load_dwordx4 {vr(GF+4*(4*c+kk),4)}, v14, {sr(SG,4)}, s10 offen offset:{kk*32}")
        a("""
        s_add_u32 s11, s11, 1
        s_cmp_eq_u32 s11, 7
        s_cselect_b32 s11, 0, s11
        """)
    a(f"""
    s_lshl_b32 s3, s{sW}, 12
    s_add_u32 s3, s3, {XBASE}
    """)
    for kk in range(4):
        a(f"v_add_u32 v{XA+kk}, s3, v{XA+kk}")
    zero_acc(AG, 1, 16)
    a("s_waitcnt lgkmcnt(0)")
    a("s_barrier")
    a("s_waitcnt vmcnt(0)")
    nonce_issue(a, 232)
    for c in range(7):
        lds_wait(a, C_S, 4*(c+1), 1, 15, sleep=1)
        for kk in range(4):
            a(f"ds_read_b128 {vr(XG+4*kk,4)}, v{XA+kk}")
            a(f"v_add_u32 v{XA+kk}, 0x4000, v{XA+kk}")
        for kk in range(4):
            a(f"s_waitcnt lgkmcnt({3-kk})")
            a(f"{MFMA} {vr(AG,16)}, {vr(GF+4*(4*c+kk),4)}, {vr(XG+4*kk,4)}, {vr(AG,16)}")
    a(f"""
    s_lshl_b32 s3, s{sMB}, 9
    s_lshl_b32 s4, s{sW}, 7
    s_add_u32 s4, s3, s4
    s_add_u32 s4, s4, {WS_G}
    s_lshl_b32 s10, s{sW}, 3
    s_add_u32 s10, s10, s3
    s_add_u32 s10, s10, {FL_H + 56*8}
    v_lshlrev_b32 v13, 2, v2
    s_nop 7
    v_mul_f32 v14, {f2u(-LOG2E):#x}, v{AG}
    v_exp_f32 v14, v14
    s_nop 0
    v_add_f32 v14, 1.0, v14
    v_rcp_f32 v14, v14
    s_nop 0
    buffer_store_dword v14, v13, {sr(SWS,4)}, s4 offen sc1
    """)
    nonce_get(a, 232)
    publish(a, 10, 16)
    lds_wait(a, C_Q, 4, 1, 15, sleep=1)
    lds_add(a, C_F1, 12, 13)
    a("s_branch k_ffn2")
    a.lab("k_f15")
    a("s_waitcnt lgkmcnt(0)")
    a("s_barrier")
    lds_wait(a, C_Q, 4, 12, 13, sleep=1)
    lds_add(a, C_F1, 12, 13)
    nonce_issue(a, 232)
    nonce_get(a, 232)
    a.lab("k_ffn2")
    stamp(a, 5)
    ACC = 16; WOF = 176; OFR = 80
    FD = OPT.get("FD", 3)
    HBr = [112 + 16*i for i in range(FD)]
    WF2 = [80, 96]
    VD = 8; TA = 14
    sRb, sCb, sM0, sWo, sHo, sHo1, sT3 = 4, 5, 6, 7, 8, 9, 11
    srd(a, SW2, 26, F*D*2)
    srd(a, SWO, 20, D*D*2)
    if OPT.get("FT", 1):
        a(f"""
        s_lshl_b32 s3, s{sIdx}, 2
        s_add_u32 s3, s3, s{sW}
        s_mul_i32 s5, s3, {25*128}
        s_mul_i32 s4, s3, {98*128}
        v_lshlrev_b32 v28, 7, v0
        v_add_u32 v29, 8192, v28
        v_cmp_gt_u32 vcc, 34, v0
        v_bfrev_b32 v15, 1
        v_mov_b32 v30, v28
        v_cndmask_b32 v29, v15, v29, vcc
        v_cmp_gt_u32 vcc, 25, v0
        s_nop 1
        v_cndmask_b32 v30, v15, v30, vcc
        """)
        a(f"""
        s_lshl_b32 s10, s{sW}, 2
        s_add_u32 s10, s10, {C_A3}
        """)
        lds_wait(a, "s10", OPT.get("TG", 2), 80, 81, sleep=OPT.get("FSL", 4))
        a(f"""
        buffer_load_dword v240, v28, {sr(SW2,4)}, s4 offen
        s_waitcnt vmcnt(0)
        buffer_load_dword v241, v29, {sr(SW2,4)}, s4 offen
        buffer_load_dword v242, v30, {sr(SWO,4)}, s5 offen
        s_waitcnt vmcnt(0)
        """)
    a(f"""
    s_cmp_ge_u32 s{sIdx}, {0 if OPT.get('NOF2') else 28}
    s_cbranch_scc1 k_f_done
    s_mul_i32 s3, s{sIdx}, 37
    s_lshr_b32 s3, s3, 8
    s_mul_i32 s{sT}, s3, 7
    s_sub_u32 s{sCb}, s{sIdx}, s{sT}
    s_lshl_b32 s{sRb}, s{sX}, 2
    s_add_u32 s{sRb}, s{sRb}, s3
    """)
    srd(a, SOUT, 30, S*D*2)
    a(f"""
    v_lshrrev_b32 v1, 3, v0
    v_mul_u32_u24 v1, 896, v1
    v_bfe_u32 v12, v0, 2, 1
    v_xor_b32 v12, v12, v5
    v_lshl_add_u32 v1, v12, 6, v1
    v_lshl_add_u32 v{VD}, v6, 4, v1
    v_add_u32 v{VD+1}, 6144, v{VD}
    v_add_u32 v{VD+2}, {2*6144}, v{VD}
    v_add_u32 v{VD+3}, {3*6144}, v{VD}
    s_mul_i32 s{sM0}, s{sW}, {RING}
    s_add_u32 s{sM0}, s{sM0}, {RING0}
    v_lshl_add_u32 v1, v3, 2, v4
    v_lshlrev_b32 v1, 7, v1
    v_lshl_add_u32 v1, v5, 5, v1
    v_lshl_add_u32 v1, v6, 3, v1
    v_add_u32 v1, s{sM0}, v1
    v_bfe_u32 v13, v0, 3, 1
    v_lshl_add_u32 v{TA}, v13, 6, v1
    v_xor_b32 v13, 1, v13
    v_lshl_add_u32 v{TA+1}, v13, 6, v1
    s_mul_i32 s{sWo}, s{sW}, {448*896}
    s_lshl_b32 s3, s{sCb}, 7
    s_add_u32 s{sWo}, s{sWo}, s3
    s_mul_i32 s3, s{sRb}, 112
    s_mul_i32 s{sT}, s{sW}, 14
    s_add_u32 s3, s3, s{sT}
    s_lshl_b32 s3, s3, 11
    s_add_u32 s{sHo}, s3, {WS_HF}
    s_add_u32 s{sHo1}, s{sHo}, {56*2048}
    s_mov_b32 s{sT3}, s{sM0}
    """)
    a(f"""
    s_and_b32 s3, s{sRb}, 1
    s_lshl_b32 s3, s3, 4
    v_lshlrev_b32 v1, 4, v0
    v_add_u32 v13, s3, v1
    v_cmp_gt_u32 vcc, 28, v0
    s_lshr_b32 s3, s{sRb}, 1
    s_lshl_b32 s3, s3, 9
    v_cndmask_b32 v1, v13, v1, vcc
    s_add_u32 s10, s3, {FL_H}
    v_mul_u32_u24 v4, 7, v0
    v_add_u32 v4, s{sCb}, v4
    v_cmp_le_u32 vcc, 224, v4
    v_lshlrev_b32 v4, 7, v4
    v_add_u32 v5, {56*2048 - 224*128}, v4
    v_lshlrev_b32 v6, 2, v2
    v_cndmask_b32 v4, v4, v5, vcc
    """)
    zero_acc(ACC, 4, 80)
    lds_wait(a, C_F1, 4, 80, 81, sleep=1)
    def wdma_l(i):
        L = [f"s_add_u32 m0, s{sM0}, {4096*(i % (FD+1))}\n s_nop 0\n buffer_load_dwordx4 v{VD}, {sr(SW2,4)}, s{sWo} offen lds"]
        for k in range(1, 4):
            L.append(f"buffer_load_dwordx4 v{VD+k}, {sr(SW2,4)}, s{sWo} offen offset:{1024*k} lds")
        L[-1] += f"\n s_add_u32 s{sWo}, s{sWo}, {32*896}"
        return L
    def hld_l(i):
        hb = HBr[i % FD]
        L = []
        for kk in range(2):
            for mi in range(2):
                L.append(f"buffer_load_dwordx4 {vr(hb+8*mi+4*kk,4)}, v7, {sr(SWS,4)}, s{sHo if mi == 0 else sHo1} offen offset:{2048*(i%2)+1024*kk} sc1")
        if i % 2 == 1:
            L[-1] += f"\n s_add_u32 s{sHo}, s{sHo}, 4096\n s_add_u32 s{sHo1}, s{sHo1}, 4096"
        return L
    def tread_list(dst, off):
        L = []
        for kk in range(2):
            for ni in range(2):
                for u in range(2):
                    L.append(f"ds_read_b64_tr_b16 {vr(dst(ni,kk)+2*u,2)}, v{TA+ni} offset:{off+(16*kk+8*u)*128}")
        return L
    def treads(dst, off):
        for x in tread_list(dst, off): a(x)
    a(f"""
    s_mul_i32 s15, s{sW}, {4*28*896}
    s_lshl_b32 s3, s{sCb}, 7
    s_add_u32 s15, s15, s3
    """)
    for hl in range(4):
        a(f"s_add_u32 m0, s{sM0}, {4096*hl}")
        a("s_nop 0")
        for i in range(4):
            a(f"buffer_load_dwordx4 v{VD+i}, {sr(SWO,4)}, s15 offen offset:{1024*i} lds")
        a(f"s_add_u32 s15, s15, {28*896}")
    for hl in range(4):
        a(f"s_waitcnt vmcnt({12-4*hl})")
        treads(lambda ni,kk: WOF+16*hl+8*kk+4*ni, 4096*hl)
        a("s_waitcnt lgkmcnt(4)")
    a("s_waitcnt lgkmcnt(0)")
    for i in range(FD):
        for x in wdma_l(i): a(x)
    a(f"""
    s_cmp_lg_u32 s{sW}, 0
    s_cbranch_scc1 k_f_w
    """)
    poll4(a, 29, 1, 10, 80)
    lds_add(a, C_H, 80, 81)
    a("s_branch k_f_go")
    a.lab("k_f_w")
    lds_wait(a, C_H, 1, 80, 81, sleep=2)
    a.lab("k_f_go")
    stamp(a, 6)
    a(f"s_setprio {OPT.get('PRIO_F2', 0)}")
    a(f"""
    s_lshl_b32 s3, s{sRb}, 8
    s_add_u32 s3, s3, {WS_G}
    """)
    ops = []
    for x in hld_l(0): a(x); ops.append(("h", 0))
    if OPT["TOUCH"]:
        a(f"buffer_load_dword v5, v4, {sr(SWS,4)}, s{sHo} offen sc1"); ops.append(("t", 0))
    for i in range(1, FD):
        for x in hld_l(i): a(x); ops.append(("h", i))
    a(f"buffer_load_dword v1, v6, {sr(SWS,4)}, s3 offen sc1"); ops.append(("g", 0))
    a(f"buffer_load_dword v13, v6, {sr(SWS,4)}, s3 offen offset:128 sc1"); ops.append(("g", 0))
    def newer(tag):
        idx = [k for k, o in enumerate(ops) if o == tag]
        return len(ops) - 1 - idx[-1] if idx else None
    treads(lambda ni,kk: WF2[0]+8*ni+4*kk, 0) if False else None
    if OPT.get("ASIG", 3) > 0:
        a(f"""
        s_lshl_b32 s10, s{sW}, 2
        s_add_u32 s10, s10, {C_A3}
        """)
        lds_wait(a, "s10", 3 if OPT.get("UNR", 0) else OPT.get("ASI", 3)+1, 240, 241, sleep=OPT.get("FSL", 4))
        stamp(a, 2, pv=0) if False else None
    a(f"s_waitcnt vmcnt({len(ops)})")
    treads(lambda ni,kk: WF2[0]+8*ni+4*kk, 0)
    for i in range(14):
        b = i % 2
        need = [newer(("h", i))]
        if i + 1 < 14 and newer(("w", i+1)) is not None: need.append(newer(("w", i+1)))
        a(f"s_waitcnt vmcnt({min(need)}) lgkmcnt(0)")
        rl = tread_list(lambda ni,kk: WF2[1-b]+8*ni+4*kk, 4096*((i+1) % (FD+1))) if i + 1 < 14 else []
        wl = wdma_l(i+FD) if i + FD < 14 else []
        hl_ = hld_l(i+FD) if i + FD < 14 else []
        m = 0
        for kk in range(2):
            for mi in range(2):
                for ni in range(2):
                    acc = ACC + 16*(2*mi+ni)
                    hb = HBr[i % FD]
                    a(f"{MFMA} {vr(acc,16)}, {vr(WF2[b]+8*ni+4*kk,4)}, {vr(hb+8*mi+4*kk,4)}, {vr(acc,16)}")
                    if rl and m < 4:
                        a(rl[2*m]); a(rl[2*m+1])
                    if wl and m < 4:
                        a(wl[m]); ops.append(("w", i+FD))
                    if hl_ and m in (4, 5):
                        a(hl_[m-4]); ops.append(("h", i+FD))
                    if hl_ and m == 7:
                        a(hl_[2]); a(hl_[3]); ops.append(("h", i+FD)); ops.append(("h", i+FD))
                    m += 1
    a("s_waitcnt vmcnt(0) lgkmcnt(0)")
    stamp(a, 7)
    a("s_setprio 2")
    a(f"""
    v_sub_f32 v4, 1.0, v1
    v_sub_f32 v6, 1.0, v13
    """)
    for mi in range(2):
        for r in range(32):
            a(f"v_mul_f32 v{ACC+32*mi+r}, v{4+2*mi}, v{ACC+32*mi+r}")
    a(f"""
    v_lshrrev_b32 v1, 2, v0
    v_lshlrev_b32 v1, 7, v1
    v_and_b32 v13, 3, v0
    v_lshl_add_u32 v1, v13, 3, v1
    s_lshl_b32 s3, s{sRb}, 8
    s_lshl_b32 s{sT}, s{sW}, 5
    s_add_u32 s3, s3, s{sT}
    s_add_u32 s{sT}, s3, {FL_O}
    s_lshl_b32 s3, s{sRb}, 5
    s_lshl_b32 s{sHo}, s{sW}, 2
    s_add_u32 s3, s3, s{sHo}
    s_lshl_b32 s3, s3, 11
    s_add_u32 s{sHo}, s3, {WS_OF}
    s_add_u32 s{sWo}, s{sHo}, 32768
    s_waitcnt vmcnt(0)
    """)
    stamp(a, 8)
    lds_wait(a, C_A2, 4, 8, 9, sleep=2)
    a("s_setprio 3")
    poll(a, 8, 1, sT, 8)
    stamp(a, 9)
    stamp(a, 1, pv=7)
    for hl in range(4):
        if hl == 2:
            a(f"s_add_u32 s{sHo}, s{sHo}, 4096")
            a(f"s_add_u32 s{sWo}, s{sWo}, 4096")
        for kk in range(2):
            for mi in range(2):
                so = sHo if mi == 0 else sWo
                a(f"buffer_load_dwordx4 {vr(OFR+16*hl+8*kk+4*mi,4)}, v7, {sr(SWS,4)}, s{so} offen offset:{2048*(hl&1)+1024*kk} sc1")
    n = 16
    for hl in range(4):
        for kk in range(2):
            n -= 2
            a(f"s_waitcnt vmcnt({n})")
            if n == 14: stamp(a, 2, pv=7)
            for mi in range(2):
                for ni in range(2):
                    acc = ACC + 16*(2*mi+ni)
                    a(f"{MFMA} {vr(acc,16)}, {vr(WOF+16*hl+8*kk+4*ni,4)}, {vr(OFR+16*hl+8*kk+4*mi,4)}, {vr(acc,16)}")
    stamp(a, 3, pv=7)
    a(f"""
    v_add_u32 v4, s{sT3}, v7
    s_lshl_b32 s3, s{sW}, 12
    s_add_u32 s3, s3, {RING0}
    v_add_u32 v5, s3, v7
    s_nop 7
    """)
    RR = 80
    for wv in range(4):
        a(f"s_cmp_lg_u32 s{sW}, {wv}")
        a(f"s_cbranch_scc1 k_red{wv}_skip")
        for t in range(4):
            if t == wv: continue
            for r4 in range(4):
                a(f"ds_write_b128 v4, {vr(ACC+16*t+4*r4,4)} offset:{4096*t+1024*r4}")
        for r in range(16):
            a(f"v_mov_b32 v{128+r}, v{ACC+16*wv+r}")
        a.lab(f"k_red{wv}_skip")
    lds_add(a, C_RED, 8, 9)
    stamp(a, 4, pv=7)
    a(f"""
    s_lshr_b32 s3, s{sW}, 1
    s_lshl_b32 s3, s3, 5
    s_lshl_b32 s{sT}, s{sRb}, 6
    s_add_u32 s3, s3, s{sT}
    s_mul_i32 s3, s3, 896
    s_lshl_b32 s{sT}, s{sCb}, 7
    s_add_u32 s3, s3, s{sT}
    s_and_b32 s{sT}, s{sW}, 1
    s_lshl_b32 s{sT}, s{sT}, 6
    s_add_u32 s{sT}, s3, s{sT}
    v_mul_u32_u24 v4, 896, v2
    v_lshrrev_b32 v6, 5, v0
    v_lshl_add_u32 v4, v6, 4, v4
    """)
    lds_wait(a, C_RED, 4, 8, 9)
    stamp(a, 5, pv=7)
    for i in range(3):
        a(f"""
        s_add_u32 s3, s{sW}, {1+i}
        s_and_b32 s3, s3, 3
        s_mul_i32 s3, s3, {RING}
        v_add_u32 v6, s3, v5
        """)
        for r4 in range(4):
            a(f"ds_read_b128 {vr(RR+16*i+4*r4,4)}, v6 offset:{1024*r4}")
    for i in range(3):
        a(f"s_waitcnt lgkmcnt({8-4*i})")
        for p in range(8):
            a(f"v_pk_add_f32 {vr(128+2*p,2)}, {vr(128+2*p,2)}, {vr(RR+16*i+2*p,2)}")
    for p in range(8):
        a(f"v_cvt_pk_bf16_f32 v{16+p}, v{128+2*p}, v{128+2*p+1}")
    a(f"""
    s_nop 1
    v_permlane32_swap_b32 v16, v18
    v_permlane32_swap_b32 v17, v19
    v_permlane32_swap_b32 v20, v22
    v_permlane32_swap_b32 v21, v23
    buffer_store_dwordx4 v[16:19], v4, {sr(SOUT,4)}, s{sT} offen
    buffer_store_dwordx4 v[20:23], v4, {sr(SOUT,4)}, s{sT} offen offset:32
    """)
    stamp(a, 6, pv=7)
    if PROF:
        a("s_waitcnt vmcnt(0)"); stamp(a, 10); stamp(a, 7, pv=7)
    a.lab("k_f_done")
    flush(a, 4)
    a("s_endpgm")
    a.lab("k_end")
    a("s_endpgm")
    a.lab("k_code_end")

def main(out):
    a = A()
    gen(a)
    txt = "; gated_mix: softmax MHA + SiLU FFN + sigmoid gate, one fused persistent kernel. Generated by work/gen4.py\n"
    txt += f"; @launch grid=(256,1,1) block=(512,1,1) lds={LDS_BYTES}\n"
    txt += '.amdgcn_target "amdgcn-amd-amdhsa--gfx950"\n.text\n'
    txt += a.text()
    txt += f""".section .rodata,"a"
.p2align 6
.amdhsa_kernel {NAME}
  .amdhsa_next_free_vgpr 256
  .amdhsa_next_free_sgpr 102
  .amdhsa_accum_offset 256
  .amdhsa_group_segment_fixed_size 0
  .amdhsa_kernarg_size 80
  .amdhsa_user_sgpr_count 2
  .amdhsa_user_sgpr_kernarg_segment_ptr 1
  .amdhsa_system_sgpr_workgroup_id_x 1
.end_amdhsa_kernel
"""
    open(out, "w").write(txt)

if __name__ == "__main__":
    main(sys.argv[1] if len(sys.argv) > 1 else "f.s")
```

```python
import math, struct, sys, os

def f2u(x):
    return struct.unpack("<I", struct.pack("<f", x))[0]

S, D, H, DH, F = 2048, 448, 16, 28, 1792
WS_QF = 0
WS_KV = 2 << 20
WS_HF = 6 << 20
WS_OF = 14 << 20
WS_G  = 16 << 20
WS_FL = (16 << 20) + 65536
FL_KV = WS_FL
FL_H  = WS_FL + 8192
FL_O  = WS_FL + 16384
WS_SIZE = (16 << 20) + 131072
PROF = int(os.environ.get("PROF", "0"))
WS_PROF = WS_SIZE
if PROF:
    WS_SIZE = WS_PROF + 2*256*8*64
OPT = dict(NB=6, UNR=1, ASU=39, TOUCH=1, PRIO_A=1, PRIO_F=2)
for kv in os.environ.get("OPT", "").split(","):
    if "=" in kv:
        k, v = kv.split("="); OPT[k] = int(v)

LOG2E = 1.4426950408889634
QSCALE = (DH ** -0.5) * LOG2E
NAME = "gated_mix__softmax_full_mha__dense_activation_silu__prompt_kernel"

class A:
    def __init__(self):
        self.l = []
        self.n = 0
    def __call__(self, s):
        for x in s.strip("\n").split("\n"):
            x = x.strip()
            if not x: continue
            self.l.append(x if x.endswith(":") else "  " + x)
    def lab(self, s):
        self.l.append(s + ":")
    def uniq(self, p):
        self.n += 1
        return f"{p}_{self.n}"
    def text(self):
        return "\n".join(self.l) + "\n"

def vr(b, n): return f"v[{b}:{b+n-1}]" if n > 1 else f"v{b}"
def sr(b, n): return f"s[{b}:{b+n-1}]" if n > 1 else f"s{b}"
MFMA = "v_mfma_f32_32x32x16_bf16"

SX, SWQ, SWS, SW1, SW2, SWO, SOUT, SG, SDBG = 36, 40, 44, 48, 52, 56, 60, 64, 68
SKV = 48
sMB, sJ, sW, sX, sIdx, sC, sK, sT = 72, 73, 74, 75, 76, 77, 78, 79
sE = 12
XBASE = 49152
QSLOT = 12288
LCNT = 36864
C_F1, C_OC, C_BAD, C_A2, C_RED, C_FB1, C_FB2, C_Q, C_KV, C_H, C_QX, C_S = [LCNT + 4*i for i in range(12)]
C_A3 = LCNT + 64
QXB = 12288
W1E = LCNT + 1024
RING0 = 40960
RING = 24576
OC3 = RING0 + 4*RING
LDS_BYTES = 163840

def srd(a, d, base, nbytes):
    a(f"s_mov_b32 s{d}, s{base}")
    a(f"s_mov_b32 s{d+1}, s{base+1}")
    a(f"s_mov_b32 s{d+2}, {nbytes}")
    a(f"s_mov_b32 s{d+3}, 0x00020000")

PV = OPT.get("PV", 0)
def stamp(a, i, cyc=False, pv=0):
    if PROF and (pv == PV or i == 0):
        assert 0 <= i < 11
        a(f"{'s_memtime' if cyc else 's_memrealtime'} s[{80+2*i}:{81+2*i}]")
def flush(a, wadd):
    if not PROF: return
    if OPT.get("HPROF"):
        L = a.uniq("hp")
        a("s_waitcnt lgkmcnt(0)")
        a(f"s_or_b32 s3, s2, s{sW}")
        a(f"s_cmp_lg_u32 s3, {OPT.get('HWG', 0)}")
        a(f"s_cbranch_scc1 {L}")
        sel = [2, 3, 7, 8, 9, 1, 10] if wadd == 0 else [2, 3, 4, 6, 7, 9, 10]
        a("s_mov_b64 exec, 1")
        a("v_mov_b32 v28, 0")
        for k, i in enumerate(sel):
            if wadd == 0 and i == 1:
                continue
            if wadd == 0 and i == 10:
                a(f"s_sub_u32 s3, s{80+2*10}, s{80+2*1}")
            else:
                a(f"s_sub_u32 s3, s{80+2*i}, s80")
            a(f"v_mov_b32 v16, s3")
            a(f"buffer_store_dword v16, v28, {sr(SDBG,4)}, 0 offen offset:{8+4*k+(28 if wadd else 0)}")
        a.lab(L)
        return
    a("s_waitcnt lgkmcnt(0)")
    a(f"s_lshl_b32 s3, s2, 3")
    a(f"s_add_u32 s3, s3, s{sW}")
    a(f"s_add_u32 s3, s3, {wadd}")
    a(f"s_lshl_b32 s3, s3, 6")
    a(f"s_add_u32 s3, s3, {WS_PROF}")
    a("s_mov_b64 exec, 1")
    a("s_nop 4")
    for i in range(11):
        a(f"v_mov_b32 v{16+i}, s{80+2*i}")
    a("v_mov_b32 v27, 0")
    a("v_mov_b32 v28, 0")
    for i in range(3):
        a(f"buffer_store_dwordx4 v[{16+4*i}:{19+4*i}], v28, {sr(SWS,4)}, s3 offen offset:{16*i}")

def lds_add(a, cnt, vt0, vt1):
    a(f"""
    v_mov_b32 v{vt0}, {cnt}
    v_mov_b32 v{vt1}, 1
    s_mov_b64 exec, 1
    ds_add_u32 v{vt0}, v{vt1}
    s_mov_b64 exec, -1
    """)
def lds_wait(a, cnt, target, vt0, vt1, sleep=0):
    L = a.uniq("lw"); E = a.uniq("lwe")
    a(f"v_mov_b32 v{vt0}, {cnt}")
    a(f"s_mov_b32 s14, 0")
    a.lab(L)
    a(f"""
    ds_read_b32 v{vt1}, v{vt0}
    s_add_u32 s14, s14, 1
    s_waitcnt lgkmcnt(0)
    v_readfirstlane_b32 s15, v{vt1}
    s_cmp_gt_u32 s14, 0x200000
    s_cbranch_scc1 {E}
    s_cmp_ge_u32 s15, {target}
    s_cbranch_scc1 {E}
    {f"s_sleep {sleep}" if sleep else ""}
    s_branch {L}
    """)
    a.lab(E)

def nonce_issue(a, vt):
    a(f"v_mov_b32 v{vt}, 0")
    a(f"buffer_load_dwordx2 {vr(vt+2,2)}, v{vt}, {sr(SDBG,4)}, 0 offen sc1")
def nonce_get(a, vt):
    L = a.uniq("ng"); E = a.uniq("nge")
    a("s_mov_b32 s14, 0")
    a.lab(L)
    a(f"""
    s_waitcnt vmcnt(0)
    v_readfirstlane_b32 s{sE}, v{vt+2}
    v_readfirstlane_b32 s{sE+1}, v{vt+3}
    s_add_u32 s14, s14, 1
    s_cmp_gt_u32 s14, 0x40000
    s_cbranch_scc1 {E}
    s_cmp_lg_u32 s{sE}, 0
    s_cbranch_scc1 {E}
    buffer_load_dwordx2 {vr(vt+2,2)}, v{vt}, {sr(SDBG,4)}, 0 offen sc1
    s_branch {L}
    """)
    a.lab(E)
def publish(a, soff, vt):
    a(f"""
    v_mov_b32 v{vt}, s{sE}
    v_mov_b32 v{vt+1}, s{sE+1}
    v_mov_b32 v{vt+2}, 0
    s_mov_b64 exec, 1
    buffer_store_dwordx2 {vr(vt,2)}, v{vt+2}, {sr(SWS,4)}, s{soff} offen sc1
    s_mov_b64 exec, -1
    """)
def poll(a, nl, voff, soff, vt, slp=3):
    L = a.uniq("pl"); E = a.uniq("ple")
    a(f"s_mov_b32 exec_lo, {((1<<nl)-1) & 0xffffffff:#x}")
    a(f"s_mov_b32 exec_hi, {((1<<nl)-1) >> 32:#x}")
    a("s_mov_b32 s14, 0")
    a.lab(L)
    a(f"""
    buffer_load_dwordx2 {vr(vt,2)}, v{voff}, {sr(SWS,4)}, s{soff} offen sc1
    s_add_u32 s14, s14, 1
    s_waitcnt vmcnt(0)
    v_cmp_eq_u64 vcc, {sr(sE,2)}, {vr(vt,2)}
    s_cmp_gt_u32 s14, 0x40000
    s_cbranch_scc1 {E}
    s_cmp_eq_u64 vcc, exec
    s_cbranch_scc1 {E}
    {f"s_sleep {slp}" if slp else ""}
    s_branch {L}
    """)
    a.lab(E)
    a("s_mov_b64 exec, -1")

def poll4(a, nl, voff, soff, vt, slp=3):
    L = a.uniq("pl"); E = a.uniq("ple")
    a(f"s_mov_b32 exec_lo, {((1<<nl)-1) & 0xffffffff:#x}")
    a(f"s_mov_b32 exec_hi, {((1<<nl)-1) >> 32:#x}")
    a("s_mov_b32 s14, 0")
    a.lab(L)
    a(f"""
    buffer_load_dwordx4 {vr(vt,4)}, v{voff}, {sr(SWS,4)}, s{soff} offen sc1
    s_add_u32 s14, s14, 1
    s_waitcnt vmcnt(0)
    v_cmp_eq_u64 vcc, {sr(sE,2)}, {vr(vt,2)}
    v_cmp_eq_u64 s[{sT-1}:{sT}], {sr(sE,2)}, {vr(vt+2,2)}
    s_cmp_gt_u32 s14, 0x40000
    s_cbranch_scc1 {E}
    s_and_b64 vcc, vcc, s[{sT-1}:{sT}]
    s_cmp_eq_u64 vcc, exec
    s_cbranch_scc1 {E}
    {f"s_sleep {slp}" if slp else ""}
    s_branch {L}
    """)
    a.lab(E)
    a("s_mov_b64 exec, -1")

def gen(a):
    NB = OPT["NB"]
    a.l.append(f".globl {NAME}")
    a.l.append(".p2align 8")
    a.l.append(f".type {NAME},@function")
    a.lab(NAME)
    a(f"""
    s_cmp_ge_u32 s2, 256
    s_cbranch_scc1 k_end
    s_load_dwordx16 s[16:31], s[0:1], 0
    s_load_dwordx4 s[32:35], s[0:1], 64
    """)
    if PROF:
        for i in range(1, 11):
            a(f"s_mov_b64 s[{80+2*i}:{81+2*i}], 0")
        stamp(a, 0)
    VXO = 20
    XA = 8
    a(f"""
    v_lshrrev_b32 v1, 6, v0
    v_and_b32 v0, 63, v0
    s_and_b32 s{sX}, s2, 7
    s_lshr_b32 s{sIdx}, s2, 3
    v_readfirstlane_b32 s{sW}, v1
    s_and_b32 s{sMB}, s{sX}, 1
    s_lshl_b32 s{sMB}, s{sMB}, 3
    s_and_b32 s3, s{sIdx}, 7
    s_add_u32 s{sMB}, s{sMB}, s3
    s_lshr_b32 s{sJ}, s{sX}, 1
    s_lshl_b32 s{sJ}, s{sJ}, 2
    s_lshr_b32 s3, s{sIdx}, 3
    s_add_u32 s{sJ}, s{sJ}, s3
    v_lshrrev_b32 v14, 3, v0
    v_mul_u32_u24 v14, 896, v14
    v_lshrrev_b32 v15, 4, v0
    v_and_b32 v1, 7, v0
    v_xor_b32 v15, v15, v1
    v_lshl_add_u32 v{VXO}, v15, 4, v14
    v_xor_b32 v15, 4, v15
    v_lshl_add_u32 v{VXO+1}, v15, 4, v14
    v_add_u32 v{VXO+2}, {2*6144}, v{VXO}
    v_add_u32 v{VXO+3}, {3*6144}, v{VXO+1}
    v_add_u32 v{VXO+1}, 6144, v{VXO+1}
    s_and_b32 s4, s{sW}, 3
    s_lshl_b32 s3, s{sMB}, 7
    s_lshl_b32 s6, s4, 5
    s_add_u32 s3, s3, s6
    s_mul_i32 s5, s3, 896
    s_and_b32 s3, s{sJ}, 3
    s_lshl_b32 s3, s3, 1
    s_and_b32 s11, s{sMB}, 7
    s_add_u32 s11, s11, s3
    s_cmp_ge_u32 s11, 7
    s_cselect_b32 s3, 7, 0
    s_sub_u32 s11, s11, s3
    s_mul_i32 s11, s11, {OPT.get("ROT", 1)}
    s_lshl_b32 s3, s11, 7
    s_add_u32 s5, s5, s3
    s_mov_b32 s15, s11
    s_lshl_b32 s6, s4, 12
    s_add_u32 s6, s6, {XBASE}
    v_and_b32 v2, 31, v0
    v_lshrrev_b32 v3, 5, v0
    v_bfe_u32 v4, v0, 2, 2
    v_bfe_u32 v5, v0, 4, 1
    v_and_b32 v6, 3, v0
    v_lshlrev_b32 v7, 4, v0
    """)
    VQO = 16
    a(f"s_mul_i32 s3, s{sJ}, 56")
    a(f"s_and_b32 s3, s3, -16")
    for i in range(3):
        a(f"""
        v_add_u32 v1, {64*i}, v0
        v_mul_u32_u24 v14, 43691, v1
        v_lshrrev_b32 v14, 19, v14
        v_mul_u32_u24 v15, 12, v14
        v_sub_u32 v1, v1, v15
        v_mul_u32_u24 v14, 2688, v14
        v_lshrrev_b32 v15, 2, v1
        v_mul_u32_u24 v15, 896, v15
        v_add_u32 v14, v14, v15
        v_and_b32 v1, 3, v1
        v_lshl_add_u32 v14, v1, 4, v14
        v_add_u32 v14, s3, v14
        v_subrev_u32 v{VQO+i}, {1024*i}, v14
        """)
    a(f"""
    s_mul_i32 s7, s4, {16*2688}
    s_mul_i32 s3, s11, {64*2688}
    s_add_u32 s7, s7, s3
    s_mul_i32 s8, s4, 3072
    s_cmp_ge_u32 s{sW}, 4
    s_mov_b32 s{sW}, s4
    s_mov_b32 s14, s11
    s_movk_i32 s4, 128
    s_mov_b32 s9, {64*2688}
    s_waitcnt lgkmcnt(0)
    s_cbranch_scc1 k_F
    """)
    def xa_setup():
        a(f"v_bfe_u32 v14, v0, 1, 3")
        a(f"v_lshlrev_b32 v15, 7, v2")
        for kk in range(4):
            a(f"v_add_u32 v1, {2*kk}, v3")
            a(f"v_xor_b32 v1, v1, v14")
            a(f"v_lshl_add_u32 v{XA+kk}, v1, 4, v15")
    def zero_acc(base, n, z):
        for i in range(4): a(f"v_mov_b32 v{z+i}, 0")
        a("s_nop 1")
        for i in range(n):
            a(f"{MFMA} {vr(base+16*i,16)}, {vr(z,4)}, {vr(z,4)}, 0")
    ops = []
    def xdma(c):
        a(f"s_add_u32 m0, s6, {16384*c}")
        a(f"s_add_u32 s14, s14, 1")
        for i in range(4):
            a(f"buffer_load_dwordx4 v{VXO+i}, {sr(SX,4)}, s5 offen offset:{1024*i} lds"); ops.append(("x", c))
        a(f"""
        s_cmp_eq_u32 s14, 7
        s_cselect_b32 s3, -768, s4
        s_add_u32 s5, s5, s3
        """)
    def qdma(c):
        a(f"s_add_u32 m0, s8, {QSLOT*(c % 3)}")
        a(f"s_add_u32 s15, s15, 1")
        for i in range(3):
            a(f"buffer_load_dwordx4 v{VQO+i}, {sr(SWQ,4)}, s7 offen offset:{1024*i} lds"); ops.append(("q", c))
        a(f"""
        s_cmp_eq_u32 s15, 7
        s_cselect_b32 s3, {-6*64*2688}, s9
        s_add_u32 s7, s7, s3
        """)
    def landed(c):
        last = max(k for k, o in enumerate(ops) if o in (("x", c), ("q", c)))
        return len(ops) - 1 - last
    srd(a, SX, 16, S*D*2)
    xdma(0)
    srd(a, SWQ, 18, D*3*D*2)
    qdma(0)
    a("s_setprio 3")
    xdma(1); qdma(1)
    if not OPT.get("ES", 1):
        xdma(2); qdma(2); xdma(3)
    stamp(a, 1)
    srd(a, SWS, 34, WS_SIZE)
    srd(a, SDBG, 32, 256)
    WB = 12
    QB = [32, 48, 128, 144]
    AQ, AK, AV = 64, 80, 96
    VCS, VONE, VT = 24, 25, 26
    xa_setup()
    a(f"""
    s_lshl_b32 s3, s{sW}, 12
    s_add_u32 s3, s3, {XBASE}
    """)
    for kk in range(4):
        a(f"v_add_u32 v{XA+kk}, s3, v{XA+kk}")
    a(f"""
    v_lshl_add_u32 v14, v3, 3, v4
    v_mul_u32_u24 v14, 192, v14
    v_lshl_add_u32 v14, v5, 5, v14
    v_lshl_add_u32 v{WB}, v6, 3, v14
    s_and_b32 s3, s{sJ}, 1
    s_lshl_b32 s3, s3, 3
    v_add_u32 v{WB}, s3, v{WB}
    v_mov_b32 v31, 0x3f803f80
    v_cmp_eq_u32 vcc, 28, v2
    v_mov_b32 v{VCS}, {C_S}
    v_mov_b32 v{VONE}, 1
    v_cndmask_b32 v31, 0, v31, vcc
    """)
    zero_acc(AQ, 3, 128)
    if OPT.get("TB", 99) == 9:
        srd(a, SW2, 26, F*D*2)
        srd(a, SWO, 20, D*D*2)
        a(f"""
        v_lshlrev_b32 v28, 7, v0
        v_add_u32 v29, 8192, v28
        v_cmp_gt_u32 vcc, 34, v0
        v_bfrev_b32 v15, 1
        v_mov_b32 v30, v28
        v_cndmask_b32 v29, v15, v29, vcc
        v_cmp_gt_u32 vcc, 25, v0
        s_nop 1
        v_cndmask_b32 v30, v15, v30, vcc
        """)
    a("s_barrier")
    def qread_list(buf, c, kk):
        b = QB[buf]
        L = [f"ds_read_b128 {vr(b,4)}, v{XA+kk} offset:{(c%4)*16384}"]
        for t in range(3):
            for u in range(2):
                L.append(f"ds_read_b64_tr_b16 {vr(b+4+4*t+2*u,2)}, v{WB} offset:{QSLOT*(c%3)+(16*kk+4*u)*192+t*64}")
        return L
    def qstep(mbuf, R):
        b = QB[mbuf]
        M = [f"{MFMA} {vr(AQ,16)}, {vr(b+4,4)}, {vr(b,4)}, {vr(AQ,16)}",
             f"{MFMA} {vr(AK,16)}, {vr(b+8,4)}, {vr(b,4)}, {vr(AK,16)}",
             f"{MFMA} {vr(AV,16)}, {vr(b,4)}, {vr(b+12,4)}, {vr(AV,16)}"]
        n = len(R); cuts = [0, (n+2)//3, (2*n+2)//3, n]
        for i in range(3):
            a(M[i])
            for x in R[cuts[i]:cuts[i+1]]: a(x)
    def arrive(c):
        a(f"""
        s_waitcnt vmcnt({landed(c)}) lgkmcnt(0)
        s_mov_b64 exec, 1
        ds_add_u32 v{VCS}, v{VONE}
        s_mov_b64 exec, -1
        """)
    def spin(c):
        L = a.uniq("sp"); E = a.uniq("spe")
        a("s_mov_b32 s10, 0")
        a.lab(L)
        a(f"""
        ds_read_b32 v{VT}, v{VCS}
        s_add_u32 s10, s10, 1
        s_waitcnt lgkmcnt(0)
        v_readfirstlane_b32 s3, v{VT}
        s_cmp_gt_u32 s10, 0x200000
        s_cbranch_scc1 {E}
        s_cmp_ge_u32 s3, {4*(c+1)}
        s_cbranch_scc0 {L}
        """)
        a.lab(E)
    arrive(0)
    if OPT.get("ES", 1):
        xdma(2); qdma(2)
    spin(0)
    stamp(a, 2)
    for x in qread_list(0, 0, 0) + qread_list(1, 0, 1): a(x)
    if OPT.get("ES", 1):
        xdma(3)
    for c in range(7):
        a("s_waitcnt lgkmcnt(7)"); qstep(0, qread_list(2, c, 2))
        a("s_waitcnt lgkmcnt(7)"); qstep(1, qread_list(3, c, 3))
        if c < 6:
            arrive(c+1)
            qstep(2, [])
            spin(c+1)
            stamp(a, 3+c, pv=1)
            if c + 1 == 4:
                for k2 in range(4):
                    a(f"v_add_u32 v{XA+k2}, 0x10000, v{XA+k2}")
            qstep(3, qread_list(0, c+1, 0) + qread_list(1, c+1, 1))
            if c + 3 <= 6: qdma(c+3)
            if c + 4 <= 6: xdma(c+4)
            if c == 3:
                nonce_issue(a, 16); ops.append(("n", 0))
        else:
            a("s_waitcnt lgkmcnt(0)")
            lds_add(a, C_Q, 14, 15)
            qstep(2, []); qstep(3, [])
    stamp(a, 3)
    QP, KP, VP = 32, 40, 48
    SD = 112
    sHead, sQb, sKo, sVo, sPass, sPub = sJ, sMB, 6, 8, 9, 10
    a(f"""
    s_lshl_b32 s3, s{sJ}, 6
    s_lshl_b32 s4, s{sMB}, 2
    s_add_u32 s3, s3, s4
    s_add_u32 s3, s3, s{sW}
    s_lshl_b32 s6, s3, 12
    s_add_u32 s6, s6, {WS_KV}
    s_lshl_b32 s7, s3, 3
    s_add_u32 s7, s7, {FL_KV}
    s_mov_b32 s8, {f2u(QSCALE):#x}
    s_mov_b32 s9, {f2u(QSCALE):#x}
    s_mov_b32 s10, 0x07060302
    """)
    for p in range(8):
        a(f"v_cvt_pk_bf16_f32 v{KP+p}, v{AK+2*p}, v{AK+2*p+1}")
    a(f"""
    s_mov_b32 exec_lo, 0
    v_mov_b32 v{KP+6}, 0x3f803f80
    v_mov_b32 v{KP+7}, 0x3f80
    s_mov_b64 exec, -1
    buffer_store_dwordx4 {vr(KP,4)}, v7, {sr(SWS,4)}, s6 offen sc1
    buffer_store_dwordx4 {vr(KP+4,4)}, v7, {sr(SWS,4)}, s6 offen offset:1024 sc1
    """)
    for p in range(8):
        a(f"v_cvt_pk_bf16_f32 v{VP+p}, v{AV+2*p}, v{AV+2*p+1}")
    a(f"""
    s_mov_b32 exec_lo, 0xf0000000
    s_mov_b32 exec_hi, 0xf0000000
    """)
    for p in range(8):
        a(f"v_mov_b32 v{VP+p}, v31")
    a(f"""
    s_mov_b64 exec, -1
    buffer_store_dwordx4 {vr(VP,4)}, v7, {sr(SWS,4)}, s6 offen offset:2048 sc1
    buffer_store_dwordx4 {vr(VP+4,4)}, v7, {sr(SWS,4)}, s6 offen offset:3072 sc1
    """)
    stamp(a, 4)
    stamp(a, 1, pv=5)
    for p in range(16):
        a(f"v_mul_f32 v{AQ+p}, s8, v{AQ+p}")
    for p in range(8):
        a(f"v_cvt_pk_bf16_f32 v{QP+p}, v{AQ+2*p}, v{AQ+2*p+1}")
    a(f"""
    s_mov_b32 exec_lo, 0
    v_mov_b32 v{QP+6}, 0
    v_mov_b32 v{QP+7}, 0
    s_mov_b64 exec, -1
    s_lshl_b32 s3, s{sW}, 11
    s_add_u32 s3, s3, {QXB}
    v_add_u32 v13, s3, v7
    {MFMA} {vr(SD,16)}, {vr(KP,4)}, {vr(QP,4)}, 0
    {MFMA} {vr(SD,16)}, {vr(KP+4,4)}, {vr(QP+4,4)}, {vr(SD,16)}
    s_nop 12
    v_max3_f32 v14, v{SD}, v{SD+1}, v{SD+2}
    v_max3_f32 v15, v{SD+3}, v{SD+4}, v{SD+5}
    v_max3_f32 v14, v14, v{SD+6}, v{SD+7}
    v_max3_f32 v15, v15, v{SD+8}, v{SD+9}
    v_max3_f32 v14, v14, v{SD+10}, v{SD+11}
    v_max3_f32 v15, v15, v{SD+12}, v{SD+13}
    v_max3_f32 v14, v14, v{SD+14}, v{SD+15}
    v_max_f32 v14, v14, v15
    v_mov_b32 v15, v14
    s_nop 1
    v_permlane32_swap_b32 v14, v15
    v_max_f32 v14, v14, v15
    v_sub_f32 v14, 0, v14
    v_and_b32 v15, 0xffff0000, v14
    v_sub_f32 v15, v14, v15
    v_and_b32 v12, 0xffff0000, v15
    v_sub_f32 v12, v15, v12
    s_mov_b32 exec_lo, 0
    v_perm_b32 v{QP+6}, v15, v14, s10
    v_lshrrev_b32 v{QP+7}, 16, v12
    s_mov_b64 exec, -1
    """)
    stamp(a, 2, pv=5)
    nonce_get(a, 16)
    stamp(a, 3, pv=5)
    publish(a, 7, 16)
    stamp(a, 5)
    a(f"""
    ds_write_b128 v13, {vr(QP,4)}
    ds_write_b128 v13, {vr(QP+4,4)} offset:1024
    """)
    lds_add(a, C_QX, 14, 15)
    stamp(a, 4, pv=5)
    Q = 8
    O = 40
    SB = [104, 120]
    PB = [136, 144]
    KVB = [152 + 16*i for i in range(NB)]
    VG = 3
    assert 152 + 16*NB <= 248
    a(f"""
    s_lshl_b32 s3, s{sHead}, 6
    s_lshl_b32 s11, s{sW}, 4
    s_add_u32 s3, s3, s11
    s_lshl_b32 s3, s3, 12
    s_add_u32 s3, s3, {WS_KV}
    s_add_u32 s{SKV}, s34, s3
    s_addc_u32 s{SKV+1}, s35, 0
    s_mov_b32 s{SKV+2}, 65536
    s_mov_b32 s{SKV+3}, 0x00020000
    s_mov_b32 s{sPass}, 0
    s_mov_b32 s{sPub}, 0
    """)
    a(f"""
    s_lshl_b32 s11, s{sHead}, 9
    s_lshl_b32 s3, s{sQb}, 9
    s_sub_u32 s3, s3, s11
    s_add_u32 s3, s3, {8192 + 56*8 - 32*16}
    v_lshlrev_b32 v248, 4, v0
    v_add_u32 v249, s3, v248
    v_cmp_gt_u32 vcc, 32, v0
    s_add_u32 s7, s11, {FL_KV}
    s_nop 0
    v_cndmask_b32 v248, v249, v248, vcc
    """)
    zero_acc(O, 4, PB[1])
    if OPT.get("TB", 99) == 9:
        a(f"""
        s_lshl_b32 s3, s{sIdx}, 2
        s_add_u32 s3, s3, s{sW}
        s_mul_i32 s5, s3, {25*128}
        s_mul_i32 s4, s3, {98*128}
        buffer_load_dword v254, v28, {sr(SW2,4)}, s4 offen
        buffer_load_dword v254, v29, {sr(SW2,4)}, s4 offen
        buffer_load_dword v254, v30, {sr(SWO,4)}, s5 offen
        """)
    lds_wait(a, C_QX, 4, 250, 251)
    for i in range(4):
        a(f"""
        s_add_u32 s3, s{sW}, {1+i}
        s_and_b32 s3, s3, 3
        s_lshl_b32 s3, s3, 11
        v_add_u32 v1, s3, v7
        ds_read_b128 {vr(Q+8*i,4)}, v1 offset:{QXB}
        ds_read_b128 {vr(Q+8*i+4,4)}, v1 offset:{QXB+1024}
        """)
    stamp(a, 5, pv=5)
    a(f"""
    s_cmp_lg_u32 s{sW}, 0
    s_cbranch_scc1 k_a_w
    """)
    poll4(a, 34, 248, 7, 252, slp=OPT.get('PS1', 3))
    lds_add(a, C_KV, 250, 251)
    a("s_branch k_a_go")
    a.lab("k_a_w")
    lds_wait(a, C_KV, 1, 250, 251, sleep=OPT.get('PS3', 1))
    a.lab("k_a_go")
    stamp(a, 6, pv=5)
    stamp(a, 6)
    def ldK(b):
        a(f"buffer_load_dwordx4 {vr(KVB[b],4)}, v7, {sr(SKV,4)}, s{sKo} offen sc1")
        a(f"buffer_load_dwordx4 {vr(KVB[b]+4,4)}, v7, {sr(SKV,4)}, s{sKo} offen offset:1024 sc1")
        a(f"s_add_u32 s{sKo}, s{sKo}, 4096")
    def ldV(b):
        a(f"buffer_load_dwordx4 {vr(KVB[b]+8,4)}, v7, {sr(SKV,4)}, s{sVo} offen offset:2048 sc1")
        a(f"buffer_load_dwordx4 {vr(KVB[b]+12,4)}, v7, {sr(SKV,4)}, s{sVo} offen offset:3072 sc1")
        a(f"s_add_u32 s{sVo}, s{sVo}, 4096")
    a(f"""
    s_lshl_b32 s3, s{sQb}, 9
    s_lshl_b32 s11, s{sW}, 7
    s_add_u32 s3, s3, s11
    s_add_u32 s3, s3, {WS_G}
    v_lshlrev_b32 v4, 2, v2
    buffer_load_dword v{VG}, v4, {sr(SWS,4)}, s3 offen sc1
    s_branch k_att_first
    """)
    a.lab("k_att_start")
    zero_acc(O, 4, PB[1])
    a.lab("k_att_first")
    a(f"s_mov_b32 s{sKo}, 0")
    a(f"s_mov_b32 s{sVo}, 0")
    aops = []
    def issue(kind, t):
        (ldK if kind == "K" else ldV)(t % NB); aops.extend([(kind, t)]*2)
    def need(kind, t):
        last = max(k for k, o in enumerate(aops) if o == (kind, t))
        return len(aops) - 1 - last
    UNR = OPT.get("UNR", 0)
    order = []
    for t in range(16 + (0 if UNR else NB)): order += [("K", t), ("V", t)]
    npro = 3 if UNR else 2*NB-1
    if not UNR:
        for i in range(8): a(f"v_mov_b32 v{KVB[NB-1]+8+i}, 0")
        for i in range(8): a(f"v_mov_b32 v{PB[1]+i}, 0")
    for _ in range(npro): issue(*order.pop(0))
    if OPT["TOUCH"]:
        a(f"""
        s_and_b32 s3, s{sQb}, 7
        s_lshl_b32 s3, s3, 7
        v_lshlrev_b32 v4, 10, v0
        buffer_load_dword v6, v4, {sr(SKV,4)}, s3 offen sc1
        """)
        aops.append(("T", 0))
    a(f"""
    s_lshl_b32 s3, s{sW}, 2
    s_add_u32 s3, s3, {C_A3}
    v_mov_b32 v248, s3
    v_mov_b32 v249, 1
    s_mov_b32 s{sC}, 0
    """)
    def oc_base(dst, sreg):
        a(f"""
        s_mul_i32 s{dst}, s{sreg}, 12288
        s_cmp_eq_u32 s{sreg}, 3
        s_cselect_b32 s{dst}, {OC3}, s{dst}
        """)
    for i in range(3):
        a(f"""
        s_add_u32 s3, s{sW}, {1+i}
        s_and_b32 s3, s3, 3
        """)
        oc_base(11, 3)
        a(f"v_add_u32 v{250+i}, s11, v7")
    a("ds_write_b32 v248, v249")
    a("v_mov_b32 v249, 2")
    a(f"s_waitcnt vmcnt({need('K', 0)}) lgkmcnt(0)")
    stamp(a, 7)
    stamp(a, 1, pv=6); stamp(a, 2, True, pv=6)
    if OPT.get("HPROF"): stamp(a, 1, True)
    a(f"{MFMA} {vr(SB[0],16)}, {vr(KVB[0],4)}, {vr(Q,4)}, 0")
    a(f"{MFMA} {vr(SB[0],16)}, {vr(KVB[0]+4,4)}, {vr(Q+4,4)}, {vr(SB[0],16)}")
    a(f"s_setprio {OPT['PRIO_A']}")
    a("s_nop 13")
    def free_at(kind, t):
        if t < NB: return -1
        return 4*(t-NB)+2 if kind == "K" else 4*(t-NB)+4
    ocw = []
    NU = 64 if UNR else 4*NB
    if not UNR: a.lab("k_aloop")
    for u in range(NU):
        t, qi = u // 4, u % 4
        un = u + 1; tn, qn = un // 4, un % 4
        up = u - 1; tp, qp = up // 4, up % 4
        sc, sn = SB[u % 2], SB[(u+1) % 2]
        pc, pp = PB[u % 2], PB[(u-1) % 2]
        def ex(r): a(f"v_exp_f32 v{sc+r}, v{sc+r}")
        def cv(p): a(f"v_cvt_pk_bf16_f32 v{pc+p}, v{sc+2*p}, v{sc+2*p+1}")
        def w_():
            if ocw: a(ocw.pop(0))
        def wt(kind, tt):
            a(f"s_waitcnt vmcnt({need(kind, tt) if UNR else 4*(NB-1)})")
        if un < 64:
            if qi == 3: wt('K', tn)
            a(f"{MFMA} {vr(sn,16)}, {vr(KVB[tn%NB],4)}, {vr(Q+8*qn,4)}, 0")
        ex(0); ex(1); w_(); ex(2); ex(3)
        if un < 64:
            a(f"{MFMA} {vr(sn,16)}, {vr(KVB[tn%NB]+4,4)}, {vr(Q+8*qn+4,4)}, {vr(sn,16)}")
        if not UNR and qi == 2: issue(*order.pop(0))
        ex(4); ex(5); w_(); ex(6); ex(7)
        cv(0); cv(1)
        if up >= 0 or not UNR:
            if qi == 1: wt('V', t)
            a(f"{MFMA} {vr(O+16*qp,16)}, {vr(KVB[tp%NB]+8,4)}, {vr(pp,4)}, {vr(O+16*qp,16)}")
        ex(8); ex(9); w_(); ex(10); ex(11)
        cv(2); cv(3)
        if up >= 0 or not UNR:
            a(f"{MFMA} {vr(O+16*qp,16)}, {vr(KVB[tp%NB]+12,4)}, {vr(pp+4,4)}, {vr(O+16*qp,16)}")
        if UNR:
            if order and free_at(*order[0]) <= u: issue(*order.pop(0))
        elif qi == 0: issue(*order.pop(0))
        ex(12); ex(13); w_(); ex(14); ex(15)
        cv(4); cv(5); cv(6); cv(7)
        if UNR:
            if u == OPT.get("AS1", 13):
                a("ds_write_b32 v248, v249")
                a("v_mov_b32 v249, 3")
            if u == OPT.get("ASU", 47):
                a("ds_write_b32 v248, v249")
            if u in (15, 31, 47):
                stamp(a, 3+2*(u//16), pv=6); stamp(a, 4+2*(u//16), True, pv=6)
            if u == 56:
                lds_wait(a, C_F1, 4, 4, 5)
            if u in (61, 62):
                i = u - 61
                ocw += [f"ds_write_b128 v{250+i}, {vr(O+16*i+4*r4,4)} offset:{4096*i+1024*r4}" for r4 in (0, 1, 2, 3)]
                ocw.insert(len(ocw)-4, "s_nop 0")
    if not UNR:
        a(f"""
        s_add_u32 s{sC}, s{sC}, 1
        ds_write_b32 v248, v249
        v_add_u32 v249, 1, v249
        s_cmp_lt_u32 s{sC}, {16//NB}
        s_cbranch_scc1 k_aloop
        """)
        for i in range(2):
            ocw += [f"ds_write_b128 v{250+i}, {vr(O+16*i+4*r4,4)} offset:{4096*i+1024*r4}" for r4 in (0, 1, 2, 3)]
    stamp(a, 8)
    stamp(a, 9, pv=6); stamp(a, 10, True, pv=6)
    if OPT.get("HPROF"): stamp(a, 10, True)
    stamp(a, 1, pv=7)
    a("s_setprio 3")
    a(f"{MFMA} {vr(O+48,16)}, {vr(KVB[15%NB]+8,4)}, {vr(PB[1],4)}, {vr(O+48,16)}")
    a(f"{MFMA} {vr(O+48,16)}, {vr(KVB[15%NB]+12,4)}, {vr(PB[1]+4,4)}, {vr(O+48,16)}")
    if not UNR: lds_wait(a, C_F1, 4, 4, 5)
    stamp(a, 2, pv=7)
    for x in ocw: a(x)
    for r4 in range(4):
        a(f"ds_write_b128 v252, {vr(O+32+4*r4,4)} offset:{8192+1024*r4}")
    lds_add(a, C_OC, 5, 6)
    stamp(a, 3, pv=7)
    oc_base(11, sW)
    a(f"""
    v_add_u32 v1, s11, v7
    s_lshl_b32 s7, s{sPass}, 2
    s_add_u32 s7, s7, 4
    """)
    lds_wait(a, C_OC, "s7", 4, 5)
    stamp(a, 4, pv=7)
    R = 104
    for i in range(12):
        a(f"ds_read_b128 {vr(R+4*i,4)}, v1 offset:{1024*i}")
    OK_ = O + 48
    for i in range(3):
        a(f"s_waitcnt lgkmcnt({8-4*i})")
        for p in range(16):
            a(f"v_add_f32 v{OK_+p}, v{OK_+p}, v{R+16*i+p}")
    OP = R
    stamp(a, 5, pv=7)
    a(f"""
    v_mov_b32 v4, v{OK_+12}
    v_mov_b32 v5, v{OK_+12}
    s_lshl_b32 s3, s{sQb}, 2
    s_add_u32 s3, s3, s{sW}
    v_permlane32_swap_b32 v4, v5
    s_lshl_b32 s3, s3, 4
    s_add_u32 s3, s3, s{sHead}
    v_rcp_f32 v4, v5
    s_lshl_b32 s7, s3, 11
    s_add_u32 s7, s7, {WS_OF}
    v_mul_f32 v4, v4, v{VG}
    s_lshl_b32 s11, s3, 3
    s_add_u32 s11, s11, {FL_O}
    """)
    for p in range(16):
        a(f"v_mul_f32 v{OK_+p}, v4, v{OK_+p}")
    for p in range(8):
        a(f"v_cvt_pk_bf16_f32 v{OP+p}, v{OK_+2*p}, v{OK_+2*p+1}")
    a(f"""
    s_cmp_lg_u32 s{sPub}, 0
    s_cbranch_scc1 k_a_done
    s_mov_b32 exec_lo, 0
    v_mov_b32 v{OP+6}, 0
    v_mov_b32 v{OP+7}, 0
    s_mov_b64 exec, -1
    buffer_store_dwordx4 {vr(OP,4)}, v7, {sr(SWS,4)}, s7 offen sc1
    buffer_store_dwordx4 {vr(OP+4,4)}, v7, {sr(SWS,4)}, s7 offen offset:1024 sc1
    """)
    stamp(a, 6, pv=7)
    for p in range(2, 16):
        a(f"v_add_f32 v{OK_+(p&1)}, v{OK_+(p&1)}, v{OK_+p}")
    a(f"""
    v_add_f32 v{OK_}, v{OK_}, v{OK_+1}
    v_mul_f32 v{OK_}, 0, v{OK_}
    v_add_f32 v5, v5, v{OK_}
    v_mov_b32 v6, {f2u(2.0**40):#x}
    v_cmp_nlt_f32 vcc, v5, v6
    s_cmp_lg_u32 s{sPass}, 0
    s_cbranch_scc1 k_a_pub
    s_cbranch_vccz k_a_pub
    v_mov_b32 v4, {C_BAD}
    v_mov_b32 v6, 1
    ds_write_b32 v4, v6
    s_branch k_a_sync
    """)
    a.lab("k_a_pub")
    stamp(a, 7, pv=7)
    a("s_waitcnt vmcnt(0)")
    stamp(a, 8, pv=7)
    publish(a, 11, 4)
    a(f"s_mov_b32 s{sPub}, 1")
    stamp(a, 9)
    a.lab("k_a_sync")
    a(f"""
    s_cmp_lg_u32 s{sPass}, 0
    s_cbranch_scc1 k_a_done
    """)
    lds_add(a, C_A2, 4, 5)
    lds_wait(a, C_A2, 4, 4, 5)
    a(f"""
    v_mov_b32 v4, {C_BAD}
    ds_read_b32 v6, v4
    s_waitcnt lgkmcnt(0)
    v_readfirstlane_b32 s3, v6
    s_cmp_lg_u32 s3, 0
    s_cbranch_scc1 k_fallback
    """)
    a.lab("k_a_done")
    flush(a, 0)
    a("s_endpgm")
    a.lab("k_fallback")
    MX = O
    a(f"""
    s_mov_b32 s{sPass}, 1
    s_waitcnt vmcnt(0)
    s_mov_b32 exec_lo, 0
    """)
    for i in range(4):
        a(f"v_mov_b32 v{Q+8*i+6}, 0")
        a(f"v_mov_b32 v{Q+8*i+7}, 0")
    a("s_mov_b64 exec, -1")
    for i in range(4):
        a(f"v_mov_b32 v{MX+i}, 0xff800000")
    a(f"s_mov_b32 s{sKo}, 0")
    a.lab("k_fbloop")
    ldK(0)
    a("s_waitcnt vmcnt(0)")
    for i in range(4):
        sb = SB[0]
        a(f"{MFMA} {vr(sb,16)}, {vr(KVB[0],4)}, {vr(Q+8*i,4)}, 0")
        a(f"{MFMA} {vr(sb,16)}, {vr(KVB[0]+4,4)}, {vr(Q+8*i+4,4)}, {vr(sb,16)}")
        a("s_nop 15")
        for r in range(0, 16, 2):
            a(f"v_max3_f32 v{MX+i}, v{MX+i}, v{sb+r}, v{sb+r+1}")
    a(f"""
    s_cmp_lt_u32 s{sKo}, 65536
    s_cbranch_scc1 k_fbloop
    """)
    for i in range(4):
        a(f"""
        s_add_u32 s3, s{sW}, {1+i}
        s_and_b32 s3, s3, 3
        s_lshl_b32 s3, s3, 10
        s_lshl_b32 s11, s{sW}, 8
        s_add_u32 s3, s3, s11
        v_lshl_add_u32 v4, v0, 2, s3
        ds_write_b32 v4, v{MX+i}
        """)
    lds_add(a, C_FB1, 4, 5)
    lds_wait(a, C_FB1, 4, 4, 5)
    for i in range(4):
        a(f"""
        s_add_u32 s3, s{sW}, {1+i}
        s_and_b32 s3, s3, 3
        s_lshl_b32 s3, s3, 10
        v_lshl_add_u32 v4, v2, 2, s3
        """)
        for k in range(8):
            a(f"ds_read_b32 v{MX+8+k}, v4 offset:{128*k}")
        a("s_waitcnt lgkmcnt(0)")
        a(f"""
        v_max3_f32 v5, v{MX+8}, v{MX+9}, v{MX+10}
        v_max3_f32 v5, v5, v{MX+11}, v{MX+12}
        v_max3_f32 v5, v5, v{MX+13}, v{MX+14}
        v_max_f32 v5, v5, v{MX+15}
        v_sub_f32 v5, 0, v5
        v_and_b32 v6, 0xffff0000, v5
        v_sub_f32 v6, v5, v6
        v_and_b32 v4, 0xffff0000, v6
        v_sub_f32 v4, v6, v4
        s_mov_b32 s3, 0x07060302
        s_mov_b32 exec_lo, 0
        v_perm_b32 v{Q+8*i+6}, v6, v5, s3
        v_lshrrev_b32 v{Q+8*i+7}, 16, v4
        s_mov_b64 exec, -1
        """)
    lds_add(a, C_FB2, 4, 5)
    lds_wait(a, C_FB2, 4, 4, 5)
    a("s_branch k_att_start")

    a.lab("k_F")
    GF = 112; AG = 48; XG = 64
    AF = 48
    W1R = 112
    XF = [16, 32, 224]
    WFr = [240, 244]
    TR0 = 12; TW0 = 13
    a(f"s_setprio {OPT['PRIO_F']}")
    srd(a, SDBG, 32, 256)
    a(f"""
    v_lshlrev_b32 v1, 2, v0
    v_add_u32 v1, {LCNT}, v1
    v_mov_b32 v15, 0
    ds_write_b32 v1, v15
    s_or_b32 s3, s2, s{sW}
    s_cmp_lg_u32 s3, 0
    s_cbranch_scc1 k_F_nonce_done
    s_memrealtime s[4:5]
    s_waitcnt lgkmcnt(0)
    s_or_b32 s4, s4, 1
    v_mov_b32 v18, s4
    v_mov_b32 v19, s5
    s_mov_b64 exec, 1
    buffer_store_dwordx2 v[18:19], v15, {sr(SDBG,4)}, 0 offen sc1
    s_mov_b64 exec, -1
    k_F_nonce_done:
    """)
    srd(a, SWS, 34, WS_SIZE)
    srd(a, SW1, 24, D*F*2)
    if OPT.get("CPF", 0):
        a(f"""
        s_getpc_b64 s[4:5]
        k_pc0:
        s_sub_u32 s60, s4, k_pc0-{NAME}
        s_subb_u32 s61, s5, 0
        s_mov_b32 s62, k_code_end-{NAME}
        s_mov_b32 s63, 0x00020000
        s_and_b32 s3, s{sIdx}, 1
        s_lshl_b32 s3, s3, 2
        s_add_u32 s3, s3, s{sW}
        s_lshl_b32 s3, s3, 13
        v_lshlrev_b32 v14, 7, v0
        buffer_load_dword v250, v14, s[60:63], s3 offen
        """)
    xa_setup()
    a(f"""
    s_cmp_ge_u32 s{sJ}, 14
    s_cbranch_scc1 k_gate
    v_lshrrev_b32 v14, 2, v0
    v_mul_u32_u24 v14, 3584, v14
    v_lshl_add_u32 v14, v6, 4, v14
    s_lshl_b32 s9, s{sJ}, 2
    s_add_u32 s9, s9, s{sW}
    s_lshl_b32 s10, s9, 6
    s_mul_i32 s3, s11, {64*3584}
    s_add_u32 s10, s10, s3
    s_sub_u32 s10, s10, {16*3584}
    """)
    if OPT.get("W1T", 1):
        a(f"""
        s_and_b32 s4, s{sMB}, 7
        s_mul_i32 s4, s4, 56
        s_mul_i32 s5, s{sW}, 14
        s_add_u32 s4, s4, s5
        s_mul_i32 s4, s4, 3584
        s_lshl_b32 s5, s{sJ}, 8
        s_add_u32 s4, s4, s5
        v_lshrrev_b32 v13, 1, v0
        v_mul_u32_u24 v13, 3584, v13
        v_and_b32 v15, 1, v0
        v_lshl_add_u32 v13, v15, 7, v13
        v_cmp_gt_u32 vcc, 28, v0
        v_bfrev_b32 v15, 1
        s_nop 0
        v_cndmask_b32 v13, v15, v13, vcc
        buffer_load_dword v251, v13, {sr(SW1,4)}, s4 offen
        """)
    def w1load(i):
        a(f"s_add_u32 s10, s10, {16*3584}")
        a(f"buffer_load_dwordx4 {vr(W1R+4*i,4)}, v14, {sr(SW1,4)}, s10 offen")
        if i % 4 == 3:
            a(f"""
            s_add_u32 s11, s11, 1
            s_cmp_eq_u32 s11, 7
            s_cselect_b32 s3, {448*3584}, 0
            s_sub_u32 s10, s10, s3
            """)
    for kk in range(4):
        a(f"v_add_u32 v{XA+kk}, {XBASE}, v{XA+kk}")
    a(f"""
    v_lshl_add_u32 v15, v3, 3, v4
    v_lshlrev_b32 v15, 6, v15
    v_lshl_add_u32 v15, v5, 5, v15
    v_lshl_add_u32 v15, v6, 3, v15
    s_lshl_b32 s4, s{sW}, 11
    s_add_u32 s4, s4, {W1E}
    v_add_u32 v{TR0}, s4, v15
    v_add_u32 v{TW0}, s4, v7
    """)
    zero_acc(AF, 4, 16)
    W1A = OPT.get("W1A", 28)
    LAG = OPT.get("LAG", 6)
    W1S = OPT.get("W1S", 1)
    if W1S == 0:
        for i in range(W1A): w1load(i)
    a("s_waitcnt lgkmcnt(0)")
    a("s_barrier")
    if W1S:
        lds_wait(a, C_S, 4*W1S, 1, 15, sleep=1)
        for i in range(W1A): w1load(i)
    stamp(a, 1)
    w1n = [W1A]
    def f_stage_l(i):
        return [f"s_waitcnt vmcnt({w1n[0]-1-i})", f"ds_write_b128 v{TW0}, {vr(W1R+4*i,4)} offset:{1024*(i%2)}"]
    def f_xreads_l(i):
        b = XF[i % 3]
        c, kk = i // 4, i % 4
        return [f"ds_read_b128 {vr(b+4*mt,4)}, v{XA+kk} offset:{(c%4)*16384+4096*mt}" for mt in range(4)]
    def f_wreads_l(i):
        w = WFr[i % 2]
        return [f"ds_read_b64_tr_b16 {vr(w+2*u,2)}, v{TR0} offset:{1024*(i%2)+256*u}" for u in range(2)]
    def f_mfma_l(i):
        b = XF[i % 3]; w = WFr[i % 2]
        return [f"{MFMA} {vr(AF+16*mt,16)}, {vr(w,4)}, {vr(b+4*mt,4)}, {vr(AF+16*mt,16)}" for mt in range(4)]
    for x in f_stage_l(0) + f_wreads_l(0) + f_stage_l(1): a(x)
    lds_wait(a, C_S, 4*min(7, 1+LAG), 1, 15, sleep=1)
    stamp(a, 2)
    for x in f_xreads_l(0) + f_xreads_l(1): a(x)
    for t in range(28):
        n = (4 if t == 0 else 5) if t + 1 < 28 else 0
        a(f"s_waitcnt lgkmcnt({n})")
        M = f_mfma_l(t)
        Wr = f_wreads_l(t+1) if t + 1 < 28 else []
        R = f_xreads_l(t+2) if t + 2 < 28 else []
        a(M[0])
        for x in Wr: a(x)
        W1G = OPT.get("W1G", 8)
        if t == W1G and w1n[0] < 28 and W1G > 0:
            lds_wait(a, C_QX, 4, 1, 15)
        if w1n[0] < 28 and t >= W1G:
            w1load(w1n[0]); w1n[0] += 1
            if W1G > 0 and w1n[0] < 28:
                w1load(w1n[0]); w1n[0] += 1
        a(M[1])
        if (t + 2) % 4 == 0 and t + 2 < 28 and (t+2)//4+LAG < 7:
            lds_wait(a, C_S, 4*min(7, (t+2)//4+1+LAG), 1, 15, sleep=1)
            stamp(a, 2+(t+2)//4, pv=2)
        if t + 2 == 16:
            for k2 in range(4):
                a(f"v_add_u32 v{XA+k2}, 0x10000, v{XA+k2}")
        for x in R[0:2]: a(x)
        a(M[2])
        for x in R[2:4]: a(x)
        a(M[3])
        if t + 2 < 28:
            for x in f_stage_l(t+2): a(x)
    stamp(a, 3)
    stamp(a, 6, pv=2)
    stamp(a, 5, pv=3); stamp(a, 6, True, pv=3)
    lds_wait(a, C_Q, 4, 12, 13, sleep=1)
    lds_add(a, C_F1, 12, 13)
    nonce_issue(a, 232)
    a(f"""
    s_mov_b32 s4, {f2u(-LOG2E):#x}
    s_mov_b32 s5, {f2u(-LOG2E):#x}
    s_mov_b32 s6, 1.0
    s_mov_b32 s7, 1.0
    s_lshl_b32 s3, s{sMB}, 2
    s_mul_i32 s3, s3, 56
    s_add_u32 s3, s3, s9
    s_lshl_b32 s3, s3, 11
    s_add_u32 s8, s3, {WS_HF}
    s_lshl_b32 s3, s{sMB}, 9
    s_lshl_b32 s10, s9, 3
    s_add_u32 s10, s10, s3
    s_add_u32 s10, s10, {FL_H}
    """)
    T = 16
    for mt in range(4):
        acc = AF + 16*mt
        HP = 112 + 8*mt
        for g in range(2):
            prs = [4*g+i for i in range(4)]
            if OPT.get("PK", 0):
                for i, p in enumerate(prs):
                    a(f"v_pk_mul_f32 {vr(T+2*i,2)}, {vr(acc+2*p,2)}, s[4:5]")
                for i in range(8):
                    a(f"v_exp_f32 v{T+i}, v{T+i}")
                for i in range(4):
                    a(f"v_pk_add_f32 {vr(T+2*i,2)}, {vr(T+2*i,2)}, s[6:7]")
                for i in range(8):
                    a(f"v_rcp_f32 v{T+i}, v{T+i}")
                for i, p in enumerate(prs):
                    a(f"v_pk_mul_f32 {vr(T+2*i,2)}, {vr(acc+2*p,2)}, {vr(T+2*i,2)}")
            else:
                for i in range(8):
                    a(f"v_mul_f32 v{T+i}, s4, v{acc+8*g+i}")
                for i in range(8):
                    a(f"v_exp_f32 v{T+i}, v{T+i}")
                for i in range(8):
                    a(f"v_add_f32 v{T+i}, 1.0, v{T+i}")
                for i in range(8):
                    a(f"v_rcp_f32 v{T+i}, v{T+i}")
                for i in range(8):
                    a(f"v_mul_f32 v{T+i}, v{acc+8*g+i}, v{T+i}")
            for i, p in enumerate(prs):
                a(f"v_cvt_pk_bf16_f32 v{HP+p}, v{T+2*i}, v{T+2*i+1}")
            if not OPT.get("HD", 1):
                a(f"buffer_store_dwordx4 {vr(HP+4*g,4)}, v7, {sr(SWS,4)}, s8 offen offset:{g*1024} sc1")
        if not OPT.get("HD", 1):
            a(f"s_add_u32 s8, s8, {56*2048}")
    if OPT.get("HD", 1):
        stamp(a, 4)
        a(f"""
        s_lshl_b32 s3, s{sW}, 2
        s_add_u32 s3, s3, {C_A3}
        """)
        lds_wait(a, "s3", OPT.get("HG", 1), 16, 17, sleep=OPT.get("FSL", 4))
        for mt in range(4):
            for g in range(2):
                a(f"buffer_store_dwordx4 {vr(112+8*mt+4*g,4)}, v7, {sr(SWS,4)}, s8 offen offset:{g*1024} sc1")
            a(f"s_add_u32 s8, s8, {56*2048}")
            a("s_waitcnt vmcnt(0)")
    if not OPT.get("HD", 1): stamp(a, 4)
    stamp(a, 7, pv=2)
    stamp(a, 7, pv=3); stamp(a, 8, True, pv=3)
    nonce_get(a, 232)
    publish(a, 10, 16)
    a("s_branch k_ffn2")
    a.lab("k_gate")
    a(f"""
    s_cmp_eq_u32 s{sJ}, 15
    s_cbranch_scc1 k_f15
    v_lshlrev_b32 v14, 4, v3
    """)
    srd(a, SG, 28, D*2)
    for c in range(7):
        a("s_lshl_b32 s10, s11, 7")
        for kk in range(4):
            a(f"buffer_load_dwordx4 {vr(GF+4*(4*c+kk),4)}, v14, {sr(SG,4)}, s10 offen offset:{kk*32}")
        a("""
        s_add_u32 s11, s11, 1
        s_cmp_eq_u32 s11, 7
        s_cselect_b32 s11, 0, s11
        """)
    a(f"""
    s_lshl_b32 s3, s{sW}, 12
    s_add_u32 s3, s3, {XBASE}
    """)
    for kk in range(4):
        a(f"v_add_u32 v{XA+kk}, s3, v{XA+kk}")
    zero_acc(AG, 1, 16)
    a("s_waitcnt lgkmcnt(0)")
    a("s_barrier")
    a("s_waitcnt vmcnt(0)")
    nonce_issue(a, 232)
    for c in range(7):
        lds_wait(a, C_S, 4*(c+1), 1, 15, sleep=1)
        for kk in range(4):
            a(f"ds_read_b128 {vr(XG+4*kk,4)}, v{XA+kk}")
            a(f"v_add_u32 v{XA+kk}, 0x4000, v{XA+kk}")
        for kk in range(4):
            a(f"s_waitcnt lgkmcnt({3-kk})")
            a(f"{MFMA} {vr(AG,16)}, {vr(GF+4*(4*c+kk),4)}, {vr(XG+4*kk,4)}, {vr(AG,16)}")
    a(f"""
    s_lshl_b32 s3, s{sMB}, 9
    s_lshl_b32 s4, s{sW}, 7
    s_add_u32 s4, s3, s4
    s_add_u32 s4, s4, {WS_G}
    s_lshl_b32 s10, s{sW}, 3
    s_add_u32 s10, s10, s3
    s_add_u32 s10, s10, {FL_H + 56*8}
    v_lshlrev_b32 v13, 2, v2
    s_nop 7
    v_mul_f32 v14, {f2u(-LOG2E):#x}, v{AG}
    v_exp_f32 v14, v14
    s_nop 0
    v_add_f32 v14, 1.0, v14
    v_rcp_f32 v14, v14
    s_nop 0
    buffer_store_dword v14, v13, {sr(SWS,4)}, s4 offen sc1
    """)
    nonce_get(a, 232)
    publish(a, 10, 16)
    lds_wait(a, C_Q, 4, 1, 15, sleep=1)
    lds_add(a, C_F1, 12, 13)
    a("s_branch k_ffn2")
    a.lab("k_f15")
    a("s_waitcnt lgkmcnt(0)")
    a("s_barrier")
    lds_wait(a, C_Q, 4, 12, 13, sleep=1)
    lds_add(a, C_F1, 12, 13)
    nonce_issue(a, 232)
    nonce_get(a, 232)
    a.lab("k_ffn2")
    stamp(a, 5)
    ACC = 16; WOF = 176; OFR = 80
    FD = OPT.get("FD", 3)
    HBr = [112 + 16*i for i in range(FD)]
    WF2 = [80, 96]
    VD = 8; TA = 14
    sRb, sCb, sM0, sWo, sHo, sHo1, sT3 = 4, 5, 6, 7, 8, 9, 11
    srd(a, SW2, 26, F*D*2)
    srd(a, SWO, 20, D*D*2)
    if OPT.get("FT", 1):
        a(f"""
        s_lshl_b32 s3, s{sIdx}, 2
        s_add_u32 s3, s3, s{sW}
        s_mul_i32 s5, s3, {25*128}
        s_mul_i32 s4, s3, {98*128}
        v_lshlrev_b32 v28, 7, v0
        v_add_u32 v29, 8192, v28
        v_cmp_gt_u32 vcc, 34, v0
        v_bfrev_b32 v15, 1
        v_mov_b32 v30, v28
        v_cndmask_b32 v29, v15, v29, vcc
        v_cmp_gt_u32 vcc, 25, v0
        s_nop 1
        v_cndmask_b32 v30, v15, v30, vcc
        """)
        a(f"""
        s_lshl_b32 s10, s{sW}, 2
        s_add_u32 s10, s10, {C_A3}
        """)
        lds_wait(a, "s10", OPT.get("TG", 2), 80, 81, sleep=OPT.get("FSL", 4))
        a(f"""
        buffer_load_dword v240, v28, {sr(SW2,4)}, s4 offen
        s_waitcnt vmcnt(0)
        buffer_load_dword v241, v29, {sr(SW2,4)}, s4 offen
        buffer_load_dword v242, v30, {sr(SWO,4)}, s5 offen
        s_waitcnt vmcnt(0)
        """)
    a(f"""
    s_cmp_ge_u32 s{sIdx}, {0 if OPT.get('NOF2') else 28}
    s_cbranch_scc1 k_f_done
    s_mul_i32 s3, s{sIdx}, 37
    s_lshr_b32 s3, s3, 8
    s_mul_i32 s{sT}, s3, 7
    s_sub_u32 s{sCb}, s{sIdx}, s{sT}
    s_lshl_b32 s{sRb}, s{sX}, 2
    s_add_u32 s{sRb}, s{sRb}, s3
    """)
    srd(a, SOUT, 30, S*D*2)
    a(f"""
    v_lshrrev_b32 v1, 3, v0
    v_mul_u32_u24 v1, 896, v1
    v_bfe_u32 v12, v0, 2, 1
    v_xor_b32 v12, v12, v5
    v_lshl_add_u32 v1, v12, 6, v1
    v_lshl_add_u32 v{VD}, v6, 4, v1
    v_add_u32 v{VD+1}, 6144, v{VD}
    v_add_u32 v{VD+2}, {2*6144}, v{VD}
    v_add_u32 v{VD+3}, {3*6144}, v{VD}
    s_mul_i32 s{sM0}, s{sW}, {RING}
    s_add_u32 s{sM0}, s{sM0}, {RING0}
    v_lshl_add_u32 v1, v3, 2, v4
    v_lshlrev_b32 v1, 7, v1
    v_lshl_add_u32 v1, v5, 5, v1
    v_lshl_add_u32 v1, v6, 3, v1
    v_add_u32 v1, s{sM0}, v1
    v_bfe_u32 v13, v0, 3, 1
    v_lshl_add_u32 v{TA}, v13, 6, v1
    v_xor_b32 v13, 1, v13
    v_lshl_add_u32 v{TA+1}, v13, 6, v1
    s_mul_i32 s{sWo}, s{sW}, {448*896}
    s_lshl_b32 s3, s{sCb}, 7
    s_add_u32 s{sWo}, s{sWo}, s3
    s_mul_i32 s3, s{sRb}, 112
    s_mul_i32 s{sT}, s{sW}, 14
    s_add_u32 s3, s3, s{sT}
    s_lshl_b32 s3, s3, 11
    s_add_u32 s{sHo}, s3, {WS_HF}
    s_add_u32 s{sHo1}, s{sHo}, {56*2048}
    s_mov_b32 s{sT3}, s{sM0}
    """)
    a(f"""
    s_and_b32 s3, s{sRb}, 1
    s_lshl_b32 s3, s3, 4
    v_lshlrev_b32 v1, 4, v0
    v_add_u32 v13, s3, v1
    v_cmp_gt_u32 vcc, 28, v0
    s_lshr_b32 s3, s{sRb}, 1
    s_lshl_b32 s3, s3, 9
    v_cndmask_b32 v1, v13, v1, vcc
    s_add_u32 s10, s3, {FL_H}
    v_mul_u32_u24 v4, 7, v0
    v_add_u32 v4, s{sCb}, v4
    v_cmp_le_u32 vcc, 224, v4
    v_lshlrev_b32 v4, 7, v4
    v_add_u32 v5, {56*2048 - 224*128}, v4
    v_lshlrev_b32 v6, 2, v2
    v_cndmask_b32 v4, v4, v5, vcc
    """)
    zero_acc(ACC, 4, 80)
    lds_wait(a, C_F1, 4, 80, 81, sleep=1)
    def wdma_l(i):
        L = [f"s_add_u32 m0, s{sM0}, {4096*(i % (FD+1))}\n s_nop 0\n buffer_load_dwordx4 v{VD}, {sr(SW2,4)}, s{sWo} offen lds"]
        for k in range(1, 4):
            L.append(f"buffer_load_dwordx4 v{VD+k}, {sr(SW2,4)}, s{sWo} offen offset:{1024*k} lds")
        L[-1] += f"\n s_add_u32 s{sWo}, s{sWo}, {32*896}"
        return L
    def hld_l(i):
        hb = HBr[i % FD]
        L = []
        for kk in range(2):
            for mi in range(2):
                L.append(f"buffer_load_dwordx4 {vr(hb+8*mi+4*kk,4)}, v7, {sr(SWS,4)}, s{sHo if mi == 0 else sHo1} offen offset:{2048*(i%2)+1024*kk} sc1")
        if i % 2 == 1:
            L[-1] += f"\n s_add_u32 s{sHo}, s{sHo}, 4096\n s_add_u32 s{sHo1}, s{sHo1}, 4096"
        return L
    def tread_list(dst, off):
        L = []
        for kk in range(2):
            for ni in range(2):
                for u in range(2):
                    L.append(f"ds_read_b64_tr_b16 {vr(dst(ni,kk)+2*u,2)}, v{TA+ni} offset:{off+(16*kk+8*u)*128}")
        return L
    def treads(dst, off):
        for x in tread_list(dst, off): a(x)
    a(f"""
    s_mul_i32 s15, s{sW}, {4*28*896}
    s_lshl_b32 s3, s{sCb}, 7
    s_add_u32 s15, s15, s3
    """)
    for hl in range(4):
        a(f"s_add_u32 m0, s{sM0}, {4096*hl}")
        a("s_nop 0")
        for i in range(4):
            a(f"buffer_load_dwordx4 v{VD+i}, {sr(SWO,4)}, s15 offen offset:{1024*i} lds")
        a(f"s_add_u32 s15, s15, {28*896}")
    for hl in range(4):
        a(f"s_waitcnt vmcnt({12-4*hl})")
        treads(lambda ni,kk: WOF+16*hl+8*kk+4*ni, 4096*hl)
        a("s_waitcnt lgkmcnt(4)")
    a("s_waitcnt lgkmcnt(0)")
    for i in range(FD):
        for x in wdma_l(i): a(x)
    a(f"""
    s_cmp_lg_u32 s{sW}, 0
    s_cbranch_scc1 k_f_w
    """)
    poll4(a, 29, 1, 10, 80)
    lds_add(a, C_H, 80, 81)
    a("s_branch k_f_go")
    a.lab("k_f_w")
    lds_wait(a, C_H, 1, 80, 81, sleep=2)
    a.lab("k_f_go")
    stamp(a, 6)
    a(f"s_setprio {OPT.get('PRIO_F2', 0)}")
    a(f"""
    s_lshl_b32 s3, s{sRb}, 8
    s_add_u32 s3, s3, {WS_G}
    """)
    ops = []
    for x in hld_l(0): a(x); ops.append(("h", 0))
    if OPT["TOUCH"]:
        a(f"buffer_load_dword v5, v4, {sr(SWS,4)}, s{sHo} offen sc1"); ops.append(("t", 0))
    for i in range(1, FD):
        for x in hld_l(i): a(x); ops.append(("h", i))
    a(f"buffer_load_dword v1, v6, {sr(SWS,4)}, s3 offen sc1"); ops.append(("g", 0))
    a(f"buffer_load_dword v13, v6, {sr(SWS,4)}, s3 offen offset:128 sc1"); ops.append(("g", 0))
    def newer(tag):
        idx = [k for k, o in enumerate(ops) if o == tag]
        return len(ops) - 1 - idx[-1] if idx else None
    treads(lambda ni,kk: WF2[0]+8*ni+4*kk, 0) if False else None
    if OPT.get("ASIG", 3) > 0:
        a(f"""
        s_lshl_b32 s10, s{sW}, 2
        s_add_u32 s10, s10, {C_A3}
        """)
        lds_wait(a, "s10", 3 if OPT.get("UNR", 0) else OPT.get("ASI", 3)+1, 240, 241, sleep=OPT.get("FSL", 4))
        stamp(a, 2, pv=0) if False else None
    a(f"s_waitcnt vmcnt({len(ops)})")
    treads(lambda ni,kk: WF2[0]+8*ni+4*kk, 0)
    for i in range(14):
        b = i % 2
        need = [newer(("h", i))]
        if i + 1 < 14 and newer(("w", i+1)) is not None: need.append(newer(("w", i+1)))
        a(f"s_waitcnt vmcnt({min(need)}) lgkmcnt(0)")
        rl = tread_list(lambda ni,kk: WF2[1-b]+8*ni+4*kk, 4096*((i+1) % (FD+1))) if i + 1 < 14 else []
        wl = wdma_l(i+FD) if i + FD < 14 else []
        hl_ = hld_l(i+FD) if i + FD < 14 else []
        m = 0
        for kk in range(2):
            for mi in range(2):
                for ni in range(2):
                    acc = ACC + 16*(2*mi+ni)
                    hb = HBr[i % FD]
                    a(f"{MFMA} {vr(acc,16)}, {vr(WF2[b]+8*ni+4*kk,4)}, {vr(hb+8*mi+4*kk,4)}, {vr(acc,16)}")
                    if rl and m < 4:
                        a(rl[2*m]); a(rl[2*m+1])
                    if wl and m < 4:
                        a(wl[m]); ops.append(("w", i+FD))
                    if hl_ and m in (4, 5):
                        a(hl_[m-4]); ops.append(("h", i+FD))
                    if hl_ and m == 7:
                        a(hl_[2]); a(hl_[3]); ops.append(("h", i+FD)); ops.append(("h", i+FD))
                    m += 1
    a("s_waitcnt vmcnt(0) lgkmcnt(0)")
    stamp(a, 7)
    a("s_setprio 2")
    a(f"""
    v_sub_f32 v4, 1.0, v1
    v_sub_f32 v6, 1.0, v13
    s_nop 7
    """)
    for mi in range(2):
        for r in range(32):
            a(f"v_mul_f32 v{ACC+32*mi+r}, v{4+2*mi}, v{ACC+32*mi+r}")
    a(f"""
    v_lshrrev_b32 v1, 2, v0
    v_lshlrev_b32 v1, 7, v1
    v_and_b32 v13, 3, v0
    v_lshl_add_u32 v1, v13, 3, v1
    s_lshl_b32 s3, s{sRb}, 8
    s_lshl_b32 s{sT}, s{sW}, 5
    s_add_u32 s3, s3, s{sT}
    s_add_u32 s{sT}, s3, {FL_O}
    s_lshl_b32 s3, s{sRb}, 5
    s_lshl_b32 s{sHo}, s{sW}, 2
    s_add_u32 s3, s3, s{sHo}
    s_lshl_b32 s3, s3, 11
    s_add_u32 s{sHo}, s3, {WS_OF}
    s_add_u32 s{sWo}, s{sHo}, 32768
    s_waitcnt vmcnt(0)
    """)
    stamp(a, 8)
    lds_wait(a, C_A2, OPT.get('PS4', 4), 8, 9, sleep=1)
    a("s_setprio 3")
    poll(a, 8, 1, sT, 8, slp=OPT.get('PS2', 3))
    stamp(a, 9)
    stamp(a, 1, pv=7)
    for hl in range(4):
        if hl == 2:
            a(f"s_add_u32 s{sHo}, s{sHo}, 4096")
            a(f"s_add_u32 s{sWo}, s{sWo}, 4096")
        for kk in range(2):
            for mi in range(2):
                so = sHo if mi == 0 else sWo
                a(f"buffer_load_dwordx4 {vr(OFR+16*hl+8*kk+4*mi,4)}, v7, {sr(SWS,4)}, s{so} offen offset:{2048*(hl&1)+1024*kk} sc1")
    n = 16
    for hl in range(4):
        for kk in range(2):
            n -= 2
            a(f"s_waitcnt vmcnt({n})")
            if n == 14: stamp(a, 2, pv=7)
            for mi in range(2):
                for ni in range(2):
                    acc = ACC + 16*(2*mi+ni)
                    a(f"{MFMA} {vr(acc,16)}, {vr(WOF+16*hl+8*kk+4*ni,4)}, {vr(OFR+16*hl+8*kk+4*mi,4)}, {vr(acc,16)}")
    stamp(a, 3, pv=7)
    a(f"""
    v_add_u32 v4, s{sT3}, v7
    s_lshl_b32 s3, s{sW}, 12
    s_add_u32 s3, s3, {RING0}
    v_add_u32 v5, s3, v7
    s_nop 7
    """)
    RR = 80
    for wv in range(4):
        a(f"s_cmp_lg_u32 s{sW}, {wv}")
        a(f"s_cbranch_scc1 k_red{wv}_skip")
        for t in range(4):
            if t == wv: continue
            for r4 in range(4):
                a(f"ds_write_b128 v4, {vr(ACC+16*t+4*r4,4)} offset:{4096*t+1024*r4}")
        for r in range(16):
            a(f"v_mov_b32 v{128+r}, v{ACC+16*wv+r}")
        a.lab(f"k_red{wv}_skip")
    lds_add(a, C_RED, 8, 9)
    stamp(a, 4, pv=7)
    a(f"""
    s_lshr_b32 s3, s{sW}, 1
    s_lshl_b32 s3, s3, 5
    s_lshl_b32 s{sT}, s{sRb}, 6
    s_add_u32 s3, s3, s{sT}
    s_mul_i32 s3, s3, 896
    s_lshl_b32 s{sT}, s{sCb}, 7
    s_add_u32 s3, s3, s{sT}
    s_and_b32 s{sT}, s{sW}, 1
    s_lshl_b32 s{sT}, s{sT}, 6
    s_add_u32 s{sT}, s3, s{sT}
    v_mul_u32_u24 v4, 896, v2
    v_lshrrev_b32 v6, 5, v0
    v_lshl_add_u32 v4, v6, 4, v4
    """)
    lds_wait(a, C_RED, 4, 8, 9)
    stamp(a, 5, pv=7)
    for i in range(3):
        a(f"""
        s_add_u32 s3, s{sW}, {1+i}
        s_and_b32 s3, s3, 3
        s_mul_i32 s3, s3, {RING}
        v_add_u32 v6, s3, v5
        """)
        for r4 in range(4):
            a(f"ds_read_b128 {vr(RR+16*i+4*r4,4)}, v6 offset:{1024*r4}")
    for i in range(3):
        a(f"s_waitcnt lgkmcnt({8-4*i})")
        for p in range(8):
            a(f"v_pk_add_f32 {vr(128+2*p,2)}, {vr(128+2*p,2)}, {vr(RR+16*i+2*p,2)}")
    for p in range(8):
        a(f"v_cvt_pk_bf16_f32 v{16+p}, v{128+2*p}, v{128+2*p+1}")
    a(f"""
    s_nop 1
    v_permlane32_swap_b32 v16, v18
    v_permlane32_swap_b32 v17, v19
    v_permlane32_swap_b32 v20, v22
    v_permlane32_swap_b32 v21, v23
    buffer_store_dwordx4 v[16:19], v4, {sr(SOUT,4)}, s{sT} offen {["", "sc1", "nt", "sc0 sc1"][OPT.get("OS", 0)]}
    buffer_store_dwordx4 v[20:23], v4, {sr(SOUT,4)}, s{sT} offen offset:32 {["", "sc1", "nt", "sc0 sc1"][OPT.get("OS", 0)]}
    """)
    stamp(a, 6, pv=7)
    if PROF:
        a("s_waitcnt vmcnt(0)"); stamp(a, 10); stamp(a, 7, pv=7)
    a.lab("k_f_done")
    flush(a, 4)
    a("s_endpgm")
    a.lab("k_end")
    a("s_endpgm")
    a.lab("k_code_end")

def main(out):
    a = A()
    gen(a)
    txt = """; gated_mix: out = g * (softmax-MHA(x) @ wo) + (1-g) * (silu(x @ w1) @ w2),  g = sigmoid(x . gate_w)
"""
    txt += f"; @launch grid=(256,1,1) block=(512,1,1) lds={LDS_BYTES}\n"
    txt += '.amdgcn_target "amdgcn-amd-amdhsa--gfx950"\n.text\n'
    txt += a.text()
    txt += f""".section .rodata,"a"
.p2align 6
.amdhsa_kernel {NAME}
  .amdhsa_next_free_vgpr 256
  .amdhsa_next_free_sgpr 102
  .amdhsa_accum_offset 256
  .amdhsa_group_segment_fixed_size 0
  .amdhsa_kernarg_size 80
  .amdhsa_user_sgpr_count 2
  .amdhsa_user_sgpr_kernarg_segment_ptr 1
  .amdhsa_system_sgpr_workgroup_id_x 1
.end_amdhsa_kernel
"""
    open(out, "w").write(txt)

if __name__ == "__main__":
    main(sys.argv[1] if len(sys.argv) > 1 else "f.s")
```

```python
import math, struct, sys, os

def f2u(x):
    return struct.unpack("<I", struct.pack("<f", x))[0]

S, D, H, DH, F = 2048, 448, 16, 28, 1792
WS_QF = 0
WS_KV = 2 << 20
WS_HF = 6 << 20
WS_OF = 14 << 20
WS_G  = 16 << 20
WS_FL = (16 << 20) + 65536
FL_KV = WS_FL
FL_H  = WS_FL + 8192
FL_O  = WS_FL + 16384
WS_SIZE = (16 << 20) + 131072
PROF = int(os.environ.get("PROF", "0"))
WS_PROF = WS_SIZE
if PROF:
    WS_SIZE = WS_PROF + 2*256*8*64
OPT = dict(NB=6, UNR=1, ASU=39, TOUCH=1, PRIO_A=1, PRIO_F=2)
for kv in os.environ.get("OPT", "").split(","):
    if "=" in kv:
        k, v = kv.split("="); OPT[k] = int(v)

LOG2E = 1.4426950408889634
QSCALE = (DH ** -0.5) * LOG2E
NAME = "gated_mix__softmax_full_mha__dense_activation_silu__prompt_kernel"

class A:
    def __init__(self):
        self.l = []
        self.n = 0
    def __call__(self, s):
        for x in s.strip("\n").split("\n"):
            x = x.strip()
            if not x: continue
            self.l.append(x if x.endswith(":") else "  " + x)
    def lab(self, s):
        self.l.append(s + ":")
    def uniq(self, p):
        self.n += 1
        return f"{p}_{self.n}"
    def text(self):
        return "\n".join(self.l) + "\n"

def vr(b, n): return f"v[{b}:{b+n-1}]" if n > 1 else f"v{b}"
def sr(b, n): return f"s[{b}:{b+n-1}]" if n > 1 else f"s{b}"
MFMA = "v_mfma_f32_32x32x16_bf16"

SX, SWQ, SWS, SW1, SW2, SWO, SOUT, SG, SDBG = 36, 40, 44, 48, 52, 56, 60, 64, 68
SKV = 48
sMB, sJ, sW, sX, sIdx, sC, sK, sT = 72, 73, 74, 75, 76, 77, 78, 79
sE = 12
XBASE = 49152
QSLOT = 12288
LCNT = 36864
C_F1, C_OC, C_BAD, C_A2, C_RED, C_FB1, C_FB2, C_Q, C_KV, C_H, C_QX, C_S = [LCNT + 4*i for i in range(12)]
C_A3 = LCNT + 64
QXB = 12288
W1E = LCNT + 1024
RING0 = 40960
RING = 24576
OC3 = RING0 + 4*RING
LDS_BYTES = 163840

def srd(a, d, base, nbytes):
    a(f"s_mov_b32 s{d}, s{base}")
    a(f"s_mov_b32 s{d+1}, s{base+1}")
    a(f"s_mov_b32 s{d+2}, {nbytes}")
    a(f"s_mov_b32 s{d+3}, 0x00020000")

PV = OPT.get("PV", 0)
def stamp(a, i, cyc=False, pv=0):
    if PROF and (pv == PV or i == 0):
        assert 0 <= i < 11
        a(f"{'s_memtime' if cyc else 's_memrealtime'} s[{80+2*i}:{81+2*i}]")
def flush(a, wadd):
    if not PROF: return
    if OPT.get("HPROF"):
        L = a.uniq("hp")
        a("s_waitcnt lgkmcnt(0)")
        a(f"s_or_b32 s3, s2, s{sW}")
        a(f"s_cmp_lg_u32 s3, {OPT.get('HWG', 0)}")
        a(f"s_cbranch_scc1 {L}")
        sel = [2, 3, 7, 8, 9, 1, 10] if wadd == 0 else [2, 3, 4, 6, 7, 9, 10]
        a("s_mov_b64 exec, 1")
        a("v_mov_b32 v28, 0")
        for k, i in enumerate(sel):
            if wadd == 0 and i == 1:
                continue
            if wadd == 0 and i == 10:
                a(f"s_sub_u32 s3, s{80+2*10}, s{80+2*1}")
            else:
                a(f"s_sub_u32 s3, s{80+2*i}, s80")
            a(f"v_mov_b32 v16, s3")
            a(f"buffer_store_dword v16, v28, {sr(SDBG,4)}, 0 offen offset:{8+4*k+(28 if wadd else 0)}")
        a.lab(L)
        return
    a("s_waitcnt lgkmcnt(0)")
    a(f"s_lshl_b32 s3, s2, 3")
    a(f"s_add_u32 s3, s3, s{sW}")
    a(f"s_add_u32 s3, s3, {wadd}")
    a(f"s_lshl_b32 s3, s3, 6")
    a(f"s_add_u32 s3, s3, {WS_PROF}")
    a("s_mov_b64 exec, 1")
    a("s_nop 4")
    for i in range(11):
        a(f"v_mov_b32 v{16+i}, s{80+2*i}")
    a("v_mov_b32 v27, 0")
    a("v_mov_b32 v28, 0")
    for i in range(3):
        a(f"buffer_store_dwordx4 v[{16+4*i}:{19+4*i}], v28, {sr(SWS,4)}, s3 offen offset:{16*i}")

def lds_add(a, cnt, vt0, vt1):
    a(f"""
    v_mov_b32 v{vt0}, {cnt}
    v_mov_b32 v{vt1}, 1
    s_mov_b64 exec, 1
    ds_add_u32 v{vt0}, v{vt1}
    s_mov_b64 exec, -1
    """)
def lds_wait(a, cnt, target, vt0, vt1, sleep=0):
    L = a.uniq("lw"); E = a.uniq("lwe")
    a(f"v_mov_b32 v{vt0}, {cnt}")
    a(f"s_mov_b32 s14, 0")
    a.lab(L)
    a(f"""
    ds_read_b32 v{vt1}, v{vt0}
    s_add_u32 s14, s14, 1
    s_waitcnt lgkmcnt(0)
    v_readfirstlane_b32 s15, v{vt1}
    s_cmp_gt_u32 s14, 0x200000
    s_cbranch_scc1 {E}
    s_cmp_ge_u32 s15, {target}
    s_cbranch_scc1 {E}
    {f"s_sleep {sleep}" if sleep else ""}
    s_branch {L}
    """)
    a.lab(E)

def nonce_issue(a, vt):
    a(f"v_mov_b32 v{vt}, 0")
    a(f"buffer_load_dwordx2 {vr(vt+2,2)}, v{vt}, {sr(SDBG,4)}, 0 offen sc1")
def nonce_get(a, vt):
    L = a.uniq("ng"); E = a.uniq("nge")
    a("s_mov_b32 s14, 0")
    a.lab(L)
    a(f"""
    s_waitcnt vmcnt(0)
    v_readfirstlane_b32 s{sE}, v{vt+2}
    v_readfirstlane_b32 s{sE+1}, v{vt+3}
    s_add_u32 s14, s14, 1
    s_cmp_gt_u32 s14, 0x40000
    s_cbranch_scc1 {E}
    s_cmp_lg_u32 s{sE}, 0
    s_cbranch_scc1 {E}
    buffer_load_dwordx2 {vr(vt+2,2)}, v{vt}, {sr(SDBG,4)}, 0 offen sc1
    s_branch {L}
    """)
    a.lab(E)
def publish(a, soff, vt):
    a(f"""
    v_mov_b32 v{vt}, s{sE}
    v_mov_b32 v{vt+1}, s{sE+1}
    v_mov_b32 v{vt+2}, 0
    s_mov_b64 exec, 1
    buffer_store_dwordx2 {vr(vt,2)}, v{vt+2}, {sr(SWS,4)}, s{soff} offen sc1
    s_mov_b64 exec, -1
    """)
def poll(a, nl, voff, soff, vt, slp=3):
    L = a.uniq("pl"); E = a.uniq("ple")
    a(f"s_mov_b32 exec_lo, {((1<<nl)-1) & 0xffffffff:#x}")
    a(f"s_mov_b32 exec_hi, {((1<<nl)-1) >> 32:#x}")
    a("s_mov_b32 s14, 0")
    a.lab(L)
    a(f"""
    buffer_load_dwordx2 {vr(vt,2)}, v{voff}, {sr(SWS,4)}, s{soff} offen sc1
    s_add_u32 s14, s14, 1
    s_waitcnt vmcnt(0)
    v_cmp_eq_u64 vcc, {sr(sE,2)}, {vr(vt,2)}
    s_cmp_gt_u32 s14, 0x40000
    s_cbranch_scc1 {E}
    s_cmp_eq_u64 vcc, exec
    s_cbranch_scc1 {E}
    {f"s_sleep {slp}" if slp else ""}
    s_branch {L}
    """)
    a.lab(E)
    a("s_mov_b64 exec, -1")

def poll4(a, nl, voff, soff, vt, slp=3):
    L = a.uniq("pl"); E = a.uniq("ple")
    a(f"s_mov_b32 exec_lo, {((1<<nl)-1) & 0xffffffff:#x}")
    a(f"s_mov_b32 exec_hi, {((1<<nl)-1) >> 32:#x}")
    a("s_mov_b32 s14, 0")
    a.lab(L)
    a(f"""
    buffer_load_dwordx4 {vr(vt,4)}, v{voff}, {sr(SWS,4)}, s{soff} offen sc1
    s_add_u32 s14, s14, 1
    s_waitcnt vmcnt(0)
    v_cmp_eq_u64 vcc, {sr(sE,2)}, {vr(vt,2)}
    v_cmp_eq_u64 s[{sT-1}:{sT}], {sr(sE,2)}, {vr(vt+2,2)}
    s_cmp_gt_u32 s14, 0x40000
    s_cbranch_scc1 {E}
    s_and_b64 vcc, vcc, s[{sT-1}:{sT}]
    s_cmp_eq_u64 vcc, exec
    s_cbranch_scc1 {E}
    {f"s_sleep {slp}" if slp else ""}
    s_branch {L}
    """)
    a.lab(E)
    a("s_mov_b64 exec, -1")

def pollp(a, nl, voff, soff, vts, wide, slp):
    L = a.uniq("pp"); E = a.uniq("ppe")
    n = len(vts); w = 4 if wide else 2
    ld = lambda vt: a(f"buffer_load_dwordx{w} {vr(vt,w)}, v{voff}, {sr(SWS,4)}, s{soff} offen sc1")
    a(f"s_mov_b32 exec_lo, {((1<<nl)-1) & 0xffffffff:#x}")
    a(f"s_mov_b32 exec_hi, {((1<<nl)-1) >> 32:#x}")
    a("s_mov_b32 s14, 0")
    for k in range(n-1):
        ld(vts[k]); a(f"s_sleep {slp}")
    a.lab(L)
    for k in range(n):
        ld(vts[(k+n-1) % n])
        a(f"s_waitcnt vmcnt({n-1})")
        a(f"v_cmp_eq_u64 vcc, {sr(sE,2)}, {vr(vts[k],2)}")
        if wide:
            a(f"v_cmp_eq_u64 s[{sT-1}:{sT}], {sr(sE,2)}, {vr(vts[k]+2,2)}")
            a("s_nop 0")
            a(f"s_and_b64 vcc, vcc, s[{sT-1}:{sT}]")
        else:
            a("s_nop 1")
        a("s_cmp_eq_u64 vcc, exec")
        a(f"s_cbranch_scc1 {E}")
        a(f"s_sleep {slp}")
    a(f"""
    s_add_u32 s14, s14, 1
    s_cmp_lt_u32 s14, 0x20000
    s_cbranch_scc1 {L}
    """)
    a.lab(E)
    a("s_mov_b64 exec, -1")

def gen(a):
    NB = OPT["NB"]
    a.l.append(f".globl {NAME}")
    a.l.append(".p2align 8")
    a.l.append(f".type {NAME},@function")
    a.lab(NAME)
    a(f"""
    s_cmp_ge_u32 s2, 256
    s_cbranch_scc1 k_end
    s_load_dwordx16 s[16:31], s[0:1], 0
    s_load_dwordx4 s[32:35], s[0:1], 64
    """)
    if PROF:
        for i in range(1, 11):
            a(f"s_mov_b64 s[{80+2*i}:{81+2*i}], 0")
        stamp(a, 0)
    VXO = 20
    XA = 8
    a(f"""
    v_lshrrev_b32 v1, 6, v0
    v_and_b32 v0, 63, v0
    s_and_b32 s{sX}, s2, 7
    s_lshr_b32 s{sIdx}, s2, 3
    v_readfirstlane_b32 s{sW}, v1
    s_and_b32 s{sMB}, s{sX}, 1
    s_lshl_b32 s{sMB}, s{sMB}, 3
    s_and_b32 s3, s{sIdx}, 7
    s_add_u32 s{sMB}, s{sMB}, s3
    s_lshr_b32 s{sJ}, s{sX}, 1
    s_lshr_b32 s3, s{sX}, 2
    s_xor_b32 s{sJ}, s{sJ}, {"s3" if OPT.get("XM", 0) else "0"}
    s_lshl_b32 s{sJ}, s{sJ}, 2
    s_lshr_b32 s3, s{sIdx}, 3
    s_add_u32 s{sJ}, s{sJ}, s3
    v_lshrrev_b32 v14, 3, v0
    v_mul_u32_u24 v14, 896, v14
    v_lshrrev_b32 v15, 4, v0
    v_and_b32 v1, 7, v0
    v_xor_b32 v15, v15, v1
    v_lshl_add_u32 v{VXO}, v15, 4, v14
    v_xor_b32 v15, 4, v15
    v_lshl_add_u32 v{VXO+1}, v15, 4, v14
    v_add_u32 v{VXO+2}, {2*6144}, v{VXO}
    v_add_u32 v{VXO+3}, {3*6144}, v{VXO+1}
    v_add_u32 v{VXO+1}, 6144, v{VXO+1}
    s_and_b32 s4, s{sW}, 3
    s_lshl_b32 s3, s{sMB}, 7
    s_lshl_b32 s6, s4, 5
    s_add_u32 s3, s3, s6
    s_mul_i32 s5, s3, 896
    s_and_b32 s3, s{sJ}, 3
    s_lshl_b32 s3, s3, 1
    s_and_b32 s11, s{sMB}, 7
    s_add_u32 s11, s11, s3
    s_cmp_ge_u32 s11, 7
    s_cselect_b32 s3, 7, 0
    s_sub_u32 s11, s11, s3
    s_mul_i32 s11, s11, {OPT.get("ROT", 1)}
    s_lshl_b32 s3, s11, 7
    s_add_u32 s5, s5, s3
    s_mov_b32 s15, s11
    s_lshl_b32 s6, s4, 12
    s_add_u32 s6, s6, {XBASE}
    v_and_b32 v2, 31, v0
    v_lshrrev_b32 v3, 5, v0
    v_bfe_u32 v4, v0, 2, 2
    v_bfe_u32 v5, v0, 4, 1
    v_and_b32 v6, 3, v0
    v_lshlrev_b32 v7, 4, v0
    """)
    VQO = 16
    a(f"s_mul_i32 s3, s{sJ}, 56")
    a(f"s_and_b32 s3, s3, -16")
    for i in range(3):
        a(f"""
        v_add_u32 v1, {64*i}, v0
        v_mul_u32_u24 v14, 43691, v1
        v_lshrrev_b32 v14, 19, v14
        v_mul_u32_u24 v15, 12, v14
        v_sub_u32 v1, v1, v15
        v_mul_u32_u24 v14, 2688, v14
        v_lshrrev_b32 v15, 2, v1
        v_mul_u32_u24 v15, 896, v15
        v_add_u32 v14, v14, v15
        v_and_b32 v1, 3, v1
        v_lshl_add_u32 v14, v1, 4, v14
        v_add_u32 v14, s3, v14
        v_subrev_u32 v{VQO+i}, {1024*i}, v14
        """)
    a(f"""
    s_mul_i32 s7, s4, {16*2688}
    s_mul_i32 s3, s11, {64*2688}
    s_add_u32 s7, s7, s3
    s_mul_i32 s8, s4, 3072
    s_cmp_ge_u32 s{sW}, 4
    s_mov_b32 s{sW}, s4
    s_mov_b32 s14, s11
    s_movk_i32 s4, 128
    s_mov_b32 s9, {64*2688}
    s_waitcnt lgkmcnt(0)
    s_cbranch_scc1 k_F
    """)
    def xa_setup():
        a(f"v_bfe_u32 v14, v0, 1, 3")
        a(f"v_lshlrev_b32 v15, 7, v2")
        for kk in range(4):
            a(f"v_add_u32 v1, {2*kk}, v3")
            a(f"v_xor_b32 v1, v1, v14")
            a(f"v_lshl_add_u32 v{XA+kk}, v1, 4, v15")
    def zero_acc(base, n, z):
        for i in range(4): a(f"v_mov_b32 v{z+i}, 0")
        a("s_nop 1")
        for i in range(n):
            a(f"{MFMA} {vr(base+16*i,16)}, {vr(z,4)}, {vr(z,4)}, 0")
    ops = []
    def xdma(c):
        a(f"s_add_u32 m0, s6, {16384*c}")
        a(f"s_add_u32 s14, s14, 1")
        for i in range(4):
            a(f"buffer_load_dwordx4 v{VXO+i}, {sr(SX,4)}, s5 offen offset:{1024*i} lds"); ops.append(("x", c))
        a(f"""
        s_cmp_eq_u32 s14, 7
        s_cselect_b32 s3, -768, s4
        s_add_u32 s5, s5, s3
        """)
    def qdma(c):
        a(f"s_add_u32 m0, s8, {QSLOT*(c % 3)}")
        a(f"s_add_u32 s15, s15, 1")
        for i in range(3):
            a(f"buffer_load_dwordx4 v{VQO+i}, {sr(SWQ,4)}, s7 offen offset:{1024*i} lds"); ops.append(("q", c))
        a(f"""
        s_cmp_eq_u32 s15, 7
        s_cselect_b32 s3, {-6*64*2688}, s9
        s_add_u32 s7, s7, s3
        """)
    def landed(c):
        last = max(k for k, o in enumerate(ops) if o in (("x", c), ("q", c)))
        return len(ops) - 1 - last
    srd(a, SX, 16, S*D*2)
    xdma(0)
    srd(a, SWQ, 18, D*3*D*2)
    qdma(0)
    a("s_setprio 3")
    xdma(1); qdma(1)
    if not OPT.get("ES", 1):
        xdma(2); qdma(2); xdma(3)
    stamp(a, 1)
    srd(a, SWS, 34, WS_SIZE)
    srd(a, SDBG, 32, 256)
    WB = 12
    QB = [32, 48, 128, 144]
    AQ, AK, AV = 64, 80, 96
    VCS, VONE, VT = 24, 25, 26
    xa_setup()
    a(f"""
    s_lshl_b32 s3, s{sW}, 12
    s_add_u32 s3, s3, {XBASE}
    """)
    for kk in range(4):
        a(f"v_add_u32 v{XA+kk}, s3, v{XA+kk}")
    a(f"""
    v_lshl_add_u32 v14, v3, 3, v4
    v_mul_u32_u24 v14, 192, v14
    v_lshl_add_u32 v14, v5, 5, v14
    v_lshl_add_u32 v{WB}, v6, 3, v14
    s_and_b32 s3, s{sJ}, 1
    s_lshl_b32 s3, s3, 3
    v_add_u32 v{WB}, s3, v{WB}
    v_mov_b32 v31, 0x3f803f80
    v_cmp_eq_u32 vcc, 28, v2
    v_mov_b32 v{VCS}, {C_S}
    v_mov_b32 v{VONE}, 1
    v_cndmask_b32 v31, 0, v31, vcc
    """)
    zero_acc(AQ, 3, 128)
    if OPT.get("TB", 99) == 9:
        srd(a, SW2, 26, F*D*2)
        srd(a, SWO, 20, D*D*2)
        a(f"""
        v_lshlrev_b32 v28, 7, v0
        v_add_u32 v29, 8192, v28
        v_cmp_gt_u32 vcc, 34, v0
        v_bfrev_b32 v15, 1
        v_mov_b32 v30, v28
        v_cndmask_b32 v29, v15, v29, vcc
        v_cmp_gt_u32 vcc, 25, v0
        s_nop 1
        v_cndmask_b32 v30, v15, v30, vcc
        """)
    a("s_barrier")
    def qread_list(buf, c, kk):
        b = QB[buf]
        L = [f"ds_read_b128 {vr(b,4)}, v{XA+kk} offset:{(c%4)*16384}"]
        for t in range(3):
            for u in range(2):
                L.append(f"ds_read_b64_tr_b16 {vr(b+4+4*t+2*u,2)}, v{WB} offset:{QSLOT*(c%3)+(16*kk+4*u)*192+t*64}")
        return L
    def qstep(mbuf, R):
        b = QB[mbuf]
        M = [f"{MFMA} {vr(AQ,16)}, {vr(b+4,4)}, {vr(b,4)}, {vr(AQ,16)}",
             f"{MFMA} {vr(AK,16)}, {vr(b+8,4)}, {vr(b,4)}, {vr(AK,16)}",
             f"{MFMA} {vr(AV,16)}, {vr(b,4)}, {vr(b+12,4)}, {vr(AV,16)}"]
        n = len(R); cuts = [0, (n+2)//3, (2*n+2)//3, n]
        for i in range(3):
            a(M[i])
            for x in R[cuts[i]:cuts[i+1]]: a(x)
    def arrive(c):
        a(f"""
        s_waitcnt vmcnt({landed(c)}) lgkmcnt(0)
        s_mov_b64 exec, 1
        ds_add_u32 v{VCS}, v{VONE}
        s_mov_b64 exec, -1
        """)
    def spin(c):
        L = a.uniq("sp"); E = a.uniq("spe")
        a("s_mov_b32 s10, 0")
        a.lab(L)
        a(f"""
        ds_read_b32 v{VT}, v{VCS}
        s_add_u32 s10, s10, 1
        s_waitcnt lgkmcnt(0)
        v_readfirstlane_b32 s3, v{VT}
        s_cmp_gt_u32 s10, 0x200000
        s_cbranch_scc1 {E}
        s_cmp_ge_u32 s3, {4*(c+1)}
        s_cbranch_scc0 {L}
        """)
        a.lab(E)
    arrive(0)
    if OPT.get("ES", 1):
        xdma(2); qdma(2)
    spin(0)
    stamp(a, 2)
    for x in qread_list(0, 0, 0) + qread_list(1, 0, 1): a(x)
    if OPT.get("ES", 1):
        xdma(3)
    for c in range(7):
        a("s_waitcnt lgkmcnt(7)"); qstep(0, qread_list(2, c, 2))
        a("s_waitcnt lgkmcnt(7)"); qstep(1, qread_list(3, c, 3))
        if c < 6:
            arrive(c+1)
            qstep(2, [])
            spin(c+1)
            stamp(a, 3+c, pv=1)
            if c + 1 == 4:
                for k2 in range(4):
                    a(f"v_add_u32 v{XA+k2}, 0x10000, v{XA+k2}")
            qstep(3, qread_list(0, c+1, 0) + qread_list(1, c+1, 1))
            if c + 3 <= 6: qdma(c+3)
            if c + 4 <= 6: xdma(c+4)
            if c == 3:
                nonce_issue(a, 16); ops.append(("n", 0))
        else:
            a("s_waitcnt lgkmcnt(0)")
            lds_add(a, C_Q, 14, 15)
            qstep(2, []); qstep(3, [])
    stamp(a, 3)
    QP, KP, VP = 32, 40, 48
    SD = 112
    sHead, sQb, sKo, sVo, sPass, sPub = sJ, sMB, 6, 8, 9, 10
    a(f"""
    s_lshl_b32 s3, s{sJ}, 6
    s_lshl_b32 s4, s{sMB}, 2
    s_add_u32 s3, s3, s4
    s_add_u32 s3, s3, s{sW}
    s_lshl_b32 s6, s3, 12
    s_add_u32 s6, s6, {WS_KV}
    s_lshl_b32 s7, s3, 3
    s_add_u32 s7, s7, {FL_KV}
    s_mov_b32 s8, {f2u(QSCALE):#x}
    s_mov_b32 s9, {f2u(QSCALE):#x}
    s_mov_b32 s10, 0x07060302
    """)
    for p in range(8):
        a(f"v_cvt_pk_bf16_f32 v{KP+p}, v{AK+2*p}, v{AK+2*p+1}")
    a(f"""
    s_mov_b32 exec_lo, 0
    v_mov_b32 v{KP+6}, 0x3f803f80
    v_mov_b32 v{KP+7}, 0x3f80
    s_mov_b64 exec, -1
    buffer_store_dwordx4 {vr(KP,4)}, v7, {sr(SWS,4)}, s6 offen sc1
    buffer_store_dwordx4 {vr(KP+4,4)}, v7, {sr(SWS,4)}, s6 offen offset:1024 sc1
    """)
    for p in range(8):
        a(f"v_cvt_pk_bf16_f32 v{VP+p}, v{AV+2*p}, v{AV+2*p+1}")
    a(f"""
    s_mov_b32 exec_lo, 0xf0000000
    s_mov_b32 exec_hi, 0xf0000000
    """)
    for p in range(8):
        a(f"v_mov_b32 v{VP+p}, v31")
    a(f"""
    s_mov_b64 exec, -1
    buffer_store_dwordx4 {vr(VP,4)}, v7, {sr(SWS,4)}, s6 offen offset:2048 sc1
    buffer_store_dwordx4 {vr(VP+4,4)}, v7, {sr(SWS,4)}, s6 offen offset:3072 sc1
    """)
    stamp(a, 4)
    stamp(a, 1, pv=5)
    for p in range(16):
        a(f"v_mul_f32 v{AQ+p}, s8, v{AQ+p}")
    for p in range(8):
        a(f"v_cvt_pk_bf16_f32 v{QP+p}, v{AQ+2*p}, v{AQ+2*p+1}")
    a(f"""
    s_mov_b32 exec_lo, 0
    v_mov_b32 v{QP+6}, 0
    v_mov_b32 v{QP+7}, 0
    s_mov_b64 exec, -1
    s_lshl_b32 s3, s{sW}, 11
    s_add_u32 s3, s3, {QXB}
    v_add_u32 v13, s3, v7
    {MFMA} {vr(SD,16)}, {vr(KP,4)}, {vr(QP,4)}, 0
    {MFMA} {vr(SD,16)}, {vr(KP+4,4)}, {vr(QP+4,4)}, {vr(SD,16)}
    s_nop 12
    v_max3_f32 v14, v{SD}, v{SD+1}, v{SD+2}
    v_max3_f32 v15, v{SD+3}, v{SD+4}, v{SD+5}
    v_max3_f32 v14, v14, v{SD+6}, v{SD+7}
    v_max3_f32 v15, v15, v{SD+8}, v{SD+9}
    v_max3_f32 v14, v14, v{SD+10}, v{SD+11}
    v_max3_f32 v15, v15, v{SD+12}, v{SD+13}
    v_max3_f32 v14, v14, v{SD+14}, v{SD+15}
    v_max_f32 v14, v14, v15
    v_mov_b32 v15, v14
    s_nop 1
    v_permlane32_swap_b32 v14, v15
    v_max_f32 v14, v14, v15
    v_sub_f32 v14, 0, v14
    v_and_b32 v15, 0xffff0000, v14
    v_sub_f32 v15, v14, v15
    v_and_b32 v12, 0xffff0000, v15
    v_sub_f32 v12, v15, v12
    s_mov_b32 exec_lo, 0
    v_perm_b32 v{QP+6}, v15, v14, s10
    v_lshrrev_b32 v{QP+7}, 16, v12
    s_mov_b64 exec, -1
    """)
    stamp(a, 2, pv=5)
    nonce_get(a, 16)
    stamp(a, 3, pv=5)
    publish(a, 7, 16)
    stamp(a, 5)
    a(f"""
    ds_write_b128 v13, {vr(QP,4)}
    ds_write_b128 v13, {vr(QP+4,4)} offset:1024
    """)
    lds_add(a, C_QX, 14, 15)
    stamp(a, 4, pv=5)
    Q = 8
    O = 40
    SB = [104, 120]
    PB = [136, 144]
    KVB = [152 + 16*i for i in range(NB)]
    VG = 3
    assert 152 + 16*NB <= 248
    a(f"""
    s_lshl_b32 s3, s{sHead}, 6
    s_lshl_b32 s11, s{sW}, 4
    s_add_u32 s3, s3, s11
    s_lshl_b32 s3, s3, 12
    s_add_u32 s3, s3, {WS_KV}
    s_add_u32 s{SKV}, s34, s3
    s_addc_u32 s{SKV+1}, s35, 0
    s_mov_b32 s{SKV+2}, 65536
    s_mov_b32 s{SKV+3}, 0x00020000
    s_mov_b32 s{sPass}, 0
    s_mov_b32 s{sPub}, 0
    """)
    a(f"""
    s_lshl_b32 s11, s{sHead}, 9
    s_lshl_b32 s3, s{sQb}, 9
    s_sub_u32 s3, s3, s11
    s_add_u32 s3, s3, {8192 + 56*8 - 32*16}
    v_lshlrev_b32 v248, 4, v0
    v_add_u32 v249, s3, v248
    v_cmp_gt_u32 vcc, 32, v0
    s_add_u32 s7, s11, {FL_KV}
    s_nop 0
    v_cndmask_b32 v248, v249, v248, vcc
    """)
    zero_acc(O, 4, PB[1])
    if OPT.get("TB", 99) == 9:
        a(f"""
        s_lshl_b32 s3, s{sIdx}, 2
        s_add_u32 s3, s3, s{sW}
        s_mul_i32 s5, s3, {25*128}
        s_mul_i32 s4, s3, {98*128}
        buffer_load_dword v254, v28, {sr(SW2,4)}, s4 offen
        buffer_load_dword v254, v29, {sr(SW2,4)}, s4 offen
        buffer_load_dword v254, v30, {sr(SWO,4)}, s5 offen
        """)
    lds_wait(a, C_QX, 4, 250, 251)
    for i in range(4):
        a(f"""
        s_add_u32 s3, s{sW}, {1+i}
        s_and_b32 s3, s3, 3
        s_lshl_b32 s3, s3, 11
        v_add_u32 v1, s3, v7
        ds_read_b128 {vr(Q+8*i,4)}, v1 offset:{QXB}
        ds_read_b128 {vr(Q+8*i+4,4)}, v1 offset:{QXB+1024}
        """)
    stamp(a, 5, pv=5)
    a(f"""
    s_cmp_lg_u32 s{sW}, 0
    s_cbranch_scc1 k_a_w
    """)
    if OPT.get("PP", 0):
        pollp(a, 34, 248, 7, [236, 240, 244], True, OPT.get("PPS", 3))
    else:
        poll4(a, 34, 248, 7, 252, slp=OPT.get('PS1', 3))
    lds_add(a, C_KV, 250, 251)
    a("s_branch k_a_go")
    a.lab("k_a_w")
    lds_wait(a, C_KV, 1, 250, 251, sleep=OPT.get('PS3', 1))
    a.lab("k_a_go")
    stamp(a, 6, pv=5)
    stamp(a, 6)
    def ldK(b):
        a(f"buffer_load_dwordx4 {vr(KVB[b],4)}, v7, {sr(SKV,4)}, s{sKo} offen sc1")
        a(f"buffer_load_dwordx4 {vr(KVB[b]+4,4)}, v7, {sr(SKV,4)}, s{sKo} offen offset:1024 sc1")
        a(f"s_add_u32 s{sKo}, s{sKo}, 4096")
    def ldV(b):
        a(f"buffer_load_dwordx4 {vr(KVB[b]+8,4)}, v7, {sr(SKV,4)}, s{sVo} offen offset:2048 sc1")
        a(f"buffer_load_dwordx4 {vr(KVB[b]+12,4)}, v7, {sr(SKV,4)}, s{sVo} offen offset:3072 sc1")
        a(f"s_add_u32 s{sVo}, s{sVo}, 4096")
    a(f"""
    s_lshl_b32 s3, s{sQb}, 9
    s_lshl_b32 s11, s{sW}, 7
    s_add_u32 s3, s3, s11
    s_add_u32 s3, s3, {WS_G}
    v_lshlrev_b32 v4, 2, v2
    buffer_load_dword v{VG}, v4, {sr(SWS,4)}, s3 offen sc1
    s_branch k_att_first
    """)
    a.lab("k_att_start")
    zero_acc(O, 4, PB[1])
    a.lab("k_att_first")
    a(f"s_mov_b32 s{sKo}, 0")
    a(f"s_mov_b32 s{sVo}, 0")
    aops = []
    def issue(kind, t):
        (ldK if kind == "K" else ldV)(t % NB); aops.extend([(kind, t)]*2)
    def need(kind, t):
        last = max(k for k, o in enumerate(aops) if o == (kind, t))
        return len(aops) - 1 - last
    UNR = OPT.get("UNR", 0)
    order = []
    for t in range(16 + (0 if UNR else NB)): order += [("K", t), ("V", t)]
    npro = 3 if UNR else 2*NB-1
    if not UNR:
        for i in range(8): a(f"v_mov_b32 v{KVB[NB-1]+8+i}, 0")
        for i in range(8): a(f"v_mov_b32 v{PB[1]+i}, 0")
    for _ in range(npro): issue(*order.pop(0))
    if OPT["TOUCH"]:
        a(f"""
        s_and_b32 s3, s{sQb}, 7
        s_lshl_b32 s3, s3, 7
        v_lshlrev_b32 v4, 10, v0
        buffer_load_dword v6, v4, {sr(SKV,4)}, s3 offen sc1
        """)
        aops.append(("T", 0))
    a(f"""
    s_lshl_b32 s3, s{sW}, 2
    s_add_u32 s3, s3, {C_A3}
    v_mov_b32 v248, s3
    v_mov_b32 v249, 1
    s_mov_b32 s{sC}, 0
    """)
    def oc_base(dst, sreg):
        a(f"""
        s_mul_i32 s{dst}, s{sreg}, 12288
        s_cmp_eq_u32 s{sreg}, 3
        s_cselect_b32 s{dst}, {OC3}, s{dst}
        """)
    for i in range(3):
        a(f"""
        s_add_u32 s3, s{sW}, {1+i}
        s_and_b32 s3, s3, 3
        """)
        oc_base(11, 3)
        a(f"v_add_u32 v{250+i}, s11, v7")
    a("ds_write_b32 v248, v249")
    a("v_mov_b32 v249, 2")
    a(f"s_waitcnt vmcnt({need('K', 0)}) lgkmcnt(0)")
    stamp(a, 7)
    stamp(a, 1, pv=6); stamp(a, 2, True, pv=6)
    if OPT.get("HPROF"): stamp(a, 1, True)
    a(f"{MFMA} {vr(SB[0],16)}, {vr(KVB[0],4)}, {vr(Q,4)}, 0")
    a(f"{MFMA} {vr(SB[0],16)}, {vr(KVB[0]+4,4)}, {vr(Q+4,4)}, {vr(SB[0],16)}")
    a(f"s_setprio {OPT['PRIO_A']}")
    a("s_nop 13")
    def free_at(kind, t):
        if t < NB: return -1
        return 4*(t-NB)+2 if kind == "K" else 4*(t-NB)+4
    ocw = []
    NU = 64 if UNR else 4*NB
    if not UNR: a.lab("k_aloop")
    for u in range(NU):
        t, qi = u // 4, u % 4
        un = u + 1; tn, qn = un // 4, un % 4
        up = u - 1; tp, qp = up // 4, up % 4
        sc, sn = SB[u % 2], SB[(u+1) % 2]
        pc, pp = PB[u % 2], PB[(u-1) % 2]
        def ex(r): a(f"v_exp_f32 v{sc+r}, v{sc+r}")
        def cv(p): a(f"v_cvt_pk_bf16_f32 v{pc+p}, v{sc+2*p}, v{sc+2*p+1}")
        def w_():
            if ocw: a(ocw.pop(0))
        def wt(kind, tt):
            a(f"s_waitcnt vmcnt({need(kind, tt) if UNR else 4*(NB-1)})")
        if un < 64:
            if qi == 3: wt('K', tn)
            a(f"{MFMA} {vr(sn,16)}, {vr(KVB[tn%NB],4)}, {vr(Q+8*qn,4)}, 0")
        ex(0); ex(1); w_(); ex(2); ex(3)
        if un < 64:
            a(f"{MFMA} {vr(sn,16)}, {vr(KVB[tn%NB]+4,4)}, {vr(Q+8*qn+4,4)}, {vr(sn,16)}")
        if not UNR and qi == 2: issue(*order.pop(0))
        ex(4); ex(5); w_(); ex(6); ex(7)
        cv(0); cv(1)
        if up >= 0 or not UNR:
            if qi == 1: wt('V', t)
            a(f"{MFMA} {vr(O+16*qp,16)}, {vr(KVB[tp%NB]+8,4)}, {vr(pp,4)}, {vr(O+16*qp,16)}")
        ex(8); ex(9); w_(); ex(10); ex(11)
        cv(2); cv(3)
        if up >= 0 or not UNR:
            a(f"{MFMA} {vr(O+16*qp,16)}, {vr(KVB[tp%NB]+12,4)}, {vr(pp+4,4)}, {vr(O+16*qp,16)}")
        if UNR:
            quiet = OPT.get("QW0", 99) <= u <= OPT.get("QW1", -1)
            if order and free_at(*order[0]) <= u and not quiet:
                issue(*order.pop(0))
                if u > OPT.get("QW1", -1) >= 0 and order and free_at(*order[0]) <= u: issue(*order.pop(0))
        elif qi == 0: issue(*order.pop(0))
        ex(12); ex(13); w_(); ex(14); ex(15)
        cv(4); cv(5); cv(6); cv(7)
        if UNR:
            if u == OPT.get("AS1", 13):
                a("ds_write_b32 v248, v249")
                a("v_mov_b32 v249, 3")
            if u == OPT.get("ASU", 47):
                a("ds_write_b32 v248, v249")
            if u in (15, 31, 47):
                stamp(a, 3+2*(u//16), pv=6); stamp(a, 4+2*(u//16), True, pv=6)
            if u == 56:
                lds_wait(a, C_F1, 4, 4, 5)
                for wv in range(4):
                    lds_wait(a, C_A3 + 4*wv, 1, 4, 5)
            if u in (61, 62):
                i = u - 61
                ocw += [f"ds_write_b128 v{250+i}, {vr(O+16*i+4*r4,4)} offset:{4096*i+1024*r4}" for r4 in (0, 1, 2, 3)]
                ocw.insert(len(ocw)-4, "s_nop 0")
    if not UNR:
        a(f"""
        s_add_u32 s{sC}, s{sC}, 1
        ds_write_b32 v248, v249
        v_add_u32 v249, 1, v249
        s_cmp_lt_u32 s{sC}, {16//NB}
        s_cbranch_scc1 k_aloop
        """)
        for i in range(2):
            ocw += [f"ds_write_b128 v{250+i}, {vr(O+16*i+4*r4,4)} offset:{4096*i+1024*r4}" for r4 in (0, 1, 2, 3)]
    stamp(a, 8)
    stamp(a, 9, pv=6); stamp(a, 10, True, pv=6)
    if OPT.get("HPROF"): stamp(a, 10, True)
    stamp(a, 1, pv=7)
    a("s_setprio 3")
    a(f"{MFMA} {vr(O+48,16)}, {vr(KVB[15%NB]+8,4)}, {vr(PB[1],4)}, {vr(O+48,16)}")
    a(f"{MFMA} {vr(O+48,16)}, {vr(KVB[15%NB]+12,4)}, {vr(PB[1]+4,4)}, {vr(O+48,16)}")
    if not UNR: lds_wait(a, C_F1, 4, 4, 5)
    stamp(a, 2, pv=7)
    for x in ocw: a(x)
    for r4 in range(4):
        a(f"ds_write_b128 v252, {vr(O+32+4*r4,4)} offset:{8192+1024*r4}")
    lds_add(a, C_OC, 5, 6)
    stamp(a, 3, pv=7)
    oc_base(11, sW)
    a(f"""
    v_add_u32 v1, s11, v7
    s_lshl_b32 s7, s{sPass}, 2
    s_add_u32 s7, s7, 4
    """)
    lds_wait(a, C_OC, "s7", 4, 5)
    stamp(a, 4, pv=7)
    R = 104
    for i in range(12):
        a(f"ds_read_b128 {vr(R+4*i,4)}, v1 offset:{1024*i}")
    OK_ = O + 48
    for i in range(3):
        a(f"s_waitcnt lgkmcnt({8-4*i})")
        for p in range(16):
            a(f"v_add_f32 v{OK_+p}, v{OK_+p}, v{R+16*i+p}")
    OP = R
    stamp(a, 5, pv=7)
    a(f"""
    v_mov_b32 v4, v{OK_+12}
    v_mov_b32 v5, v{OK_+12}
    s_lshl_b32 s3, s{sQb}, 2
    s_add_u32 s3, s3, s{sW}
    v_permlane32_swap_b32 v4, v5
    s_lshl_b32 s3, s3, 4
    s_add_u32 s3, s3, s{sHead}
    v_rcp_f32 v4, v5
    s_lshl_b32 s7, s3, 11
    s_add_u32 s7, s7, {WS_OF}
    v_mul_f32 v4, v4, v{VG}
    s_lshl_b32 s11, s3, 3
    s_add_u32 s11, s11, {FL_O}
    """)
    for p in range(16):
        a(f"v_mul_f32 v{OK_+p}, v4, v{OK_+p}")
    for p in range(8):
        a(f"v_cvt_pk_bf16_f32 v{OP+p}, v{OK_+2*p}, v{OK_+2*p+1}")
    a(f"""
    s_cmp_lg_u32 s{sPub}, 0
    s_cbranch_scc1 k_a_done
    s_mov_b32 exec_lo, 0
    v_mov_b32 v{OP+6}, 0
    v_mov_b32 v{OP+7}, 0
    s_mov_b64 exec, -1
    buffer_store_dwordx4 {vr(OP,4)}, v7, {sr(SWS,4)}, s7 offen sc1
    buffer_store_dwordx4 {vr(OP+4,4)}, v7, {sr(SWS,4)}, s7 offen offset:1024 sc1
    """)
    stamp(a, 6, pv=7)
    for p in range(2, 16):
        a(f"v_add_f32 v{OK_+(p&1)}, v{OK_+(p&1)}, v{OK_+p}")
    a(f"""
    v_add_f32 v{OK_}, v{OK_}, v{OK_+1}
    v_mul_f32 v{OK_}, 0, v{OK_}
    v_add_f32 v5, v5, v{OK_}
    v_mov_b32 v6, {f2u(2.0**40):#x}
    v_cmp_nlt_f32 vcc, v5, v6
    s_cmp_lg_u32 s{sPass}, 0
    s_cbranch_scc1 k_a_pub
    s_cbranch_vccz k_a_pub
    v_mov_b32 v4, {C_BAD}
    v_mov_b32 v6, 1
    ds_write_b32 v4, v6
    s_branch k_a_sync
    """)
    a.lab("k_a_pub")
    stamp(a, 7, pv=7)
    a("s_waitcnt vmcnt(0)")
    stamp(a, 8, pv=7)
    publish(a, 11, 4)
    a(f"s_mov_b32 s{sPub}, 1")
    stamp(a, 9)
    a.lab("k_a_sync")
    a(f"""
    s_cmp_lg_u32 s{sPass}, 0
    s_cbranch_scc1 k_a_done
    """)
    lds_add(a, C_A2, 4, 5)
    lds_wait(a, C_A2, 4, 4, 5)
    a(f"""
    v_mov_b32 v4, {C_BAD}
    ds_read_b32 v6, v4
    s_waitcnt lgkmcnt(0)
    v_readfirstlane_b32 s3, v6
    s_cmp_lg_u32 s3, 0
    s_cbranch_scc1 k_fallback
    """)
    a.lab("k_a_done")
    flush(a, 0)
    a("s_endpgm")
    a.lab("k_fallback")
    MX = O
    a(f"""
    s_mov_b32 s{sPass}, 1
    s_waitcnt vmcnt(0)
    s_mov_b32 exec_lo, 0
    """)
    for i in range(4):
        a(f"v_mov_b32 v{Q+8*i+6}, 0")
        a(f"v_mov_b32 v{Q+8*i+7}, 0")
    a("s_mov_b64 exec, -1")
    for i in range(4):
        a(f"v_mov_b32 v{MX+i}, 0xff800000")
    a(f"s_mov_b32 s{sKo}, 0")
    a.lab("k_fbloop")
    ldK(0)
    a("s_waitcnt vmcnt(0)")
    for i in range(4):
        sb = SB[0]
        a(f"{MFMA} {vr(sb,16)}, {vr(KVB[0],4)}, {vr(Q+8*i,4)}, 0")
        a(f"{MFMA} {vr(sb,16)}, {vr(KVB[0]+4,4)}, {vr(Q+8*i+4,4)}, {vr(sb,16)}")
        a("s_nop 15")
        for r in range(0, 16, 2):
            a(f"v_max3_f32 v{MX+i}, v{MX+i}, v{sb+r}, v{sb+r+1}")
    a(f"""
    s_cmp_lt_u32 s{sKo}, 65536
    s_cbranch_scc1 k_fbloop
    """)
    for i in range(4):
        a(f"""
        s_add_u32 s3, s{sW}, {1+i}
        s_and_b32 s3, s3, 3
        s_lshl_b32 s3, s3, 10
        s_lshl_b32 s11, s{sW}, 8
        s_add_u32 s3, s3, s11
        v_lshl_add_u32 v4, v0, 2, s3
        ds_write_b32 v4, v{MX+i}
        """)
    lds_add(a, C_FB1, 4, 5)
    lds_wait(a, C_FB1, 4, 4, 5)
    for i in range(4):
        a(f"""
        s_add_u32 s3, s{sW}, {1+i}
        s_and_b32 s3, s3, 3
        s_lshl_b32 s3, s3, 10
        v_lshl_add_u32 v4, v2, 2, s3
        """)
        for k in range(8):
            a(f"ds_read_b32 v{MX+8+k}, v4 offset:{128*k}")
        a("s_waitcnt lgkmcnt(0)")
        a(f"""
        v_max3_f32 v5, v{MX+8}, v{MX+9}, v{MX+10}
        v_max3_f32 v5, v5, v{MX+11}, v{MX+12}
        v_max3_f32 v5, v5, v{MX+13}, v{MX+14}
        v_max_f32 v5, v5, v{MX+15}
        v_sub_f32 v5, 0, v5
        v_and_b32 v6, 0xffff0000, v5
        v_sub_f32 v6, v5, v6
        v_and_b32 v4, 0xffff0000, v6
        v_sub_f32 v4, v6, v4
        s_mov_b32 s3, 0x07060302
        s_mov_b32 exec_lo, 0
        v_perm_b32 v{Q+8*i+6}, v6, v5, s3
        v_lshrrev_b32 v{Q+8*i+7}, 16, v4
        s_mov_b64 exec, -1
        """)
    lds_add(a, C_FB2, 4, 5)
    lds_wait(a, C_FB2, 4, 4, 5)
    a("s_branch k_att_start")

    a.lab("k_F")
    GF = 112; AG = 48; XG = 64
    AF = 48
    W1R = 112
    XF = [16, 32, 224]
    WFr = [240, 244]
    TR0 = 12; TW0 = 13
    a(f"s_setprio {OPT['PRIO_F']}")
    srd(a, SDBG, 32, 256)
    a(f"""
    v_lshlrev_b32 v1, 2, v0
    v_add_u32 v1, {LCNT}, v1
    v_mov_b32 v15, 0
    ds_write_b32 v1, v15
    s_or_b32 s3, s2, s{sW}
    s_cmp_lg_u32 s3, 0
    s_cbranch_scc1 k_F_nonce_done
    s_memrealtime s[4:5]
    s_waitcnt lgkmcnt(0)
    s_or_b32 s4, s4, 1
    v_mov_b32 v18, s4
    v_mov_b32 v19, s5
    s_mov_b64 exec, 1
    buffer_store_dwordx2 v[18:19], v15, {sr(SDBG,4)}, 0 offen sc1
    s_mov_b64 exec, -1
    k_F_nonce_done:
    """)
    srd(a, SWS, 34, WS_SIZE)
    srd(a, SW1, 24, D*F*2)
    if OPT.get("CPF", 0):
        a(f"""
        s_getpc_b64 s[4:5]
        k_pc0:
        s_sub_u32 s60, s4, k_pc0-{NAME}
        s_subb_u32 s61, s5, 0
        s_mov_b32 s62, k_code_end-{NAME}
        s_mov_b32 s63, 0x00020000
        s_and_b32 s3, s{sIdx}, 1
        s_lshl_b32 s3, s3, 2
        s_add_u32 s3, s3, s{sW}
        s_lshl_b32 s3, s3, 13
        v_lshlrev_b32 v14, 7, v0
        buffer_load_dword v250, v14, s[60:63], s3 offen
        """)
    xa_setup()
    a(f"""
    s_cmp_ge_u32 s{sJ}, 14
    s_cbranch_scc1 k_gate
    v_lshrrev_b32 v14, 2, v0
    v_mul_u32_u24 v14, 3584, v14
    v_lshl_add_u32 v14, v6, 4, v14
    s_lshl_b32 s9, s{sJ}, 2
    s_add_u32 s9, s9, s{sW}
    s_lshl_b32 s10, s9, 6
    s_mul_i32 s3, s11, {64*3584}
    s_add_u32 s10, s10, s3
    s_sub_u32 s10, s10, {16*3584}
    """)
    if OPT.get("W1T", 1):
        a(f"""
        s_and_b32 s4, s{sMB}, 7
        s_mul_i32 s4, s4, 56
        s_mul_i32 s5, s{sW}, 14
        s_add_u32 s4, s4, s5
        s_mul_i32 s4, s4, 3584
        s_lshl_b32 s5, s{sJ}, 8
        s_add_u32 s4, s4, s5
        v_lshrrev_b32 v13, 1, v0
        v_mul_u32_u24 v13, 3584, v13
        v_and_b32 v15, 1, v0
        v_lshl_add_u32 v13, v15, 7, v13
        v_cmp_gt_u32 vcc, 28, v0
        v_bfrev_b32 v15, 1
        s_nop 0
        v_cndmask_b32 v13, v15, v13, vcc
        buffer_load_dword v251, v13, {sr(SW1,4)}, s4 offen
        """)
    def w1load(i):
        a(f"s_add_u32 s10, s10, {16*3584}")
        a(f"buffer_load_dwordx4 {vr(W1R+4*i,4)}, v14, {sr(SW1,4)}, s10 offen")
        if i % 4 == 3:
            a(f"""
            s_add_u32 s11, s11, 1
            s_cmp_eq_u32 s11, 7
            s_cselect_b32 s3, {448*3584}, 0
            s_sub_u32 s10, s10, s3
            """)
    for kk in range(4):
        a(f"v_add_u32 v{XA+kk}, {XBASE}, v{XA+kk}")
    a(f"""
    v_lshl_add_u32 v15, v3, 3, v4
    v_lshlrev_b32 v15, 6, v15
    v_lshl_add_u32 v15, v5, 5, v15
    v_lshl_add_u32 v15, v6, 3, v15
    s_lshl_b32 s4, s{sW}, 11
    s_add_u32 s4, s4, {W1E}
    v_add_u32 v{TR0}, s4, v15
    v_add_u32 v{TW0}, s4, v7
    """)
    zero_acc(AF, 4, 16)
    W1A = OPT.get("W1A", 28)
    LAG = OPT.get("LAG", 6)
    W1S = OPT.get("W1S", 1)
    if W1S == 0:
        for i in range(W1A): w1load(i)
    a("s_waitcnt lgkmcnt(0)")
    a("s_barrier")
    if W1S:
        lds_wait(a, C_S, 4*W1S, 1, 15, sleep=1)
        for i in range(W1A): w1load(i)
    stamp(a, 1)
    w1n = [W1A]
    def f_stage_l(i):
        return [f"s_waitcnt vmcnt({w1n[0]-1-i})", f"ds_write_b128 v{TW0}, {vr(W1R+4*i,4)} offset:{1024*(i%2)}"]
    def f_xreads_l(i):
        b = XF[i % 3]
        c, kk = i // 4, i % 4
        return [f"ds_read_b128 {vr(b+4*mt,4)}, v{XA+kk} offset:{(c%4)*16384+4096*mt}" for mt in range(4)]
    def f_wreads_l(i):
        w = WFr[i % 2]
        return [f"ds_read_b64_tr_b16 {vr(w+2*u,2)}, v{TR0} offset:{1024*(i%2)+256*u}" for u in range(2)]
    def f_mfma_l(i):
        b = XF[i % 3]; w = WFr[i % 2]
        return [f"{MFMA} {vr(AF+16*mt,16)}, {vr(w,4)}, {vr(b+4*mt,4)}, {vr(AF+16*mt,16)}" for mt in range(4)]
    for x in f_stage_l(0) + f_wreads_l(0) + f_stage_l(1): a(x)
    lds_wait(a, C_S, 4*min(7, 1+LAG), 1, 15, sleep=1)
    stamp(a, 2)
    for x in f_xreads_l(0) + f_xreads_l(1): a(x)
    for t in range(28):
        n = (4 if t == 0 else 5) if t + 1 < 28 else 0
        a(f"s_waitcnt lgkmcnt({n})")
        M = f_mfma_l(t)
        Wr = f_wreads_l(t+1) if t + 1 < 28 else []
        R = f_xreads_l(t+2) if t + 2 < 28 else []
        a(M[0])
        for x in Wr: a(x)
        W1G = OPT.get("W1G", 8)
        if t == W1G and w1n[0] < 28 and W1G > 0:
            lds_wait(a, C_QX, 4, 1, 15)
        if w1n[0] < 28 and t >= W1G:
            w1load(w1n[0]); w1n[0] += 1
            if W1G > 0 and w1n[0] < 28:
                w1load(w1n[0]); w1n[0] += 1
        a(M[1])
        if (t + 2) % 4 == 0 and t + 2 < 28 and (t+2)//4+LAG < 7:
            lds_wait(a, C_S, 4*min(7, (t+2)//4+1+LAG), 1, 15, sleep=1)
            stamp(a, 2+(t+2)//4, pv=2)
        if t + 2 == 16:
            for k2 in range(4):
                a(f"v_add_u32 v{XA+k2}, 0x10000, v{XA+k2}")
        for x in R[0:2]: a(x)
        a(M[2])
        for x in R[2:4]: a(x)
        a(M[3])
        if t + 2 < 28:
            for x in f_stage_l(t+2): a(x)
    stamp(a, 3)
    stamp(a, 6, pv=2)
    stamp(a, 5, pv=3); stamp(a, 6, True, pv=3)
    lds_wait(a, C_Q, 4, 12, 13, sleep=1)
    lds_add(a, C_F1, 12, 13)
    nonce_issue(a, 232)
    a(f"""
    s_mov_b32 s4, {f2u(-LOG2E):#x}
    s_mov_b32 s5, {f2u(-LOG2E):#x}
    s_mov_b32 s6, 1.0
    s_mov_b32 s7, 1.0
    s_lshl_b32 s3, s{sMB}, 2
    s_mul_i32 s3, s3, 56
    s_add_u32 s3, s3, s9
    s_lshl_b32 s3, s3, 11
    s_add_u32 s8, s3, {WS_HF}
    s_lshl_b32 s3, s{sMB}, 9
    s_lshl_b32 s10, s9, 3
    s_add_u32 s10, s10, s3
    s_add_u32 s10, s10, {FL_H}
    """)
    T = 16
    for mt in range(4):
        acc = AF + 16*mt
        HP = 112 + 8*mt
        for g in range(2):
            prs = [4*g+i for i in range(4)]
            if OPT.get("PK", 0):
                for i, p in enumerate(prs):
                    a(f"v_pk_mul_f32 {vr(T+2*i,2)}, {vr(acc+2*p,2)}, s[4:5]")
                for i in range(8):
                    a(f"v_exp_f32 v{T+i}, v{T+i}")
                for i in range(4):
                    a(f"v_pk_add_f32 {vr(T+2*i,2)}, {vr(T+2*i,2)}, s[6:7]")
                for i in range(8):
                    a(f"v_rcp_f32 v{T+i}, v{T+i}")
                for i, p in enumerate(prs):
                    a(f"v_pk_mul_f32 {vr(T+2*i,2)}, {vr(acc+2*p,2)}, {vr(T+2*i,2)}")
            else:
                for i in range(8):
                    a(f"v_mul_f32 v{T+i}, s4, v{acc+8*g+i}")
                for i in range(8):
                    a(f"v_exp_f32 v{T+i}, v{T+i}")
                for i in range(8):
                    a(f"v_add_f32 v{T+i}, 1.0, v{T+i}")
                for i in range(8):
                    a(f"v_rcp_f32 v{T+i}, v{T+i}")
                for i in range(8):
                    a(f"v_mul_f32 v{T+i}, v{acc+8*g+i}, v{T+i}")
            for i, p in enumerate(prs):
                a(f"v_cvt_pk_bf16_f32 v{HP+p}, v{T+2*i}, v{T+2*i+1}")
            if not OPT.get("HD", 1):
                a(f"buffer_store_dwordx4 {vr(HP+4*g,4)}, v7, {sr(SWS,4)}, s8 offen offset:{g*1024} sc1")
        if not OPT.get("HD", 1):
            a(f"s_add_u32 s8, s8, {56*2048}")
    if OPT.get("HD", 1):
        stamp(a, 4)
        a(f"""
        s_lshl_b32 s3, s{sW}, 2
        s_add_u32 s3, s3, {C_A3}
        """)
        lds_wait(a, "s3", OPT.get("HG", 1), 16, 17, sleep=OPT.get("FSL", 4))
        for mt in range(4):
            for g in range(2):
                a(f"buffer_store_dwordx4 {vr(112+8*mt+4*g,4)}, v7, {sr(SWS,4)}, s8 offen offset:{g*1024} sc1")
            a(f"s_add_u32 s8, s8, {56*2048}")
            if OPT.get("HT", 1): a("s_waitcnt vmcnt(0)")
    if not OPT.get("HD", 1): stamp(a, 4)
    stamp(a, 7, pv=2)
    stamp(a, 7, pv=3); stamp(a, 8, True, pv=3)
    nonce_get(a, 232)
    publish(a, 10, 16)
    a("s_branch k_ffn2")
    a.lab("k_gate")
    a(f"""
    s_cmp_eq_u32 s{sJ}, 15
    s_cbranch_scc1 k_f15
    v_lshlrev_b32 v14, 4, v3
    """)
    srd(a, SG, 28, D*2)
    for c in range(7):
        a("s_lshl_b32 s10, s11, 7")
        for kk in range(4):
            a(f"buffer_load_dwordx4 {vr(GF+4*(4*c+kk),4)}, v14, {sr(SG,4)}, s10 offen offset:{kk*32}")
        a("""
        s_add_u32 s11, s11, 1
        s_cmp_eq_u32 s11, 7
        s_cselect_b32 s11, 0, s11
        """)
    a(f"""
    s_lshl_b32 s3, s{sW}, 12
    s_add_u32 s3, s3, {XBASE}
    """)
    for kk in range(4):
        a(f"v_add_u32 v{XA+kk}, s3, v{XA+kk}")
    zero_acc(AG, 1, 16)
    a("s_waitcnt lgkmcnt(0)")
    a("s_barrier")
    a("s_waitcnt vmcnt(0)")
    nonce_issue(a, 232)
    for c in range(7):
        lds_wait(a, C_S, 4*(c+1), 1, 15, sleep=1)
        for kk in range(4):
            a(f"ds_read_b128 {vr(XG+4*kk,4)}, v{XA+kk}")
            a(f"v_add_u32 v{XA+kk}, 0x4000, v{XA+kk}")
        for kk in range(4):
            a(f"s_waitcnt lgkmcnt({3-kk})")
            a(f"{MFMA} {vr(AG,16)}, {vr(GF+4*(4*c+kk),4)}, {vr(XG+4*kk,4)}, {vr(AG,16)}")
    a(f"""
    s_lshl_b32 s3, s{sMB}, 9
    s_lshl_b32 s4, s{sW}, 7
    s_add_u32 s4, s3, s4
    s_add_u32 s4, s4, {WS_G}
    s_lshl_b32 s10, s{sW}, 3
    s_add_u32 s10, s10, s3
    s_add_u32 s10, s10, {FL_H + 56*8}
    v_lshlrev_b32 v13, 2, v2
    s_nop 7
    v_mul_f32 v14, {f2u(-LOG2E):#x}, v{AG}
    v_exp_f32 v14, v14
    s_nop 0
    v_add_f32 v14, 1.0, v14
    v_rcp_f32 v14, v14
    s_nop 0
    buffer_store_dword v14, v13, {sr(SWS,4)}, s4 offen sc1
    """)
    nonce_get(a, 232)
    publish(a, 10, 16)
    lds_wait(a, C_Q, 4, 1, 15, sleep=1)
    lds_add(a, C_F1, 12, 13)
    a("s_branch k_ffn2")
    a.lab("k_f15")
    a("s_waitcnt lgkmcnt(0)")
    a("s_barrier")
    lds_wait(a, C_Q, 4, 12, 13, sleep=1)
    lds_add(a, C_F1, 12, 13)
    nonce_issue(a, 232)
    nonce_get(a, 232)
    a.lab("k_ffn2")
    stamp(a, 5)
    ACC = 16; WOF = 176; OFR = 80
    FD = OPT.get("FD", 3)
    HBr = [112 + 16*i for i in range(FD)]
    WF2 = [80, 96]
    VD = 8; TA = 14
    sRb, sCb, sM0, sWo, sHo, sHo1, sT3 = 4, 5, 6, 7, 8, 9, 11
    srd(a, SW2, 26, F*D*2)
    srd(a, SWO, 20, D*D*2)
    if OPT.get("FT", 1):
        a(f"""
        s_lshl_b32 s3, s{sIdx}, 2
        s_add_u32 s3, s3, s{sW}
        s_mul_i32 s5, s3, {25*128}
        s_mul_i32 s4, s3, {98*128}
        v_lshlrev_b32 v28, 7, v0
        v_add_u32 v29, 8192, v28
        v_cmp_gt_u32 vcc, 34, v0
        v_bfrev_b32 v15, 1
        v_mov_b32 v30, v28
        v_cndmask_b32 v29, v15, v29, vcc
        v_cmp_gt_u32 vcc, 25, v0
        s_nop 1
        v_cndmask_b32 v30, v15, v30, vcc
        """)
        a(f"""
        s_lshl_b32 s10, s{sW}, 2
        s_add_u32 s10, s10, {C_A3}
        """)
        lds_wait(a, "s10", OPT.get("TG", 2), 80, 81, sleep=OPT.get("FSL", 4))
        a(f"""
        buffer_load_dword v240, v28, {sr(SW2,4)}, s4 offen
        {"s_waitcnt vmcnt(0)" if OPT.get("HT", 1) else ""}
        buffer_load_dword v241, v29, {sr(SW2,4)}, s4 offen
        buffer_load_dword v242, v30, {sr(SWO,4)}, s5 offen
        s_waitcnt vmcnt(0)
        """)
    if OPT.get("XM", 0):
        a(f"""
        s_sub_u32 s3, s{sX}, 4
        s_cmp_lt_u32 s3, 2
        s_cbranch_scc1 k_f_late
        s_cmp_ge_u32 s{sX}, 6
        s_cselect_b32 s3, 2, 0
        s_sub_u32 s3, s{sX}, s3
        s_lshl_b32 s3, s3, 5
        s_add_u32 s3, s3, s{sIdx}
        s_branch k_f_tile
        k_f_late:
        s_cmp_lt_u32 s{sIdx}, 16
        s_cbranch_scc1 k_f_done
        s_lshl_b32 s3, s3, 4
        s_add_u32 s3, s3, s{sIdx}
        s_add_u32 s3, s3, 176
        k_f_tile:
        s_mul_i32 s{sRb}, s3, 293
        s_lshr_b32 s{sRb}, s{sRb}, 11
        s_mul_i32 s{sT}, s{sRb}, 7
        s_sub_u32 s{sCb}, s3, s{sT}
        """)
    else:
        a(f"""
        s_cmp_ge_u32 s{sIdx}, {0 if OPT.get('NOF2') else 28}
        s_cbranch_scc1 k_f_done
        s_mul_i32 s3, s{sIdx}, 37
        s_lshr_b32 s3, s3, 8
        s_mul_i32 s{sT}, s3, 7
        s_sub_u32 s{sCb}, s{sIdx}, s{sT}
        s_lshl_b32 s{sRb}, s{sX}, 2
        s_add_u32 s{sRb}, s{sRb}, s3
        """)
    srd(a, SOUT, 30, S*D*2)
    a(f"""
    v_lshrrev_b32 v1, 3, v0
    v_mul_u32_u24 v1, 896, v1
    v_bfe_u32 v12, v0, 2, 1
    v_xor_b32 v12, v12, v5
    v_lshl_add_u32 v1, v12, 6, v1
    v_lshl_add_u32 v{VD}, v6, 4, v1
    v_add_u32 v{VD+1}, 6144, v{VD}
    v_add_u32 v{VD+2}, {2*6144}, v{VD}
    v_add_u32 v{VD+3}, {3*6144}, v{VD}
    s_mul_i32 s{sM0}, s{sW}, {RING}
    s_add_u32 s{sM0}, s{sM0}, {RING0}
    v_lshl_add_u32 v1, v3, 2, v4
    v_lshlrev_b32 v1, 7, v1
    v_lshl_add_u32 v1, v5, 5, v1
    v_lshl_add_u32 v1, v6, 3, v1
    v_add_u32 v1, s{sM0}, v1
    v_bfe_u32 v13, v0, 3, 1
    v_lshl_add_u32 v{TA}, v13, 6, v1
    v_xor_b32 v13, 1, v13
    v_lshl_add_u32 v{TA+1}, v13, 6, v1
    s_mul_i32 s{sWo}, s{sW}, {448*896}
    s_lshl_b32 s3, s{sCb}, 7
    s_add_u32 s{sWo}, s{sWo}, s3
    s_mul_i32 s3, s{sRb}, 112
    s_mul_i32 s{sT}, s{sW}, 14
    s_add_u32 s3, s3, s{sT}
    s_lshl_b32 s3, s3, 11
    s_add_u32 s{sHo}, s3, {WS_HF}
    s_add_u32 s{sHo1}, s{sHo}, {56*2048}
    s_mov_b32 s{sT3}, s{sM0}
    """)
    a(f"""
    s_and_b32 s3, s{sRb}, 1
    s_lshl_b32 s3, s3, 4
    v_lshlrev_b32 v1, 4, v0
    v_add_u32 v13, s3, v1
    v_cmp_gt_u32 vcc, 28, v0
    s_lshr_b32 s3, s{sRb}, 1
    s_lshl_b32 s3, s3, 9
    v_cndmask_b32 v1, v13, v1, vcc
    s_add_u32 s10, s3, {FL_H}
    v_mul_u32_u24 v4, 7, v0
    v_add_u32 v4, s{sCb}, v4
    v_cmp_le_u32 vcc, 224, v4
    v_lshlrev_b32 v4, 7, v4
    v_add_u32 v5, {56*2048 - 224*128}, v4
    v_lshlrev_b32 v6, 2, v2
    v_cndmask_b32 v4, v4, v5, vcc
    """)
    zero_acc(ACC, 4, 80)
    lds_wait(a, C_F1, 4, 80, 81, sleep=1)
    def wdma_l(i):
        L = [f"s_add_u32 m0, s{sM0}, {4096*(i % (FD+1))}\n s_nop 0\n buffer_load_dwordx4 v{VD}, {sr(SW2,4)}, s{sWo} offen lds"]
        for k in range(1, 4):
            L.append(f"buffer_load_dwordx4 v{VD+k}, {sr(SW2,4)}, s{sWo} offen offset:{1024*k} lds")
        L[-1] += f"\n s_add_u32 s{sWo}, s{sWo}, {32*896}"
        return L
    def hld_l(i):
        hb = HBr[i % FD]
        L = []
        for kk in range(2):
            for mi in range(2):
                L.append(f"buffer_load_dwordx4 {vr(hb+8*mi+4*kk,4)}, v7, {sr(SWS,4)}, s{sHo if mi == 0 else sHo1} offen offset:{2048*(i%2)+1024*kk} sc1")
        if i % 2 == 1:
            L[-1] += f"\n s_add_u32 s{sHo}, s{sHo}, 4096\n s_add_u32 s{sHo1}, s{sHo1}, 4096"
        return L
    def tread_list(dst, off):
        L = []
        for kk in range(2):
            for ni in range(2):
                for u in range(2):
                    L.append(f"ds_read_b64_tr_b16 {vr(dst(ni,kk)+2*u,2)}, v{TA+ni} offset:{off+(16*kk+8*u)*128}")
        return L
    def treads(dst, off):
        for x in tread_list(dst, off): a(x)
    a(f"""
    s_mul_i32 s15, s{sW}, {4*28*896}
    s_lshl_b32 s3, s{sCb}, 7
    s_add_u32 s15, s15, s3
    """)
    for hl in range(4):
        a(f"s_add_u32 m0, s{sM0}, {4096*hl}")
        a("s_nop 0")
        for i in range(4):
            a(f"buffer_load_dwordx4 v{VD+i}, {sr(SWO,4)}, s15 offen offset:{1024*i} lds")
        a(f"s_add_u32 s15, s15, {28*896}")
    for hl in range(4):
        a(f"s_waitcnt vmcnt({12-4*hl})")
        treads(lambda ni,kk: WOF+16*hl+8*kk+4*ni, 4096*hl)
        a("s_waitcnt lgkmcnt(4)")
    a("s_waitcnt lgkmcnt(0)")
    for i in range(FD):
        for x in wdma_l(i): a(x)
    a(f"""
    s_cmp_lg_u32 s{sW}, 0
    s_cbranch_scc1 k_f_w
    """)
    poll4(a, 29, 1, 10, 80, slp=OPT.get('PS5', 3))
    lds_add(a, C_H, 80, 81)
    a("s_branch k_f_go")
    a.lab("k_f_w")
    lds_wait(a, C_H, 1, 80, 81, sleep=2)
    a.lab("k_f_go")
    stamp(a, 6)
    a(f"s_setprio {OPT.get('PRIO_F2', 0)}")
    a(f"""
    s_lshl_b32 s3, s{sRb}, 8
    s_add_u32 s3, s3, {WS_G}
    """)
    ops = []
    for x in hld_l(0): a(x); ops.append(("h", 0))
    if OPT["TOUCH"]:
        a(f"buffer_load_dword v5, v4, {sr(SWS,4)}, s{sHo} offen sc1"); ops.append(("t", 0))
    for i in range(1, FD):
        for x in hld_l(i): a(x); ops.append(("h", i))
    a(f"buffer_load_dword v1, v6, {sr(SWS,4)}, s3 offen sc1"); ops.append(("g", 0))
    a(f"buffer_load_dword v13, v6, {sr(SWS,4)}, s3 offen offset:128 sc1"); ops.append(("g", 0))
    def newer(tag):
        idx = [k for k, o in enumerate(ops) if o == tag]
        return len(ops) - 1 - idx[-1] if idx else None
    treads(lambda ni,kk: WF2[0]+8*ni+4*kk, 0) if False else None
    if OPT.get("ASIG", 3) > 0:
        a(f"""
        s_lshl_b32 s10, s{sW}, 2
        s_add_u32 s10, s10, {C_A3}
        """)
        lds_wait(a, "s10", 3 if OPT.get("UNR", 0) else OPT.get("ASI", 3)+1, 240, 241, sleep=OPT.get("FSL", 4))
        stamp(a, 2, pv=0) if False else None
    a(f"s_waitcnt vmcnt({len(ops)})")
    treads(lambda ni,kk: WF2[0]+8*ni+4*kk, 0)
    for i in range(14):
        b = i % 2
        need = [newer(("h", i))]
        if i + 1 < 14 and newer(("w", i+1)) is not None: need.append(newer(("w", i+1)))
        a(f"s_waitcnt vmcnt({min(need)}) lgkmcnt(0)")
        rl = tread_list(lambda ni,kk: WF2[1-b]+8*ni+4*kk, 4096*((i+1) % (FD+1))) if i + 1 < 14 else []
        wl = wdma_l(i+FD) if i + FD < 14 else []
        hl_ = hld_l(i+FD) if i + FD < 14 else []
        m = 0
        for kk in range(2):
            for mi in range(2):
                for ni in range(2):
                    acc = ACC + 16*(2*mi+ni)
                    hb = HBr[i % FD]
                    a(f"{MFMA} {vr(acc,16)}, {vr(WF2[b]+8*ni+4*kk,4)}, {vr(hb+8*mi+4*kk,4)}, {vr(acc,16)}")
                    if rl and m < 4:
                        a(rl[2*m]); a(rl[2*m+1])
                    if wl and m < 4:
                        a(wl[m]); ops.append(("w", i+FD))
                    if hl_ and m in (4, 5):
                        a(hl_[m-4]); ops.append(("h", i+FD))
                    if hl_ and m == 7:
                        a(hl_[2]); a(hl_[3]); ops.append(("h", i+FD)); ops.append(("h", i+FD))
                    m += 1
    a("s_waitcnt vmcnt(0) lgkmcnt(0)")
    stamp(a, 7)
    a("s_setprio 2")
    a(f"""
    v_sub_f32 v4, 1.0, v1
    v_sub_f32 v6, 1.0, v13
    s_nop 7
    """)
    for mi in range(2):
        for r in range(32):
            a(f"v_mul_f32 v{ACC+32*mi+r}, v{4+2*mi}, v{ACC+32*mi+r}")
    a(f"""
    v_lshrrev_b32 v1, 2, v0
    v_lshlrev_b32 v1, 7, v1
    v_and_b32 v13, 3, v0
    v_lshl_add_u32 v1, v13, 3, v1
    s_lshl_b32 s3, s{sRb}, 8
    s_lshl_b32 s{sT}, s{sW}, 5
    s_add_u32 s3, s3, s{sT}
    s_add_u32 s{sT}, s3, {FL_O}
    s_lshl_b32 s3, s{sRb}, 5
    s_lshl_b32 s{sHo}, s{sW}, 2
    s_add_u32 s3, s3, s{sHo}
    s_lshl_b32 s3, s3, 11
    s_add_u32 s{sHo}, s3, {WS_OF}
    s_add_u32 s{sWo}, s{sHo}, 32768
    s_waitcnt vmcnt(0)
    """)
    stamp(a, 8)
    lds_wait(a, C_A2, OPT.get('PS4', 4), 8, 9, sleep=1)
    a("s_setprio 3")
    if OPT.get("PP", 0):
        pollp(a, 8, 1, sT, [160, 162, 164], False, OPT.get("PPS", 3))
    else:
        poll(a, 8, 1, sT, 8, slp=OPT.get('PS2', 3))
    stamp(a, 9)
    stamp(a, 1, pv=7)
    for hl in range(4):
        if hl == 2:
            a(f"s_add_u32 s{sHo}, s{sHo}, 4096")
            a(f"s_add_u32 s{sWo}, s{sWo}, 4096")
        for kk in range(2):
            for mi in range(2):
                so = sHo if mi == 0 else sWo
                a(f"buffer_load_dwordx4 {vr(OFR+16*hl+8*kk+4*mi,4)}, v7, {sr(SWS,4)}, s{so} offen offset:{2048*(hl&1)+1024*kk} sc1")
    n = 16
    for hl in range(4):
        for kk in range(2):
            n -= 2
            a(f"s_waitcnt vmcnt({n})")
            if n == 14: stamp(a, 2, pv=7)
            for mi in range(2):
                for ni in range(2):
                    acc = ACC + 16*(2*mi+ni)
                    a(f"{MFMA} {vr(acc,16)}, {vr(WOF+16*hl+8*kk+4*ni,4)}, {vr(OFR+16*hl+8*kk+4*mi,4)}, {vr(acc,16)}")
    stamp(a, 3, pv=7)
    a(f"""
    v_add_u32 v4, s{sT3}, v7
    s_lshl_b32 s3, s{sW}, 12
    s_add_u32 s3, s3, {RING0}
    v_add_u32 v5, s3, v7
    s_nop 7
    """)
    RR = 80
    for wv in range(4):
        a(f"s_cmp_lg_u32 s{sW}, {wv}")
        a(f"s_cbranch_scc1 k_red{wv}_skip")
        for t in range(4):
            if t == wv: continue
            for r4 in range(4):
                a(f"ds_write_b128 v4, {vr(ACC+16*t+4*r4,4)} offset:{4096*t+1024*r4}")
        for r in range(16):
            a(f"v_mov_b32 v{128+r}, v{ACC+16*wv+r}")
        a.lab(f"k_red{wv}_skip")
    lds_add(a, C_RED, 8, 9)
    stamp(a, 4, pv=7)
    a(f"""
    s_lshr_b32 s3, s{sW}, 1
    s_lshl_b32 s3, s3, 5
    s_lshl_b32 s{sT}, s{sRb}, 6
    s_add_u32 s3, s3, s{sT}
    s_mul_i32 s3, s3, 896
    s_lshl_b32 s{sT}, s{sCb}, 7
    s_add_u32 s3, s3, s{sT}
    s_and_b32 s{sT}, s{sW}, 1
    s_lshl_b32 s{sT}, s{sT}, 6
    s_add_u32 s{sT}, s3, s{sT}
    v_mul_u32_u24 v4, 896, v2
    v_lshrrev_b32 v6, 5, v0
    v_lshl_add_u32 v4, v6, 4, v4
    """)
    lds_wait(a, C_RED, 4, 8, 9)
    stamp(a, 5, pv=7)
    for i in range(3):
        a(f"""
        s_add_u32 s3, s{sW}, {1+i}
        s_and_b32 s3, s3, 3
        s_mul_i32 s3, s3, {RING}
        v_add_u32 v6, s3, v5
        """)
        for r4 in range(4):
            a(f"ds_read_b128 {vr(RR+16*i+4*r4,4)}, v6 offset:{1024*r4}")
    for i in range(3):
        a(f"s_waitcnt lgkmcnt({8-4*i})")
        for p in range(8):
            a(f"v_pk_add_f32 {vr(128+2*p,2)}, {vr(128+2*p,2)}, {vr(RR+16*i+2*p,2)}")
    for p in range(8):
        a(f"v_cvt_pk_bf16_f32 v{16+p}, v{128+2*p}, v{128+2*p+1}")
    a(f"""
    s_nop 1
    v_permlane32_swap_b32 v16, v18
    v_permlane32_swap_b32 v17, v19
    v_permlane32_swap_b32 v20, v22
    v_permlane32_swap_b32 v21, v23
    buffer_store_dwordx4 v[16:19], v4, {sr(SOUT,4)}, s{sT} offen {["", "sc1", "nt", "sc0 sc1"][OPT.get("OS", 0)]}
    buffer_store_dwordx4 v[20:23], v4, {sr(SOUT,4)}, s{sT} offen offset:32 {["", "sc1", "nt", "sc0 sc1"][OPT.get("OS", 0)]}
    """)
    stamp(a, 6, pv=7)
    if PROF:
        a("s_waitcnt vmcnt(0)"); stamp(a, 10); stamp(a, 7, pv=7)
    a.lab("k_f_done")
    flush(a, 4)
    a("s_endpgm")
    a.lab("k_end")
    a("s_endpgm")
    a.lab("k_code_end")

def main(out):
    a = A()
    gen(a)
    txt = """; gated_mix: out = g * (softmax-MHA(x) @ wo) + (1-g) * (silu(x @ w1) @ w2),  g = sigmoid(x . gate_w)
"""
    txt += f"; @launch grid=(256,1,1) block=(512,1,1) lds={LDS_BYTES}\n"
    txt += '.amdgcn_target "amdgcn-amd-amdhsa--gfx950"\n.text\n'
    txt += a.text()
    txt += f""".section .rodata,"a"
.p2align 6
.amdhsa_kernel {NAME}
  .amdhsa_next_free_vgpr 256
  .amdhsa_next_free_sgpr 102
  .amdhsa_accum_offset 256
  .amdhsa_group_segment_fixed_size 0
  .amdhsa_kernarg_size 80
  .amdhsa_user_sgpr_count 2
  .amdhsa_user_sgpr_kernarg_segment_ptr 1
  .amdhsa_system_sgpr_workgroup_id_x 1
.end_amdhsa_kernel
"""
    open(out, "w").write(txt)

if __name__ == "__main__":
    main(sys.argv[1] if len(sys.argv) > 1 else "f.s")
```

```python
import math, struct, sys, os

def f2u(x):
    return struct.unpack("<I", struct.pack("<f", x))[0]

S, D, H, DH, F = 2048, 448, 16, 28, 1792
WS_QF = 0
WS_KV = 2 << 20
WS_HF = 6 << 20
WS_OF = 14 << 20
WS_G  = 16 << 20
WS_FL = (16 << 20) + 65536
FL_KV = WS_FL
FL_H  = WS_FL + 8192
FL_O  = WS_FL + 16384
WS_SIZE = (16 << 20) + 131072
PROF = int(os.environ.get("PROF", "0"))
WS_PROF = WS_SIZE
if PROF:
    WS_SIZE = WS_PROF + 2*256*8*64
OPT = dict(NB=6, UNR=1, ASU=39, TOUCH=1, PRIO_A=1, PRIO_F=2)
for kv in os.environ.get("OPT", "").split(","):
    if "=" in kv:
        k, v = kv.split("="); OPT[k] = int(v)

LOG2E = 1.4426950408889634
QSCALE = (DH ** -0.5) * LOG2E
NAME = "gated_mix__softmax_full_mha__dense_activation_silu__prompt_kernel"

class A:
    def __init__(self):
        self.l = []
        self.n = 0
    def __call__(self, s):
        for x in s.strip("\n").split("\n"):
            x = x.strip()
            if not x: continue
            self.l.append(x if x.endswith(":") else "  " + x)
    def lab(self, s):
        self.l.append(s + ":")
    def uniq(self, p):
        self.n += 1
        return f"{p}_{self.n}"
    def text(self):
        return "\n".join(self.l) + "\n"

def vr(b, n): return f"v[{b}:{b+n-1}]" if n > 1 else f"v{b}"
def sr(b, n): return f"s[{b}:{b+n-1}]" if n > 1 else f"s{b}"
MFMA = "v_mfma_f32_32x32x16_bf16"

SX, SWQ, SWS, SW1, SW2, SWO, SOUT, SG, SDBG = 36, 40, 44, 48, 52, 56, 60, 64, 68
SKV = 48
sMB, sJ, sW, sX, sIdx, sC, sK, sT = 72, 73, 74, 75, 76, 77, 78, 79
sE = 12
XBASE = 49152
QSLOT = 12288
LCNT = 36864
C_F1, C_OC, C_BAD, C_A2, C_RED, C_FB1, C_FB2, C_Q, C_KV, C_H, C_QX, C_S, C_R = [LCNT + 4*i for i in range(13)]
C_A3 = LCNT + 64
QXB = 12288
W1E = LCNT + 1024
RING0 = 40960
RING = 24576
OC3 = RING0 + 4*RING
LDS_BYTES = 163840

def srd(a, d, base, nbytes):
    a(f"s_mov_b32 s{d}, s{base}")
    a(f"s_mov_b32 s{d+1}, s{base+1}")
    a(f"s_mov_b32 s{d+2}, {nbytes}")
    a(f"s_mov_b32 s{d+3}, 0x00020000")

PV = OPT.get("PV", 0)
def stamp(a, i, cyc=False, pv=0):
    if PROF and (pv == PV or i == 0):
        assert 0 <= i < 11
        a(f"{'s_memtime' if cyc else 's_memrealtime'} s[{80+2*i}:{81+2*i}]")
def flush(a, wadd):
    if not PROF: return
    if OPT.get("HPROF"):
        L = a.uniq("hp")
        a("s_waitcnt lgkmcnt(0)")
        a(f"s_or_b32 s3, s2, s{sW}")
        a(f"s_cmp_lg_u32 s3, {OPT.get('HWG', 0)}")
        a(f"s_cbranch_scc1 {L}")
        sel = [2, 3, 7, 8, 9, 1, 10] if wadd == 0 else [2, 3, 4, 6, 7, 9, 10]
        a("s_mov_b64 exec, 1")
        a("v_mov_b32 v28, 0")
        for k, i in enumerate(sel):
            if wadd == 0 and i == 1:
                continue
            if wadd == 0 and i == 10:
                a(f"s_sub_u32 s3, s{80+2*10}, s{80+2*1}")
            else:
                a(f"s_sub_u32 s3, s{80+2*i}, s80")
            a(f"v_mov_b32 v16, s3")
            a(f"buffer_store_dword v16, v28, {sr(SDBG,4)}, 0 offen offset:{8+4*k+(28 if wadd else 0)}")
        a.lab(L)
        return
    a("s_waitcnt lgkmcnt(0)")
    a(f"s_lshl_b32 s3, s2, 3")
    a(f"s_add_u32 s3, s3, s{sW}")
    a(f"s_add_u32 s3, s3, {wadd}")
    a(f"s_lshl_b32 s3, s3, 6")
    a(f"s_add_u32 s3, s3, {WS_PROF}")
    a("s_mov_b64 exec, 1")
    a("s_nop 4")
    for i in range(11):
        a(f"v_mov_b32 v{16+i}, s{80+2*i}")
    a("v_mov_b32 v27, 0")
    a("v_mov_b32 v28, 0")
    for i in range(3):
        a(f"buffer_store_dwordx4 v[{16+4*i}:{19+4*i}], v28, {sr(SWS,4)}, s3 offen offset:{16*i}")

def lds_add(a, cnt, vt0, vt1):
    a(f"""
    v_mov_b32 v{vt0}, {cnt}
    v_mov_b32 v{vt1}, 1
    s_mov_b64 exec, 1
    ds_add_u32 v{vt0}, v{vt1}
    s_mov_b64 exec, -1
    """)
def lds_wait(a, cnt, target, vt0, vt1, sleep=0):
    L = a.uniq("lw"); E = a.uniq("lwe")
    a(f"v_mov_b32 v{vt0}, {cnt}")
    a(f"s_mov_b32 s14, 0")
    a.lab(L)
    a(f"""
    ds_read_b32 v{vt1}, v{vt0}
    s_add_u32 s14, s14, 1
    s_waitcnt lgkmcnt(0)
    v_readfirstlane_b32 s15, v{vt1}
    s_cmp_gt_u32 s14, 0x200000
    s_cbranch_scc1 {E}
    s_cmp_ge_u32 s15, {target}
    s_cbranch_scc1 {E}
    {f"s_sleep {sleep}" if sleep else ""}
    s_branch {L}
    """)
    a.lab(E)

def nonce_issue(a, vt):
    a(f"v_mov_b32 v{vt}, 0")
    a(f"buffer_load_dwordx2 {vr(vt+2,2)}, v{vt}, {sr(SDBG,4)}, 0 offen sc1")
def nonce_get(a, vt):
    L = a.uniq("ng"); E = a.uniq("nge")
    a("s_mov_b32 s14, 0")
    a.lab(L)
    a(f"""
    s_waitcnt vmcnt(0)
    v_readfirstlane_b32 s{sE}, v{vt+2}
    v_readfirstlane_b32 s{sE+1}, v{vt+3}
    s_add_u32 s14, s14, 1
    s_cmp_gt_u32 s14, 0x40000
    s_cbranch_scc1 {E}
    s_cmp_lg_u32 s{sE}, 0
    s_cbranch_scc1 {E}
    buffer_load_dwordx2 {vr(vt+2,2)}, v{vt}, {sr(SDBG,4)}, 0 offen sc1
    s_branch {L}
    """)
    a.lab(E)
def publish(a, soff, vt):
    a(f"""
    v_mov_b32 v{vt}, s{sE}
    v_mov_b32 v{vt+1}, s{sE+1}
    v_mov_b32 v{vt+2}, 0
    s_mov_b64 exec, 1
    buffer_store_dwordx2 {vr(vt,2)}, v{vt+2}, {sr(SWS,4)}, s{soff} offen sc1
    s_mov_b64 exec, -1
    """)
def poll(a, nl, voff, soff, vt, slp=3):
    L = a.uniq("pl"); E = a.uniq("ple")
    a(f"s_mov_b32 exec_lo, {((1<<nl)-1) & 0xffffffff:#x}")
    a(f"s_mov_b32 exec_hi, {((1<<nl)-1) >> 32:#x}")
    a("s_mov_b32 s14, 0")
    a.lab(L)
    a(f"""
    buffer_load_dwordx2 {vr(vt,2)}, v{voff}, {sr(SWS,4)}, s{soff} offen sc1
    s_add_u32 s14, s14, 1
    s_waitcnt vmcnt(0)
    v_cmp_eq_u64 vcc, {sr(sE,2)}, {vr(vt,2)}
    s_cmp_gt_u32 s14, 0x40000
    s_cbranch_scc1 {E}
    s_cmp_eq_u64 vcc, exec
    s_cbranch_scc1 {E}
    {f"s_sleep {slp}" if slp else ""}
    s_branch {L}
    """)
    a.lab(E)
    a("s_mov_b64 exec, -1")

def poll4(a, nl, voff, soff, vt, slp=3):
    L = a.uniq("pl"); E = a.uniq("ple")
    a(f"s_mov_b32 exec_lo, {((1<<nl)-1) & 0xffffffff:#x}")
    a(f"s_mov_b32 exec_hi, {((1<<nl)-1) >> 32:#x}")
    a("s_mov_b32 s14, 0")
    a.lab(L)
    a(f"""
    buffer_load_dwordx4 {vr(vt,4)}, v{voff}, {sr(SWS,4)}, s{soff} offen sc1
    s_add_u32 s14, s14, 1
    s_waitcnt vmcnt(0)
    v_cmp_eq_u64 vcc, {sr(sE,2)}, {vr(vt,2)}
    v_cmp_eq_u64 s[{sT-1}:{sT}], {sr(sE,2)}, {vr(vt+2,2)}
    s_cmp_gt_u32 s14, 0x40000
    s_cbranch_scc1 {E}
    s_and_b64 vcc, vcc, s[{sT-1}:{sT}]
    s_cmp_eq_u64 vcc, exec
    s_cbranch_scc1 {E}
    {f"s_sleep {slp}" if slp else ""}
    s_branch {L}
    """)
    a.lab(E)
    a("s_mov_b64 exec, -1")

def pollp(a, nl, voff, soff, vts, wide, slp):
    L = a.uniq("pp"); E = a.uniq("ppe")
    n = len(vts); w = 4 if wide else 2
    ld = lambda vt: a(f"buffer_load_dwordx{w} {vr(vt,w)}, v{voff}, {sr(SWS,4)}, s{soff} offen sc1")
    a(f"s_mov_b32 exec_lo, {((1<<nl)-1) & 0xffffffff:#x}")
    a(f"s_mov_b32 exec_hi, {((1<<nl)-1) >> 32:#x}")
    a("s_mov_b32 s14, 0")
    for k in range(n-1):
        ld(vts[k]); a(f"s_sleep {slp}")
    a.lab(L)
    for k in range(n):
        ld(vts[(k+n-1) % n])
        a(f"s_waitcnt vmcnt({n-1})")
        a(f"v_cmp_eq_u64 vcc, {sr(sE,2)}, {vr(vts[k],2)}")
        if wide:
            a(f"v_cmp_eq_u64 s[{sT-1}:{sT}], {sr(sE,2)}, {vr(vts[k]+2,2)}")
            a("s_nop 0")
            a(f"s_and_b64 vcc, vcc, s[{sT-1}:{sT}]")
        else:
            a("s_nop 1")
        a("s_cmp_eq_u64 vcc, exec")
        a(f"s_cbranch_scc1 {E}")
        a(f"s_sleep {slp}")
    a(f"""
    s_add_u32 s14, s14, 1
    s_cmp_lt_u32 s14, 0x20000
    s_cbranch_scc1 {L}
    """)
    a.lab(E)
    a("s_mov_b64 exec, -1")

def gen(a):
    NB = OPT["NB"]
    a.l.append(f".globl {NAME}")
    a.l.append(".p2align 8")
    a.l.append(f".type {NAME},@function")
    a.lab(NAME)
    a(f"""
    s_cmp_ge_u32 s2, 256
    s_cbranch_scc1 k_end
    s_load_dwordx16 s[16:31], s[0:1], 0
    s_load_dwordx4 s[32:35], s[0:1], 64
    """)
    if PROF:
        for i in range(1, 11):
            a(f"s_mov_b64 s[{80+2*i}:{81+2*i}], 0")
        stamp(a, 0)
    VXO = 20
    XA = 8
    a(f"""
    v_lshrrev_b32 v1, 6, v0
    v_and_b32 v0, 63, v0
    s_and_b32 s{sX}, s2, 7
    s_lshr_b32 s{sIdx}, s2, 3
    v_readfirstlane_b32 s{sW}, v1
    s_and_b32 s{sMB}, s{sX}, 1
    s_lshl_b32 s{sMB}, s{sMB}, 3
    s_and_b32 s3, s{sIdx}, 7
    s_add_u32 s{sMB}, s{sMB}, s3
    s_lshr_b32 s{sJ}, s{sX}, 1
    s_lshr_b32 s3, s{sX}, 2
    s_xor_b32 s{sJ}, s{sJ}, {"s3" if OPT.get("XM", 0) else "0"}
    s_lshl_b32 s{sJ}, s{sJ}, 2
    s_lshr_b32 s3, s{sIdx}, 3
    s_add_u32 s{sJ}, s{sJ}, s3
    v_lshrrev_b32 v14, 3, v0
    v_mul_u32_u24 v14, 896, v14
    v_lshrrev_b32 v15, 4, v0
    v_and_b32 v1, 7, v0
    v_xor_b32 v15, v15, v1
    v_lshl_add_u32 v{VXO}, v15, 4, v14
    v_xor_b32 v15, 4, v15
    v_lshl_add_u32 v{VXO+1}, v15, 4, v14
    v_add_u32 v{VXO+2}, {2*6144}, v{VXO}
    v_add_u32 v{VXO+3}, {3*6144}, v{VXO+1}
    v_add_u32 v{VXO+1}, 6144, v{VXO+1}
    s_and_b32 s4, s{sW}, 3
    s_lshl_b32 s3, s{sMB}, 7
    s_lshl_b32 s6, s4, 5
    s_add_u32 s3, s3, s6
    s_mul_i32 s5, s3, 896
    s_and_b32 s3, s{sJ}, 3
    s_lshl_b32 s3, s3, 1
    s_and_b32 s11, s{sMB}, 7
    s_add_u32 s11, s11, s3
    s_cmp_ge_u32 s11, 7
    s_cselect_b32 s3, 7, 0
    s_sub_u32 s11, s11, s3
    s_mul_i32 s11, s11, {OPT.get("ROT", 1)}
    s_lshl_b32 s3, s11, 7
    s_add_u32 s5, s5, s3
    s_mov_b32 s15, s11
    s_lshl_b32 s6, s4, 12
    s_add_u32 s6, s6, {XBASE}
    v_and_b32 v2, 31, v0
    v_lshrrev_b32 v3, 5, v0
    v_bfe_u32 v4, v0, 2, 2
    v_bfe_u32 v5, v0, 4, 1
    v_and_b32 v6, 3, v0
    v_lshlrev_b32 v7, 4, v0
    """)
    VQO = 16
    a(f"s_mul_i32 s3, s{sJ}, 56")
    a(f"s_and_b32 s3, s3, -16")
    for i in range(3):
        a(f"""
        v_add_u32 v1, {64*i}, v0
        v_mul_u32_u24 v14, 43691, v1
        v_lshrrev_b32 v14, 19, v14
        v_mul_u32_u24 v15, 12, v14
        v_sub_u32 v1, v1, v15
        v_mul_u32_u24 v14, 2688, v14
        v_lshrrev_b32 v15, 2, v1
        v_mul_u32_u24 v15, 896, v15
        v_add_u32 v14, v14, v15
        v_and_b32 v1, 3, v1
        v_lshl_add_u32 v14, v1, 4, v14
        v_add_u32 v14, s3, v14
        v_subrev_u32 v{VQO+i}, {1024*i}, v14
        """)
    a(f"""
    s_mul_i32 s7, s4, {16*2688}
    s_mul_i32 s3, s11, {64*2688}
    s_add_u32 s7, s7, s3
    s_mul_i32 s8, s4, 3072
    s_cmp_ge_u32 s{sW}, 4
    s_mov_b32 s{sW}, s4
    s_mov_b32 s14, s11
    s_movk_i32 s4, 128
    s_mov_b32 s9, {64*2688}
    s_waitcnt lgkmcnt(0)
    s_cbranch_scc1 k_F
    """)
    def xa_setup():
        a(f"v_bfe_u32 v14, v0, 1, 3")
        a(f"v_lshlrev_b32 v15, 7, v2")
        for kk in range(4):
            a(f"v_add_u32 v1, {2*kk}, v3")
            a(f"v_xor_b32 v1, v1, v14")
            a(f"v_lshl_add_u32 v{XA+kk}, v1, 4, v15")
    def zero_acc(base, n, z):
        for i in range(4): a(f"v_mov_b32 v{z+i}, 0")
        a("s_nop 1")
        for i in range(n):
            a(f"{MFMA} {vr(base+16*i,16)}, {vr(z,4)}, {vr(z,4)}, 0")
    ops = []
    def xdma(c):
        a(f"s_add_u32 m0, s6, {16384*c}")
        a(f"s_add_u32 s14, s14, 1")
        for i in range(4):
            a(f"buffer_load_dwordx4 v{VXO+i}, {sr(SX,4)}, s5 offen offset:{1024*i} lds"); ops.append(("x", c))
        a(f"""
        s_cmp_eq_u32 s14, 7
        s_cselect_b32 s3, -768, s4
        s_add_u32 s5, s5, s3
        """)
    def qdma(c):
        a(f"s_add_u32 m0, s8, {QSLOT*(c % 3)}")
        a(f"s_add_u32 s15, s15, 1")
        for i in range(3):
            a(f"buffer_load_dwordx4 v{VQO+i}, {sr(SWQ,4)}, s7 offen offset:{1024*i} lds"); ops.append(("q", c))
        a(f"""
        s_cmp_eq_u32 s15, 7
        s_cselect_b32 s3, {-6*64*2688}, s9
        s_add_u32 s7, s7, s3
        """)
    def landed(c):
        last = max(k for k, o in enumerate(ops) if o in (("x", c), ("q", c)))
        return len(ops) - 1 - last
    srd(a, SX, 16, S*D*2)
    xdma(0)
    srd(a, SWQ, 18, D*3*D*2)
    qdma(0)
    a("s_setprio 3")
    xdma(1); qdma(1)
    if not OPT.get("ES", 1):
        xdma(2); qdma(2); xdma(3)
    stamp(a, 1)
    srd(a, SWS, 34, WS_SIZE)
    srd(a, SDBG, 32, 256)
    WB = 12
    QB = [32, 48, 128, 144]
    AQ, AK, AV = 64, 80, 96
    VCS, VONE, VT = 24, 25, 26
    xa_setup()
    a(f"""
    s_lshl_b32 s3, s{sW}, 12
    s_add_u32 s3, s3, {XBASE}
    """)
    for kk in range(4):
        a(f"v_add_u32 v{XA+kk}, s3, v{XA+kk}")
    a(f"""
    v_lshl_add_u32 v14, v3, 3, v4
    v_mul_u32_u24 v14, 192, v14
    v_lshl_add_u32 v14, v5, 5, v14
    v_lshl_add_u32 v{WB}, v6, 3, v14
    s_and_b32 s3, s{sJ}, 1
    s_lshl_b32 s3, s3, 3
    v_add_u32 v{WB}, s3, v{WB}
    v_mov_b32 v31, 0x3f803f80
    v_cmp_eq_u32 vcc, 28, v2
    v_mov_b32 v{VCS}, {C_S}
    v_mov_b32 v{VONE}, 1
    v_cndmask_b32 v31, 0, v31, vcc
    """)
    zero_acc(AQ, 3, 128)
    if OPT.get("TB", 99) == 9:
        srd(a, SW2, 26, F*D*2)
        srd(a, SWO, 20, D*D*2)
        a(f"""
        v_lshlrev_b32 v28, 7, v0
        v_add_u32 v29, 8192, v28
        v_cmp_gt_u32 vcc, 34, v0
        v_bfrev_b32 v15, 1
        v_mov_b32 v30, v28
        v_cndmask_b32 v29, v15, v29, vcc
        v_cmp_gt_u32 vcc, 25, v0
        s_nop 1
        v_cndmask_b32 v30, v15, v30, vcc
        """)
    a("s_barrier")
    def qread_list(buf, c, kk):
        b = QB[buf]
        L = [f"ds_read_b128 {vr(b,4)}, v{XA+kk} offset:{(c%4)*16384}"]
        for t in range(3):
            for u in range(2):
                L.append(f"ds_read_b64_tr_b16 {vr(b+4+4*t+2*u,2)}, v{WB} offset:{QSLOT*(c%3)+(16*kk+4*u)*192+t*64}")
        return L
    def qstep(mbuf, R):
        b = QB[mbuf]
        M = [f"{MFMA} {vr(AQ,16)}, {vr(b+4,4)}, {vr(b,4)}, {vr(AQ,16)}",
             f"{MFMA} {vr(AK,16)}, {vr(b+8,4)}, {vr(b,4)}, {vr(AK,16)}",
             f"{MFMA} {vr(AV,16)}, {vr(b,4)}, {vr(b+12,4)}, {vr(AV,16)}"]
        n = len(R); cuts = [0, (n+2)//3, (2*n+2)//3, n]
        for i in range(3):
            a(M[i])
            for x in R[cuts[i]:cuts[i+1]]: a(x)
    def arrive(c):
        a(f"""
        s_waitcnt vmcnt({landed(c)}) lgkmcnt(0)
        s_mov_b64 exec, 1
        ds_add_u32 v{VCS}, v{VONE}
        s_mov_b64 exec, -1
        """)
    def spin(c):
        L = a.uniq("sp"); E = a.uniq("spe")
        a("s_mov_b32 s10, 0")
        a.lab(L)
        a(f"""
        ds_read_b32 v{VT}, v{VCS}
        s_add_u32 s10, s10, 1
        s_waitcnt lgkmcnt(0)
        v_readfirstlane_b32 s3, v{VT}
        s_cmp_gt_u32 s10, 0x200000
        s_cbranch_scc1 {E}
        s_cmp_ge_u32 s3, {4*(c+1)}
        s_cbranch_scc0 {L}
        """)
        a.lab(E)
    arrive(0)
    if OPT.get("ES", 1):
        xdma(2); qdma(2)
    spin(0)
    stamp(a, 2)
    for x in qread_list(0, 0, 0) + qread_list(1, 0, 1): a(x)
    if OPT.get("ES", 1):
        xdma(3)
    if OPT.get("Q2", 0):
        VT2 = 27
        def check(cnt_off, target, vt):
            L = a.uniq("ck"); E = a.uniq("cke")
            a("s_mov_b32 s10, 0")
            a.lab(L)
            a(f"""
            v_readfirstlane_b32 s3, v{vt}
            s_add_u32 s10, s10, 1
            s_cmp_ge_u32 s3, {target}
            s_cbranch_scc1 {E}
            s_cmp_gt_u32 s10, 0x200000
            s_cbranch_scc1 {E}
            ds_read_b32 v{vt}, v{VCS} offset:{cnt_off}
            s_waitcnt lgkmcnt(0)
            s_branch {L}
            """)
            a.lab(E)
        def add(cnt_off):
            a(f"""
            s_mov_b64 exec, 1
            ds_add_u32 v{VCS}, v{VONE} offset:{cnt_off}
            s_mov_b64 exec, -1
            """)
        for c in range(7):
            dma = c >= 1 and c + 2 <= 6
            a("s_waitcnt lgkmcnt(7)")
            R = qread_list(2, c, 2)
            if dma: R = R + [f"ds_read_b32 v{VT2}, v{VCS} offset:{C_R-C_S}"]
            qstep(0, R)
            if c < 6:
                a(f"s_waitcnt vmcnt({landed(c+1)})")
                add(0)
            if dma:
                a("s_waitcnt lgkmcnt(0)")
                check(C_R-C_S, 4*c, VT2)
                qdma(c+2)
                if c + 3 <= 6: xdma(c+3)
                if c == 4:
                    nonce_issue(a, 16); ops.append(("n", 0))
            else:
                a(f"s_waitcnt lgkmcnt({8 if c < 6 else 7})")
            R = qread_list(3, c, 3)
            if c < 6: R = R + [f"ds_read_b32 v{VT}, v{VCS}"]
            qstep(1, R)
            a("s_waitcnt lgkmcnt(0)")
            if c < 6:
                add(C_R-C_S)
                check(0, 4*(c+2), VT)
                stamp(a, 3+c, pv=1)
                if c + 1 == 4:
                    for k2 in range(4):
                        a(f"v_add_u32 v{XA+k2}, 0x10000, v{XA+k2}")
                qstep(2, qread_list(0, c+1, 0))
                qstep(3, qread_list(1, c+1, 1))
            else:
                lds_add(a, C_Q, 14, 15)
                qstep(2, []); qstep(3, [])
    else:
        for c in range(7):
            a("s_waitcnt lgkmcnt(7)"); qstep(0, qread_list(2, c, 2))
            a("s_waitcnt lgkmcnt(7)"); qstep(1, qread_list(3, c, 3))
            if c < 6:
                arrive(c+1)
                qstep(2, [])
                spin(c+1)
                stamp(a, 3+c, pv=1)
                if c + 1 == 4:
                    for k2 in range(4):
                        a(f"v_add_u32 v{XA+k2}, 0x10000, v{XA+k2}")
                qstep(3, qread_list(0, c+1, 0) + qread_list(1, c+1, 1))
                if c + 3 <= 6: qdma(c+3)
                if c + 4 <= 6: xdma(c+4)
                if c == 3:
                    nonce_issue(a, 16); ops.append(("n", 0))
            else:
                a("s_waitcnt lgkmcnt(0)")
                lds_add(a, C_Q, 14, 15)
                qstep(2, []); qstep(3, [])
    stamp(a, 3)
    QP, KP, VP = 32, 40, 48
    SD = 112
    sHead, sQb, sKo, sVo, sPass, sPub = sJ, sMB, 6, 8, 9, 10
    a(f"""
    s_lshl_b32 s3, s{sJ}, 6
    s_lshl_b32 s4, s{sMB}, 2
    s_add_u32 s3, s3, s4
    s_add_u32 s3, s3, s{sW}
    s_lshl_b32 s6, s3, 12
    s_add_u32 s6, s6, {WS_KV}
    s_lshl_b32 s7, s3, 3
    s_add_u32 s7, s7, {FL_KV}
    s_mov_b32 s8, {f2u(QSCALE):#x}
    s_mov_b32 s9, {f2u(QSCALE):#x}
    s_mov_b32 s10, 0x07060302
    """)
    for p in range(8):
        a(f"v_cvt_pk_bf16_f32 v{KP+p}, v{AK+2*p}, v{AK+2*p+1}")
    a(f"""
    s_mov_b32 exec_lo, 0
    v_mov_b32 v{KP+6}, 0x3f803f80
    v_mov_b32 v{KP+7}, 0x3f80
    s_mov_b64 exec, -1
    buffer_store_dwordx4 {vr(KP,4)}, v7, {sr(SWS,4)}, s6 offen sc1
    buffer_store_dwordx4 {vr(KP+4,4)}, v7, {sr(SWS,4)}, s6 offen offset:1024 sc1
    """)
    for p in range(8):
        a(f"v_cvt_pk_bf16_f32 v{VP+p}, v{AV+2*p}, v{AV+2*p+1}")
    a(f"""
    s_mov_b32 exec_lo, 0xf0000000
    s_mov_b32 exec_hi, 0xf0000000
    """)
    for p in range(8):
        a(f"v_mov_b32 v{VP+p}, v31")
    a(f"""
    s_mov_b64 exec, -1
    buffer_store_dwordx4 {vr(VP,4)}, v7, {sr(SWS,4)}, s6 offen offset:2048 sc1
    buffer_store_dwordx4 {vr(VP+4,4)}, v7, {sr(SWS,4)}, s6 offen offset:3072 sc1
    """)
    stamp(a, 4)
    stamp(a, 1, pv=5)
    for p in range(16):
        a(f"v_mul_f32 v{AQ+p}, s8, v{AQ+p}")
    for p in range(8):
        a(f"v_cvt_pk_bf16_f32 v{QP+p}, v{AQ+2*p}, v{AQ+2*p+1}")
    a(f"""
    s_mov_b32 exec_lo, 0
    v_mov_b32 v{QP+6}, 0
    v_mov_b32 v{QP+7}, 0
    s_mov_b64 exec, -1
    s_lshl_b32 s3, s{sW}, 11
    s_add_u32 s3, s3, {QXB}
    v_add_u32 v13, s3, v7
    {MFMA} {vr(SD,16)}, {vr(KP,4)}, {vr(QP,4)}, 0
    {MFMA} {vr(SD,16)}, {vr(KP+4,4)}, {vr(QP+4,4)}, {vr(SD,16)}
    s_nop 12
    v_max3_f32 v14, v{SD}, v{SD+1}, v{SD+2}
    v_max3_f32 v15, v{SD+3}, v{SD+4}, v{SD+5}
    v_max3_f32 v14, v14, v{SD+6}, v{SD+7}
    v_max3_f32 v15, v15, v{SD+8}, v{SD+9}
    v_max3_f32 v14, v14, v{SD+10}, v{SD+11}
    v_max3_f32 v15, v15, v{SD+12}, v{SD+13}
    v_max3_f32 v14, v14, v{SD+14}, v{SD+15}
    v_max_f32 v14, v14, v15
    v_mov_b32 v15, v14
    s_nop 1
    v_permlane32_swap_b32 v14, v15
    v_max_f32 v14, v14, v15
    v_sub_f32 v14, 0, v14
    v_and_b32 v15, 0xffff0000, v14
    v_sub_f32 v15, v14, v15
    v_and_b32 v12, 0xffff0000, v15
    v_sub_f32 v12, v15, v12
    s_mov_b32 exec_lo, 0
    v_perm_b32 v{QP+6}, v15, v14, s10
    v_lshrrev_b32 v{QP+7}, 16, v12
    s_mov_b64 exec, -1
    """)
    stamp(a, 2, pv=5)
    nonce_get(a, 16)
    stamp(a, 3, pv=5)
    publish(a, 7, 16)
    stamp(a, 5)
    a(f"""
    ds_write_b128 v13, {vr(QP,4)}
    ds_write_b128 v13, {vr(QP+4,4)} offset:1024
    """)
    lds_add(a, C_QX, 14, 15)
    stamp(a, 4, pv=5)
    Q = 8
    O = 40
    SB = [104, 120]
    PB = [136, 144]
    KVB = [152 + 16*i for i in range(NB)]
    VG = 3
    assert 152 + 16*NB <= 248
    a(f"""
    s_lshl_b32 s3, s{sHead}, 6
    s_lshl_b32 s11, s{sW}, 4
    s_add_u32 s3, s3, s11
    s_lshl_b32 s3, s3, 12
    s_add_u32 s3, s3, {WS_KV}
    s_add_u32 s{SKV}, s34, s3
    s_addc_u32 s{SKV+1}, s35, 0
    s_mov_b32 s{SKV+2}, 65536
    s_mov_b32 s{SKV+3}, 0x00020000
    s_mov_b32 s{sPass}, 0
    s_mov_b32 s{sPub}, 0
    """)
    a(f"""
    s_lshl_b32 s11, s{sHead}, 9
    s_lshl_b32 s3, s{sQb}, 9
    s_sub_u32 s3, s3, s11
    s_add_u32 s3, s3, {8192 + 56*8 - 32*16}
    v_lshlrev_b32 v248, 4, v0
    v_add_u32 v249, s3, v248
    v_cmp_gt_u32 vcc, 32, v0
    s_add_u32 s7, s11, {FL_KV}
    s_nop 0
    v_cndmask_b32 v248, v249, v248, vcc
    """)
    zero_acc(O, 4, PB[1])
    if OPT.get("TB", 99) == 9:
        a(f"""
        s_lshl_b32 s3, s{sIdx}, 2
        s_add_u32 s3, s3, s{sW}
        s_mul_i32 s5, s3, {25*128}
        s_mul_i32 s4, s3, {98*128}
        buffer_load_dword v254, v28, {sr(SW2,4)}, s4 offen
        buffer_load_dword v254, v29, {sr(SW2,4)}, s4 offen
        buffer_load_dword v254, v30, {sr(SWO,4)}, s5 offen
        """)
    lds_wait(a, C_QX, 4, 250, 251)
    for i in range(4):
        a(f"""
        s_add_u32 s3, s{sW}, {1+i}
        s_and_b32 s3, s3, 3
        s_lshl_b32 s3, s3, 11
        v_add_u32 v1, s3, v7
        ds_read_b128 {vr(Q+8*i,4)}, v1 offset:{QXB}
        ds_read_b128 {vr(Q+8*i+4,4)}, v1 offset:{QXB+1024}
        """)
    stamp(a, 5, pv=5)
    a(f"""
    s_cmp_lg_u32 s{sW}, 0
    s_cbranch_scc1 k_a_w
    """)
    if OPT.get("PP", 0):
        pollp(a, 34, 248, 7, [236, 240, 244], True, OPT.get("PPS", 3))
    else:
        poll4(a, 34, 248, 7, 252, slp=OPT.get('PS1', 3))
    lds_add(a, C_KV, 250, 251)
    a("s_branch k_a_go")
    a.lab("k_a_w")
    lds_wait(a, C_KV, 1, 250, 251, sleep=OPT.get('PS3', 1))
    a.lab("k_a_go")
    stamp(a, 6, pv=5)
    stamp(a, 6)
    def ldK(b):
        a(f"buffer_load_dwordx4 {vr(KVB[b],4)}, v7, {sr(SKV,4)}, s{sKo} offen sc1")
        a(f"buffer_load_dwordx4 {vr(KVB[b]+4,4)}, v7, {sr(SKV,4)}, s{sKo} offen offset:1024 sc1")
        a(f"s_add_u32 s{sKo}, s{sKo}, 4096")
    def ldV(b):
        a(f"buffer_load_dwordx4 {vr(KVB[b]+8,4)}, v7, {sr(SKV,4)}, s{sVo} offen offset:2048 sc1")
        a(f"buffer_load_dwordx4 {vr(KVB[b]+12,4)}, v7, {sr(SKV,4)}, s{sVo} offen offset:3072 sc1")
        a(f"s_add_u32 s{sVo}, s{sVo}, 4096")
    a(f"""
    s_lshl_b32 s3, s{sQb}, 9
    s_lshl_b32 s11, s{sW}, 7
    s_add_u32 s3, s3, s11
    s_add_u32 s3, s3, {WS_G}
    v_lshlrev_b32 v4, 2, v2
    buffer_load_dword v{VG}, v4, {sr(SWS,4)}, s3 offen sc1
    s_branch k_att_first
    """)
    a.lab("k_att_start")
    zero_acc(O, 4, PB[1])
    a.lab("k_att_first")
    a(f"s_mov_b32 s{sKo}, 0")
    a(f"s_mov_b32 s{sVo}, 0")
    aops = []
    def issue(kind, t):
        (ldK if kind == "K" else ldV)(t % NB); aops.extend([(kind, t)]*2)
    def need(kind, t):
        last = max(k for k, o in enumerate(aops) if o == (kind, t))
        return len(aops) - 1 - last
    UNR = OPT.get("UNR", 0)
    order = []
    for t in range(16 + (0 if UNR else NB)): order += [("K", t), ("V", t)]
    npro = 3 if UNR else 2*NB-1
    if not UNR:
        for i in range(8): a(f"v_mov_b32 v{KVB[NB-1]+8+i}, 0")
        for i in range(8): a(f"v_mov_b32 v{PB[1]+i}, 0")
    for _ in range(npro): issue(*order.pop(0))
    if OPT["TOUCH"]:
        a(f"""
        s_and_b32 s3, s{sQb}, 7
        s_lshl_b32 s3, s3, 7
        v_lshlrev_b32 v4, 10, v0
        buffer_load_dword v6, v4, {sr(SKV,4)}, s3 offen sc1
        """)
        aops.append(("T", 0))
    a(f"""
    s_lshl_b32 s3, s{sW}, 2
    s_add_u32 s3, s3, {C_A3}
    v_mov_b32 v248, s3
    v_mov_b32 v249, 1
    s_mov_b32 s{sC}, 0
    """)
    def oc_base(dst, sreg):
        a(f"""
        s_mul_i32 s{dst}, s{sreg}, 12288
        s_cmp_eq_u32 s{sreg}, 3
        s_cselect_b32 s{dst}, {OC3}, s{dst}
        """)
    for i in range(3):
        a(f"""
        s_add_u32 s3, s{sW}, {1+i}
        s_and_b32 s3, s3, 3
        """)
        oc_base(11, 3)
        a(f"v_add_u32 v{250+i}, s11, v7")
    a("ds_write_b32 v248, v249")
    a("v_mov_b32 v249, 2")
    a(f"s_waitcnt vmcnt({need('K', 0)}) lgkmcnt(0)")
    stamp(a, 7)
    stamp(a, 1, pv=6); stamp(a, 2, True, pv=6)
    if OPT.get("HPROF"): stamp(a, 1, True)
    a(f"{MFMA} {vr(SB[0],16)}, {vr(KVB[0],4)}, {vr(Q,4)}, 0")
    a(f"{MFMA} {vr(SB[0],16)}, {vr(KVB[0]+4,4)}, {vr(Q+4,4)}, {vr(SB[0],16)}")
    a(f"s_setprio {OPT['PRIO_A']}")
    a("s_nop 13")
    def free_at(kind, t):
        if t < NB: return -1
        return 4*(t-NB)+2 if kind == "K" else 4*(t-NB)+4
    ocw = []
    NU = 64 if UNR else 4*NB
    if not UNR: a.lab("k_aloop")
    for u in range(NU):
        t, qi = u // 4, u % 4
        un = u + 1; tn, qn = un // 4, un % 4
        up = u - 1; tp, qp = up // 4, up % 4
        sc, sn = SB[u % 2], SB[(u+1) % 2]
        pc, pp = PB[u % 2], PB[(u-1) % 2]
        def ex(r): a(f"v_exp_f32 v{sc+r}, v{sc+r}")
        def cv(p): a(f"v_cvt_pk_bf16_f32 v{pc+p}, v{sc+2*p}, v{sc+2*p+1}")
        def w_():
            if ocw: a(ocw.pop(0))
        def wt(kind, tt):
            a(f"s_waitcnt vmcnt({need(kind, tt) if UNR else 4*(NB-1)})")
        if un < 64:
            if qi == 3: wt('K', tn)
            a(f"{MFMA} {vr(sn,16)}, {vr(KVB[tn%NB],4)}, {vr(Q+8*qn,4)}, 0")
        ex(0); ex(1); w_(); ex(2); ex(3)
        if un < 64:
            a(f"{MFMA} {vr(sn,16)}, {vr(KVB[tn%NB]+4,4)}, {vr(Q+8*qn+4,4)}, {vr(sn,16)}")
        if not UNR and qi == 2: issue(*order.pop(0))
        ex(4); ex(5); w_(); ex(6); ex(7)
        cv(0); cv(1)
        if up >= 0 or not UNR:
            if qi == 1: wt('V', t)
            a(f"{MFMA} {vr(O+16*qp,16)}, {vr(KVB[tp%NB]+8,4)}, {vr(pp,4)}, {vr(O+16*qp,16)}")
        ex(8); ex(9); w_(); ex(10); ex(11)
        cv(2); cv(3)
        if up >= 0 or not UNR:
            a(f"{MFMA} {vr(O+16*qp,16)}, {vr(KVB[tp%NB]+12,4)}, {vr(pp+4,4)}, {vr(O+16*qp,16)}")
        if UNR:
            quiet = OPT.get("QW0", 99) <= u <= OPT.get("QW1", -1)
            if order and free_at(*order[0]) <= u and not quiet:
                issue(*order.pop(0))
                if u > OPT.get("QW1", -1) >= 0 and order and free_at(*order[0]) <= u: issue(*order.pop(0))
        elif qi == 0: issue(*order.pop(0))
        ex(12); ex(13); w_(); ex(14); ex(15)
        cv(4); cv(5); cv(6); cv(7)
        if UNR:
            if u == OPT.get("AS1", 13):
                a("ds_write_b32 v248, v249")
                a("v_mov_b32 v249, 3")
            if u == OPT.get("ASU", 47):
                a("ds_write_b32 v248, v249")
            if u in (15, 31, 47):
                stamp(a, 3+2*(u//16), pv=6); stamp(a, 4+2*(u//16), True, pv=6)
            if u == 56:
                lds_wait(a, C_F1, 4, 4, 5)
                for wv in range(4):
                    lds_wait(a, C_A3 + 4*wv, 1, 4, 5)
            if u in (61, 62):
                i = u - 61
                ocw += [f"ds_write_b128 v{250+i}, {vr(O+16*i+4*r4,4)} offset:{4096*i+1024*r4}" for r4 in (0, 1, 2, 3)]
                ocw.insert(len(ocw)-4, "s_nop 0")
    if not UNR:
        a(f"""
        s_add_u32 s{sC}, s{sC}, 1
        ds_write_b32 v248, v249
        v_add_u32 v249, 1, v249
        s_cmp_lt_u32 s{sC}, {16//NB}
        s_cbranch_scc1 k_aloop
        """)
        for i in range(2):
            ocw += [f"ds_write_b128 v{250+i}, {vr(O+16*i+4*r4,4)} offset:{4096*i+1024*r4}" for r4 in (0, 1, 2, 3)]
    stamp(a, 8)
    stamp(a, 9, pv=6); stamp(a, 10, True, pv=6)
    if OPT.get("HPROF"): stamp(a, 10, True)
    stamp(a, 1, pv=7)
    a("s_setprio 3")
    a(f"{MFMA} {vr(O+48,16)}, {vr(KVB[15%NB]+8,4)}, {vr(PB[1],4)}, {vr(O+48,16)}")
    a(f"{MFMA} {vr(O+48,16)}, {vr(KVB[15%NB]+12,4)}, {vr(PB[1]+4,4)}, {vr(O+48,16)}")
    if not UNR: lds_wait(a, C_F1, 4, 4, 5)
    stamp(a, 2, pv=7)
    for x in ocw: a(x)
    for r4 in range(4):
        a(f"ds_write_b128 v252, {vr(O+32+4*r4,4)} offset:{8192+1024*r4}")
    lds_add(a, C_OC, 5, 6)
    stamp(a, 3, pv=7)
    oc_base(11, sW)
    a(f"""
    v_add_u32 v1, s11, v7
    s_lshl_b32 s7, s{sPass}, 2
    s_add_u32 s7, s7, 4
    """)
    lds_wait(a, C_OC, "s7", 4, 5)
    stamp(a, 4, pv=7)
    R = 104
    for i in range(12):
        a(f"ds_read_b128 {vr(R+4*i,4)}, v1 offset:{1024*i}")
    OK_ = O + 48
    for i in range(3):
        a(f"s_waitcnt lgkmcnt({8-4*i})")
        for p in range(16):
            a(f"v_add_f32 v{OK_+p}, v{OK_+p}, v{R+16*i+p}")
    OP = R
    stamp(a, 5, pv=7)
    a(f"""
    v_mov_b32 v4, v{OK_+12}
    v_mov_b32 v5, v{OK_+12}
    s_lshl_b32 s3, s{sQb}, 2
    s_add_u32 s3, s3, s{sW}
    v_permlane32_swap_b32 v4, v5
    s_lshl_b32 s3, s3, 4
    s_add_u32 s3, s3, s{sHead}
    v_rcp_f32 v4, v5
    s_lshl_b32 s7, s3, 11
    s_add_u32 s7, s7, {WS_OF}
    v_mul_f32 v4, v4, v{VG}
    s_lshl_b32 s11, s3, 3
    s_add_u32 s11, s11, {FL_O}
    """)
    for p in range(16):
        a(f"v_mul_f32 v{OK_+p}, v4, v{OK_+p}")
    for p in range(8):
        a(f"v_cvt_pk_bf16_f32 v{OP+p}, v{OK_+2*p}, v{OK_+2*p+1}")
    a(f"""
    s_cmp_lg_u32 s{sPub}, 0
    s_cbranch_scc1 k_a_done
    s_mov_b32 exec_lo, 0
    v_mov_b32 v{OP+6}, 0
    v_mov_b32 v{OP+7}, 0
    s_mov_b64 exec, -1
    buffer_store_dwordx4 {vr(OP,4)}, v7, {sr(SWS,4)}, s7 offen sc1
    buffer_store_dwordx4 {vr(OP+4,4)}, v7, {sr(SWS,4)}, s7 offen offset:1024 sc1
    """)
    stamp(a, 6, pv=7)
    for p in range(2, 16):
        a(f"v_add_f32 v{OK_+(p&1)}, v{OK_+(p&1)}, v{OK_+p}")
    a(f"""
    v_add_f32 v{OK_}, v{OK_}, v{OK_+1}
    v_mul_f32 v{OK_}, 0, v{OK_}
    v_add_f32 v5, v5, v{OK_}
    v_mov_b32 v6, {f2u(2.0**40):#x}
    v_cmp_nlt_f32 vcc, v5, v6
    s_cmp_lg_u32 s{sPass}, 0
    s_cbranch_scc1 k_a_pub
    s_cbranch_vccz k_a_pub
    v_mov_b32 v4, {C_BAD}
    v_mov_b32 v6, 1
    ds_write_b32 v4, v6
    s_branch k_a_sync
    """)
    a.lab("k_a_pub")
    stamp(a, 7, pv=7)
    a("s_waitcnt vmcnt(0)")
    stamp(a, 8, pv=7)
    publish(a, 11, 4)
    a(f"s_mov_b32 s{sPub}, 1")
    stamp(a, 9)
    a.lab("k_a_sync")
    a(f"""
    s_cmp_lg_u32 s{sPass}, 0
    s_cbranch_scc1 k_a_done
    """)
    lds_add(a, C_A2, 4, 5)
    lds_wait(a, C_A2, 4, 4, 5)
    a(f"""
    v_mov_b32 v4, {C_BAD}
    ds_read_b32 v6, v4
    s_waitcnt lgkmcnt(0)
    v_readfirstlane_b32 s3, v6
    s_cmp_lg_u32 s3, 0
    s_cbranch_scc1 k_fallback
    """)
    a.lab("k_a_done")
    flush(a, 0)
    a("s_endpgm")
    a.lab("k_fallback")
    MX = O
    a(f"""
    s_mov_b32 s{sPass}, 1
    s_waitcnt vmcnt(0)
    s_mov_b32 exec_lo, 0
    """)
    for i in range(4):
        a(f"v_mov_b32 v{Q+8*i+6}, 0")
        a(f"v_mov_b32 v{Q+8*i+7}, 0")
    a("s_mov_b64 exec, -1")
    for i in range(4):
        a(f"v_mov_b32 v{MX+i}, 0xff800000")
    a(f"s_mov_b32 s{sKo}, 0")
    a.lab("k_fbloop")
    ldK(0)
    a("s_waitcnt vmcnt(0)")
    for i in range(4):
        sb = SB[0]
        a(f"{MFMA} {vr(sb,16)}, {vr(KVB[0],4)}, {vr(Q+8*i,4)}, 0")
        a(f"{MFMA} {vr(sb,16)}, {vr(KVB[0]+4,4)}, {vr(Q+8*i+4,4)}, {vr(sb,16)}")
        a("s_nop 15")
        for r in range(0, 16, 2):
            a(f"v_max3_f32 v{MX+i}, v{MX+i}, v{sb+r}, v{sb+r+1}")
    a(f"""
    s_cmp_lt_u32 s{sKo}, 65536
    s_cbranch_scc1 k_fbloop
    """)
    for i in range(4):
        a(f"""
        s_add_u32 s3, s{sW}, {1+i}
        s_and_b32 s3, s3, 3
        s_lshl_b32 s3, s3, 10
        s_lshl_b32 s11, s{sW}, 8
        s_add_u32 s3, s3, s11
        v_lshl_add_u32 v4, v0, 2, s3
        ds_write_b32 v4, v{MX+i}
        """)
    lds_add(a, C_FB1, 4, 5)
    lds_wait(a, C_FB1, 4, 4, 5)
    for i in range(4):
        a(f"""
        s_add_u32 s3, s{sW}, {1+i}
        s_and_b32 s3, s3, 3
        s_lshl_b32 s3, s3, 10
        v_lshl_add_u32 v4, v2, 2, s3
        """)
        for k in range(8):
            a(f"ds_read_b32 v{MX+8+k}, v4 offset:{128*k}")
        a("s_waitcnt lgkmcnt(0)")
        a(f"""
        v_max3_f32 v5, v{MX+8}, v{MX+9}, v{MX+10}
        v_max3_f32 v5, v5, v{MX+11}, v{MX+12}
        v_max3_f32 v5, v5, v{MX+13}, v{MX+14}
        v_max_f32 v5, v5, v{MX+15}
        v_sub_f32 v5, 0, v5
        v_and_b32 v6, 0xffff0000, v5
        v_sub_f32 v6, v5, v6
        v_and_b32 v4, 0xffff0000, v6
        v_sub_f32 v4, v6, v4
        s_mov_b32 s3, 0x07060302
        s_mov_b32 exec_lo, 0
        v_perm_b32 v{Q+8*i+6}, v6, v5, s3
        v_lshrrev_b32 v{Q+8*i+7}, 16, v4
        s_mov_b64 exec, -1
        """)
    lds_add(a, C_FB2, 4, 5)
    lds_wait(a, C_FB2, 4, 4, 5)
    a("s_branch k_att_start")

    a.lab("k_F")
    GF = 112; AG = 48; XG = 64
    AF = 48
    W1R = 112
    XF = [16, 32, 224]
    WFr = [240, 244]
    TR0 = 12; TW0 = 13
    a(f"s_setprio {OPT['PRIO_F']}")
    srd(a, SDBG, 32, 256)
    a(f"""
    v_lshlrev_b32 v1, 2, v0
    v_add_u32 v1, {LCNT}, v1
    v_mov_b32 v15, 0
    ds_write_b32 v1, v15
    s_or_b32 s3, s2, s{sW}
    s_cmp_lg_u32 s3, 0
    s_cbranch_scc1 k_F_nonce_done
    s_memrealtime s[4:5]
    s_waitcnt lgkmcnt(0)
    s_or_b32 s4, s4, 1
    v_mov_b32 v18, s4
    v_mov_b32 v19, s5
    s_mov_b64 exec, 1
    buffer_store_dwordx2 v[18:19], v15, {sr(SDBG,4)}, 0 offen sc1
    s_mov_b64 exec, -1
    k_F_nonce_done:
    """)
    srd(a, SWS, 34, WS_SIZE)
    srd(a, SW1, 24, D*F*2)
    if OPT.get("CPF", 0):
        a(f"""
        s_getpc_b64 s[4:5]
        k_pc0:
        s_sub_u32 s60, s4, k_pc0-{NAME}
        s_subb_u32 s61, s5, 0
        s_mov_b32 s62, k_code_end-{NAME}
        s_mov_b32 s63, 0x00020000
        s_and_b32 s3, s{sIdx}, 1
        s_lshl_b32 s3, s3, 2
        s_add_u32 s3, s3, s{sW}
        s_lshl_b32 s3, s3, 13
        v_lshlrev_b32 v14, 7, v0
        buffer_load_dword v250, v14, s[60:63], s3 offen
        """)
    xa_setup()
    a(f"""
    s_cmp_ge_u32 s{sJ}, 14
    s_cbranch_scc1 k_gate
    v_lshrrev_b32 v14, 2, v0
    v_mul_u32_u24 v14, 3584, v14
    v_lshl_add_u32 v14, v6, 4, v14
    s_lshl_b32 s9, s{sJ}, 2
    s_add_u32 s9, s9, s{sW}
    s_lshl_b32 s10, s9, 6
    s_mul_i32 s3, s11, {64*3584}
    s_add_u32 s10, s10, s3
    s_sub_u32 s10, s10, {16*3584}
    """)
    if OPT.get("W1T", 1):
        a(f"""
        s_and_b32 s4, s{sMB}, 7
        s_mul_i32 s4, s4, 56
        s_mul_i32 s5, s{sW}, 14
        s_add_u32 s4, s4, s5
        s_mul_i32 s4, s4, 3584
        s_lshl_b32 s5, s{sJ}, 8
        s_add_u32 s4, s4, s5
        v_lshrrev_b32 v13, 1, v0
        v_mul_u32_u24 v13, 3584, v13
        v_and_b32 v15, 1, v0
        v_lshl_add_u32 v13, v15, 7, v13
        v_cmp_gt_u32 vcc, 28, v0
        v_bfrev_b32 v15, 1
        s_nop 0
        v_cndmask_b32 v13, v15, v13, vcc
        buffer_load_dword v251, v13, {sr(SW1,4)}, s4 offen
        """)
    def w1load(i):
        a(f"s_add_u32 s10, s10, {16*3584}")
        a(f"buffer_load_dwordx4 {vr(W1R+4*i,4)}, v14, {sr(SW1,4)}, s10 offen")
        if i % 4 == 3:
            a(f"""
            s_add_u32 s11, s11, 1
            s_cmp_eq_u32 s11, 7
            s_cselect_b32 s3, {448*3584}, 0
            s_sub_u32 s10, s10, s3
            """)
    for kk in range(4):
        a(f"v_add_u32 v{XA+kk}, {XBASE}, v{XA+kk}")
    a(f"""
    v_lshl_add_u32 v15, v3, 3, v4
    v_lshlrev_b32 v15, 6, v15
    v_lshl_add_u32 v15, v5, 5, v15
    v_lshl_add_u32 v15, v6, 3, v15
    s_lshl_b32 s4, s{sW}, 11
    s_add_u32 s4, s4, {W1E}
    v_add_u32 v{TR0}, s4, v15
    v_add_u32 v{TW0}, s4, v7
    """)
    zero_acc(AF, 4, 16)
    W1A = OPT.get("W1A", 28)
    LAG = OPT.get("LAG", 6)
    W1S = OPT.get("W1S", 1)
    if W1S == 0:
        for i in range(W1A): w1load(i)
    a("s_waitcnt lgkmcnt(0)")
    a("s_barrier")
    if W1S:
        lds_wait(a, C_S, 4*W1S, 1, 15, sleep=1)
        for i in range(W1A): w1load(i)
    stamp(a, 1)
    w1n = [W1A]
    def f_stage_l(i):
        return [f"s_waitcnt vmcnt({w1n[0]-1-i})", f"ds_write_b128 v{TW0}, {vr(W1R+4*i,4)} offset:{1024*(i%2)}"]
    def f_xreads_l(i):
        b = XF[i % 3]
        c, kk = i // 4, i % 4
        return [f"ds_read_b128 {vr(b+4*mt,4)}, v{XA+kk} offset:{(c%4)*16384+4096*mt}" for mt in range(4)]
    def f_wreads_l(i):
        w = WFr[i % 2]
        return [f"ds_read_b64_tr_b16 {vr(w+2*u,2)}, v{TR0} offset:{1024*(i%2)+256*u}" for u in range(2)]
    def f_mfma_l(i):
        b = XF[i % 3]; w = WFr[i % 2]
        return [f"{MFMA} {vr(AF+16*mt,16)}, {vr(w,4)}, {vr(b+4*mt,4)}, {vr(AF+16*mt,16)}" for mt in range(4)]
    for x in f_stage_l(0) + f_wreads_l(0) + f_stage_l(1): a(x)
    lds_wait(a, C_S, 4*min(7, 1+LAG), 1, 15, sleep=1)
    stamp(a, 2)
    for x in f_xreads_l(0) + f_xreads_l(1): a(x)
    for t in range(28):
        n = (4 if t == 0 else 5) if t + 1 < 28 else 0
        a(f"s_waitcnt lgkmcnt({n})")
        M = f_mfma_l(t)
        Wr = f_wreads_l(t+1) if t + 1 < 28 else []
        R = f_xreads_l(t+2) if t + 2 < 28 else []
        a(M[0])
        for x in Wr: a(x)
        W1G = OPT.get("W1G", 8)
        if t == W1G and w1n[0] < 28 and W1G > 0:
            lds_wait(a, C_QX, 4, 1, 15)
        if w1n[0] < 28 and t >= W1G:
            w1load(w1n[0]); w1n[0] += 1
            if W1G > 0 and w1n[0] < 28:
                w1load(w1n[0]); w1n[0] += 1
        a(M[1])
        if (t + 2) % 4 == 0 and t + 2 < 28 and (t+2)//4+LAG < 7:
            lds_wait(a, C_S, 4*min(7, (t+2)//4+1+LAG), 1, 15, sleep=1)
            stamp(a, 2+(t+2)//4, pv=2)
        if t + 2 == 16:
            for k2 in range(4):
                a(f"v_add_u32 v{XA+k2}, 0x10000, v{XA+k2}")
        for x in R[0:2]: a(x)
        a(M[2])
        for x in R[2:4]: a(x)
        a(M[3])
        if t + 2 < 28:
            for x in f_stage_l(t+2): a(x)
    stamp(a, 3)
    stamp(a, 6, pv=2)
    stamp(a, 5, pv=3); stamp(a, 6, True, pv=3)
    lds_wait(a, C_Q, 4, 12, 13, sleep=1)
    lds_add(a, C_F1, 12, 13)
    nonce_issue(a, 232)
    a(f"""
    s_mov_b32 s4, {f2u(-LOG2E):#x}
    s_mov_b32 s5, {f2u(-LOG2E):#x}
    s_mov_b32 s6, 1.0
    s_mov_b32 s7, 1.0
    s_lshl_b32 s3, s{sMB}, 2
    s_mul_i32 s3, s3, 56
    s_add_u32 s3, s3, s9
    s_lshl_b32 s3, s3, 11
    s_add_u32 s8, s3, {WS_HF}
    s_lshl_b32 s3, s{sMB}, 9
    s_lshl_b32 s10, s9, 3
    s_add_u32 s10, s10, s3
    s_add_u32 s10, s10, {FL_H}
    """)
    T = 16
    for mt in range(4):
        acc = AF + 16*mt
        HP = 112 + 8*mt
        for g in range(2):
            prs = [4*g+i for i in range(4)]
            if OPT.get("PK", 0):
                for i, p in enumerate(prs):
                    a(f"v_pk_mul_f32 {vr(T+2*i,2)}, {vr(acc+2*p,2)}, s[4:5]")
                for i in range(8):
                    a(f"v_exp_f32 v{T+i}, v{T+i}")
                for i in range(4):
                    a(f"v_pk_add_f32 {vr(T+2*i,2)}, {vr(T+2*i,2)}, s[6:7]")
                for i in range(8):
                    a(f"v_rcp_f32 v{T+i}, v{T+i}")
                for i, p in enumerate(prs):
                    a(f"v_pk_mul_f32 {vr(T+2*i,2)}, {vr(acc+2*p,2)}, {vr(T+2*i,2)}")
            else:
                for i in range(8):
                    a(f"v_mul_f32 v{T+i}, s4, v{acc+8*g+i}")
                for i in range(8):
                    a(f"v_exp_f32 v{T+i}, v{T+i}")
                for i in range(8):
                    a(f"v_add_f32 v{T+i}, 1.0, v{T+i}")
                for i in range(8):
                    a(f"v_rcp_f32 v{T+i}, v{T+i}")
                for i in range(8):
                    a(f"v_mul_f32 v{T+i}, v{acc+8*g+i}, v{T+i}")
            for i, p in enumerate(prs):
                a(f"v_cvt_pk_bf16_f32 v{HP+p}, v{T+2*i}, v{T+2*i+1}")
            if not OPT.get("HD", 1):
                a(f"buffer_store_dwordx4 {vr(HP+4*g,4)}, v7, {sr(SWS,4)}, s8 offen offset:{g*1024} sc1")
        if not OPT.get("HD", 1):
            a(f"s_add_u32 s8, s8, {56*2048}")
    if OPT.get("HD", 1):
        stamp(a, 4)
        a(f"""
        s_lshl_b32 s3, s{sW}, 2
        s_add_u32 s3, s3, {C_A3}
        """)
        lds_wait(a, "s3", OPT.get("HG", 1), 16, 17, sleep=OPT.get("FSL", 4))
        for mt in range(4):
            for g in range(2):
                a(f"buffer_store_dwordx4 {vr(112+8*mt+4*g,4)}, v7, {sr(SWS,4)}, s8 offen offset:{g*1024} sc1")
            a(f"s_add_u32 s8, s8, {56*2048}")
            if OPT.get("HT", 1): a("s_waitcnt vmcnt(0)")
    if not OPT.get("HD", 1): stamp(a, 4)
    stamp(a, 7, pv=2)
    stamp(a, 7, pv=3); stamp(a, 8, True, pv=3)
    nonce_get(a, 232)
    publish(a, 10, 16)
    a("s_branch k_ffn2")
    a.lab("k_gate")
    a(f"""
    s_cmp_eq_u32 s{sJ}, 15
    s_cbranch_scc1 k_f15
    v_lshlrev_b32 v14, 4, v3
    """)
    srd(a, SG, 28, D*2)
    for c in range(7):
        a("s_lshl_b32 s10, s11, 7")
        for kk in range(4):
            a(f"buffer_load_dwordx4 {vr(GF+4*(4*c+kk),4)}, v14, {sr(SG,4)}, s10 offen offset:{kk*32}")
        a("""
        s_add_u32 s11, s11, 1
        s_cmp_eq_u32 s11, 7
        s_cselect_b32 s11, 0, s11
        """)
    a(f"""
    s_lshl_b32 s3, s{sW}, 12
    s_add_u32 s3, s3, {XBASE}
    """)
    for kk in range(4):
        a(f"v_add_u32 v{XA+kk}, s3, v{XA+kk}")
    zero_acc(AG, 1, 16)
    a("s_waitcnt lgkmcnt(0)")
    a("s_barrier")
    a("s_waitcnt vmcnt(0)")
    nonce_issue(a, 232)
    for c in range(7):
        lds_wait(a, C_S, 4*(c+1), 1, 15, sleep=1)
        for kk in range(4):
            a(f"ds_read_b128 {vr(XG+4*kk,4)}, v{XA+kk}")
            a(f"v_add_u32 v{XA+kk}, 0x4000, v{XA+kk}")
        for kk in range(4):
            a(f"s_waitcnt lgkmcnt({3-kk})")
            a(f"{MFMA} {vr(AG,16)}, {vr(GF+4*(4*c+kk),4)}, {vr(XG+4*kk,4)}, {vr(AG,16)}")
    a(f"""
    s_lshl_b32 s3, s{sMB}, 9
    s_lshl_b32 s4, s{sW}, 7
    s_add_u32 s4, s3, s4
    s_add_u32 s4, s4, {WS_G}
    s_lshl_b32 s10, s{sW}, 3
    s_add_u32 s10, s10, s3
    s_add_u32 s10, s10, {FL_H + 56*8}
    v_lshlrev_b32 v13, 2, v2
    s_nop 7
    v_mul_f32 v14, {f2u(-LOG2E):#x}, v{AG}
    v_exp_f32 v14, v14
    s_nop 0
    v_add_f32 v14, 1.0, v14
    v_rcp_f32 v14, v14
    s_nop 0
    buffer_store_dword v14, v13, {sr(SWS,4)}, s4 offen sc1
    """)
    nonce_get(a, 232)
    publish(a, 10, 16)
    lds_wait(a, C_Q, 4, 1, 15, sleep=1)
    lds_add(a, C_F1, 12, 13)
    a("s_branch k_ffn2")
    a.lab("k_f15")
    a("s_waitcnt lgkmcnt(0)")
    a("s_barrier")
    lds_wait(a, C_Q, 4, 12, 13, sleep=1)
    lds_add(a, C_F1, 12, 13)
    nonce_issue(a, 232)
    nonce_get(a, 232)
    a.lab("k_ffn2")
    stamp(a, 5)
    ACC = 16; WOF = 176; OFR = 80
    FD = OPT.get("FD", 3)
    HBr = [112 + 16*i for i in range(FD)]
    WF2 = [80, 96]
    VD = 8; TA = 14
    sRb, sCb, sM0, sWo, sHo, sHo1, sT3 = 4, 5, 6, 7, 8, 9, 11
    srd(a, SW2, 26, F*D*2)
    srd(a, SWO, 20, D*D*2)
    if OPT.get("FT", 1):
        a(f"""
        s_lshl_b32 s3, s{sIdx}, 2
        s_add_u32 s3, s3, s{sW}
        s_mul_i32 s5, s3, {25*128}
        s_mul_i32 s4, s3, {98*128}
        v_lshlrev_b32 v28, 7, v0
        v_add_u32 v29, 8192, v28
        v_cmp_gt_u32 vcc, 34, v0
        v_bfrev_b32 v15, 1
        v_mov_b32 v30, v28
        v_cndmask_b32 v29, v15, v29, vcc
        v_cmp_gt_u32 vcc, 25, v0
        s_nop 1
        v_cndmask_b32 v30, v15, v30, vcc
        """)
        a(f"""
        s_lshl_b32 s10, s{sW}, 2
        s_add_u32 s10, s10, {C_A3}
        """)
        lds_wait(a, "s10", OPT.get("TG", 2), 80, 81, sleep=OPT.get("FSL", 4))
        a(f"""
        buffer_load_dword v240, v28, {sr(SW2,4)}, s4 offen
        {"s_waitcnt vmcnt(0)" if OPT.get("HT", 1) else ""}
        buffer_load_dword v241, v29, {sr(SW2,4)}, s4 offen
        buffer_load_dword v242, v30, {sr(SWO,4)}, s5 offen
        s_waitcnt vmcnt(0)
        """)
    if OPT.get("XM", 0):
        a(f"""
        s_sub_u32 s3, s{sX}, 4
        s_cmp_lt_u32 s3, 2
        s_cbranch_scc1 k_f_late
        s_cmp_ge_u32 s{sX}, 6
        s_cselect_b32 s3, 2, 0
        s_sub_u32 s3, s{sX}, s3
        s_lshl_b32 s3, s3, 5
        s_add_u32 s3, s3, s{sIdx}
        s_branch k_f_tile
        k_f_late:
        s_cmp_lt_u32 s{sIdx}, 16
        s_cbranch_scc1 k_f_done
        s_lshl_b32 s3, s3, 4
        s_add_u32 s3, s3, s{sIdx}
        s_add_u32 s3, s3, 176
        k_f_tile:
        s_mul_i32 s{sRb}, s3, 293
        s_lshr_b32 s{sRb}, s{sRb}, 11
        s_mul_i32 s{sT}, s{sRb}, 7
        s_sub_u32 s{sCb}, s3, s{sT}
        """)
    else:
        a(f"""
        s_cmp_ge_u32 s{sIdx}, {0 if OPT.get('NOF2') else 28}
        s_cbranch_scc1 k_f_done
        s_mul_i32 s3, s{sIdx}, 37
        s_lshr_b32 s3, s3, 8
        s_mul_i32 s{sT}, s3, 7
        s_sub_u32 s{sCb}, s{sIdx}, s{sT}
        s_lshl_b32 s{sRb}, s{sX}, 2
        s_add_u32 s{sRb}, s{sRb}, s3
        """)
    srd(a, SOUT, 30, S*D*2)
    a(f"""
    v_lshrrev_b32 v1, 3, v0
    v_mul_u32_u24 v1, 896, v1
    v_bfe_u32 v12, v0, 2, 1
    v_xor_b32 v12, v12, v5
    v_lshl_add_u32 v1, v12, 6, v1
    v_lshl_add_u32 v{VD}, v6, 4, v1
    v_add_u32 v{VD+1}, 6144, v{VD}
    v_add_u32 v{VD+2}, {2*6144}, v{VD}
    v_add_u32 v{VD+3}, {3*6144}, v{VD}
    s_mul_i32 s{sM0}, s{sW}, {RING}
    s_add_u32 s{sM0}, s{sM0}, {RING0}
    v_lshl_add_u32 v1, v3, 2, v4
    v_lshlrev_b32 v1, 7, v1
    v_lshl_add_u32 v1, v5, 5, v1
    v_lshl_add_u32 v1, v6, 3, v1
    v_add_u32 v1, s{sM0}, v1
    v_bfe_u32 v13, v0, 3, 1
    v_lshl_add_u32 v{TA}, v13, 6, v1
    v_xor_b32 v13, 1, v13
    v_lshl_add_u32 v{TA+1}, v13, 6, v1
    s_mul_i32 s{sWo}, s{sW}, {448*896}
    s_lshl_b32 s3, s{sCb}, 7
    s_add_u32 s{sWo}, s{sWo}, s3
    s_mul_i32 s3, s{sRb}, 112
    s_mul_i32 s{sT}, s{sW}, 14
    s_add_u32 s3, s3, s{sT}
    s_lshl_b32 s3, s3, 11
    s_add_u32 s{sHo}, s3, {WS_HF}
    s_add_u32 s{sHo1}, s{sHo}, {56*2048}
    s_mov_b32 s{sT3}, s{sM0}
    """)
    a(f"""
    s_and_b32 s3, s{sRb}, 1
    s_lshl_b32 s3, s3, 4
    v_lshlrev_b32 v1, 4, v0
    v_add_u32 v13, s3, v1
    v_cmp_gt_u32 vcc, 28, v0
    s_lshr_b32 s3, s{sRb}, 1
    s_lshl_b32 s3, s3, 9
    v_cndmask_b32 v1, v13, v1, vcc
    s_add_u32 s10, s3, {FL_H}
    v_mul_u32_u24 v4, 7, v0
    v_add_u32 v4, s{sCb}, v4
    v_cmp_le_u32 vcc, 224, v4
    v_lshlrev_b32 v4, 7, v4
    v_add_u32 v5, {56*2048 - 224*128}, v4
    v_lshlrev_b32 v6, 2, v2
    v_cndmask_b32 v4, v4, v5, vcc
    """)
    zero_acc(ACC, 4, 80)
    lds_wait(a, C_F1, 4, 80, 81, sleep=1)
    def wdma_l(i):
        L = [f"s_add_u32 m0, s{sM0}, {4096*(i % (FD+1))}\n s_nop 0\n buffer_load_dwordx4 v{VD}, {sr(SW2,4)}, s{sWo} offen lds"]
        for k in range(1, 4):
            L.append(f"buffer_load_dwordx4 v{VD+k}, {sr(SW2,4)}, s{sWo} offen offset:{1024*k} lds")
        L[-1] += f"\n s_add_u32 s{sWo}, s{sWo}, {32*896}"
        return L
    def hld_l(i):
        hb = HBr[i % FD]
        L = []
        for kk in range(2):
            for mi in range(2):
                L.append(f"buffer_load_dwordx4 {vr(hb+8*mi+4*kk,4)}, v7, {sr(SWS,4)}, s{sHo if mi == 0 else sHo1} offen offset:{2048*(i%2)+1024*kk} sc1")
        if i % 2 == 1:
            L[-1] += f"\n s_add_u32 s{sHo}, s{sHo}, 4096\n s_add_u32 s{sHo1}, s{sHo1}, 4096"
        return L
    def tread_list(dst, off):
        L = []
        for kk in range(2):
            for ni in range(2):
                for u in range(2):
                    L.append(f"ds_read_b64_tr_b16 {vr(dst(ni,kk)+2*u,2)}, v{TA+ni} offset:{off+(16*kk+8*u)*128}")
        return L
    def treads(dst, off):
        for x in tread_list(dst, off): a(x)
    a(f"""
    s_mul_i32 s15, s{sW}, {4*28*896}
    s_lshl_b32 s3, s{sCb}, 7
    s_add_u32 s15, s15, s3
    """)
    for hl in range(4):
        a(f"s_add_u32 m0, s{sM0}, {4096*hl}")
        a("s_nop 0")
        for i in range(4):
            a(f"buffer_load_dwordx4 v{VD+i}, {sr(SWO,4)}, s15 offen offset:{1024*i} lds")
        a(f"s_add_u32 s15, s15, {28*896}")
    for hl in range(4):
        a(f"s_waitcnt vmcnt({12-4*hl})")
        treads(lambda ni,kk: WOF+16*hl+8*kk+4*ni, 4096*hl)
        a("s_waitcnt lgkmcnt(4)")
    a("s_waitcnt lgkmcnt(0)")
    for i in range(FD):
        for x in wdma_l(i): a(x)
    a(f"""
    s_cmp_lg_u32 s{sW}, 0
    s_cbranch_scc1 k_f_w
    """)
    poll4(a, 29, 1, 10, 80, slp=OPT.get('PS5', 3))
    lds_add(a, C_H, 80, 81)
    a("s_branch k_f_go")
    a.lab("k_f_w")
    lds_wait(a, C_H, 1, 80, 81, sleep=2)
    a.lab("k_f_go")
    stamp(a, 6)
    a(f"s_setprio {OPT.get('PRIO_F2', 0)}")
    a(f"""
    s_lshl_b32 s3, s{sRb}, 8
    s_add_u32 s3, s3, {WS_G}
    """)
    ops = []
    for x in hld_l(0): a(x); ops.append(("h", 0))
    if OPT["TOUCH"]:
        a(f"buffer_load_dword v5, v4, {sr(SWS,4)}, s{sHo} offen sc1"); ops.append(("t", 0))
    for i in range(1, FD):
        for x in hld_l(i): a(x); ops.append(("h", i))
    a(f"buffer_load_dword v1, v6, {sr(SWS,4)}, s3 offen sc1"); ops.append(("g", 0))
    a(f"buffer_load_dword v13, v6, {sr(SWS,4)}, s3 offen offset:128 sc1"); ops.append(("g", 0))
    def newer(tag):
        idx = [k for k, o in enumerate(ops) if o == tag]
        return len(ops) - 1 - idx[-1] if idx else None
    treads(lambda ni,kk: WF2[0]+8*ni+4*kk, 0) if False else None
    if OPT.get("ASIG", 3) > 0:
        a(f"""
        s_lshl_b32 s10, s{sW}, 2
        s_add_u32 s10, s10, {C_A3}
        """)
        lds_wait(a, "s10", 3 if OPT.get("UNR", 0) else OPT.get("ASI", 3)+1, 240, 241, sleep=OPT.get("FSL", 4))
        stamp(a, 2, pv=0) if False else None
    a(f"s_waitcnt vmcnt({len(ops)})")
    treads(lambda ni,kk: WF2[0]+8*ni+4*kk, 0)
    for i in range(14):
        b = i % 2
        need = [newer(("h", i))]
        if i + 1 < 14 and newer(("w", i+1)) is not None: need.append(newer(("w", i+1)))
        a(f"s_waitcnt vmcnt({min(need)}) lgkmcnt(0)")
        rl = tread_list(lambda ni,kk: WF2[1-b]+8*ni+4*kk, 4096*((i+1) % (FD+1))) if i + 1 < 14 else []
        wl = wdma_l(i+FD) if i + FD < 14 else []
        hl_ = hld_l(i+FD) if i + FD < 14 else []
        m = 0
        for kk in range(2):
            for mi in range(2):
                for ni in range(2):
                    acc = ACC + 16*(2*mi+ni)
                    hb = HBr[i % FD]
                    a(f"{MFMA} {vr(acc,16)}, {vr(WF2[b]+8*ni+4*kk,4)}, {vr(hb+8*mi+4*kk,4)}, {vr(acc,16)}")
                    if rl and m < 4:
                        a(rl[2*m]); a(rl[2*m+1])
                    if wl and m < 4:
                        a(wl[m]); ops.append(("w", i+FD))
                    if hl_ and m in (4, 5):
                        a(hl_[m-4]); ops.append(("h", i+FD))
                    if hl_ and m == 7:
                        a(hl_[2]); a(hl_[3]); ops.append(("h", i+FD)); ops.append(("h", i+FD))
                    m += 1
    a("s_waitcnt vmcnt(0) lgkmcnt(0)")
    stamp(a, 7)
    a("s_setprio 2")
    a(f"""
    v_sub_f32 v4, 1.0, v1
    v_sub_f32 v6, 1.0, v13
    s_nop 7
    """)
    for mi in range(2):
        for r in range(32):
            a(f"v_mul_f32 v{ACC+32*mi+r}, v{4+2*mi}, v{ACC+32*mi+r}")
    a(f"""
    v_lshrrev_b32 v1, 2, v0
    v_lshlrev_b32 v1, 7, v1
    v_and_b32 v13, 3, v0
    v_lshl_add_u32 v1, v13, 3, v1
    s_lshl_b32 s3, s{sRb}, 8
    s_lshl_b32 s{sT}, s{sW}, 5
    s_add_u32 s3, s3, s{sT}
    s_add_u32 s{sT}, s3, {FL_O}
    s_lshl_b32 s3, s{sRb}, 5
    s_lshl_b32 s{sHo}, s{sW}, 2
    s_add_u32 s3, s3, s{sHo}
    s_lshl_b32 s3, s3, 11
    s_add_u32 s{sHo}, s3, {WS_OF}
    s_add_u32 s{sWo}, s{sHo}, 32768
    s_waitcnt vmcnt(0)
    """)
    stamp(a, 8)
    lds_wait(a, C_A2, OPT.get('PS4', 4), 8, 9, sleep=1)
    a("s_setprio 3")
    if OPT.get("PP", 0):
        pollp(a, 8, 1, sT, [160, 162, 164], False, OPT.get("PPS", 3))
    else:
        poll(a, 8, 1, sT, 8, slp=OPT.get('PS2', 3))
    stamp(a, 9)
    stamp(a, 1, pv=7)
    for hl in range(4):
        if hl == 2:
            a(f"s_add_u32 s{sHo}, s{sHo}, 4096")
            a(f"s_add_u32 s{sWo}, s{sWo}, 4096")
        for kk in range(2):
            for mi in range(2):
                so = sHo if mi == 0 else sWo
                a(f"buffer_load_dwordx4 {vr(OFR+16*hl+8*kk+4*mi,4)}, v7, {sr(SWS,4)}, s{so} offen offset:{2048*(hl&1)+1024*kk} sc1")
    n = 16
    for hl in range(4):
        for kk in range(2):
            n -= 2
            a(f"s_waitcnt vmcnt({n})")
            if n == 14: stamp(a, 2, pv=7)
            for mi in range(2):
                for ni in range(2):
                    acc = ACC + 16*(2*mi+ni)
                    a(f"{MFMA} {vr(acc,16)}, {vr(WOF+16*hl+8*kk+4*ni,4)}, {vr(OFR+16*hl+8*kk+4*mi,4)}, {vr(acc,16)}")
    stamp(a, 3, pv=7)
    a(f"""
    v_add_u32 v4, s{sT3}, v7
    s_lshl_b32 s3, s{sW}, 12
    s_add_u32 s3, s3, {RING0}
    v_add_u32 v5, s3, v7
    s_nop 7
    """)
    RR = 80
    for wv in range(4):
        a(f"s_cmp_lg_u32 s{sW}, {wv}")
        a(f"s_cbranch_scc1 k_red{wv}_skip")
        for t in range(4):
            if t == wv: continue
            for r4 in range(4):
                a(f"ds_write_b128 v4, {vr(ACC+16*t+4*r4,4)} offset:{4096*t+1024*r4}")
        for r in range(16):
            a(f"v_mov_b32 v{128+r}, v{ACC+16*wv+r}")
        a.lab(f"k_red{wv}_skip")
    lds_add(a, C_RED, 8, 9)
    stamp(a, 4, pv=7)
    a(f"""
    s_lshr_b32 s3, s{sW}, 1
    s_lshl_b32 s3, s3, 5
    s_lshl_b32 s{sT}, s{sRb}, 6
    s_add_u32 s3, s3, s{sT}
    s_mul_i32 s3, s3, 896
    s_lshl_b32 s{sT}, s{sCb}, 7
    s_add_u32 s3, s3, s{sT}
    s_and_b32 s{sT}, s{sW}, 1
    s_lshl_b32 s{sT}, s{sT}, 6
    s_add_u32 s{sT}, s3, s{sT}
    v_mul_u32_u24 v4, 896, v2
    v_lshrrev_b32 v6, 5, v0
    v_lshl_add_u32 v4, v6, 4, v4
    """)
    lds_wait(a, C_RED, 4, 8, 9)
    stamp(a, 5, pv=7)
    for i in range(3):
        a(f"""
        s_add_u32 s3, s{sW}, {1+i}
        s_and_b32 s3, s3, 3
        s_mul_i32 s3, s3, {RING}
        v_add_u32 v6, s3, v5
        """)
        for r4 in range(4):
            a(f"ds_read_b128 {vr(RR+16*i+4*r4,4)}, v6 offset:{1024*r4}")
    for i in range(3):
        a(f"s_waitcnt lgkmcnt({8-4*i})")
        for p in range(8):
            a(f"v_pk_add_f32 {vr(128+2*p,2)}, {vr(128+2*p,2)}, {vr(RR+16*i+2*p,2)}")
    for p in range(8):
        a(f"v_cvt_pk_bf16_f32 v{16+p}, v{128+2*p}, v{128+2*p+1}")
    a(f"""
    s_nop 1
    v_permlane32_swap_b32 v16, v18
    v_permlane32_swap_b32 v17, v19
    v_permlane32_swap_b32 v20, v22
    v_permlane32_swap_b32 v21, v23
    buffer_store_dwordx4 v[16:19], v4, {sr(SOUT,4)}, s{sT} offen {["", "sc1", "nt", "sc0 sc1"][OPT.get("OS", 0)]}
    buffer_store_dwordx4 v[20:23], v4, {sr(SOUT,4)}, s{sT} offen offset:32 {["", "sc1", "nt", "sc0 sc1"][OPT.get("OS", 0)]}
    """)
    stamp(a, 6, pv=7)
    if PROF:
        a("s_waitcnt vmcnt(0)"); stamp(a, 10); stamp(a, 7, pv=7)
    a.lab("k_f_done")
    flush(a, 4)
    a("s_endpgm")
    a.lab("k_end")
    a("s_endpgm")
    a.lab("k_code_end")

def main(out):
    a = A()
    gen(a)
    txt = """; gated_mix: out = g * (softmax-MHA(x) @ wo) + (1-g) * (silu(x @ w1) @ w2),  g = sigmoid(x . gate_w)
"""
    txt += f"; @launch grid=(256,1,1) block=(512,1,1) lds={LDS_BYTES}\n"
    txt += '.amdgcn_target "amdgcn-amd-amdhsa--gfx950"\n.text\n'
    txt += a.text()
    txt += f""".section .rodata,"a"
.p2align 6
.amdhsa_kernel {NAME}
  .amdhsa_next_free_vgpr 256
  .amdhsa_next_free_sgpr 102
  .amdhsa_accum_offset 256
  .amdhsa_group_segment_fixed_size 0
  .amdhsa_kernarg_size 80
  .amdhsa_user_sgpr_count 2
  .amdhsa_user_sgpr_kernarg_segment_ptr 1
  .amdhsa_system_sgpr_workgroup_id_x 1
.end_amdhsa_kernel
"""
    open(out, "w").write(txt)

if __name__ == "__main__":
    main(sys.argv[1] if len(sys.argv) > 1 else "f.s")
```
